```python
import torch

def _softmax(x, axis=-1):
    return torch.softmax(x, dim=axis)
def _gelu(x):
    return torch.nn.functional.gelu(x, approximate="tanh")
def _silu(x):
    return torch.nn.functional.silu(x)
def _sigmoid(x):
    return torch.sigmoid(x)
def _layernorm(x, axis=-1, eps=1e-5):
    m = x.mean(dim=axis, keepdim=True)
    v = x.var(dim=axis, keepdim=True, unbiased=False)
    return (x - m) / torch.sqrt(v + eps)
def _scatter_add(tgt, idx, src, axis=0):
    return tgt.clone().index_add_(axis, idx, src)
def _segment_sum(src, seg, n):
    out = torch.zeros((n,) + src.shape[1:], dtype=src.dtype)
    return out.index_add_(0, seg, src)
def _pad(x, pw):
    flat = tuple(v for pair in reversed(pw) for v in pair)
    return torch.nn.functional.pad(x, flat)

kernel_name = 'sequential_preLN__spectral_fnet__moe_arch_mod__prompt'

def setup_inputs():

    _w = (lambda a: (lambda t: t.to(torch.bfloat16) if t.is_floating_point() else t)(torch.as_tensor(a)))
    def _A_setup():
        B, S, D = 1, 2048, 640
        ns = torch.arange(S)[:, None] * torch.arange(S)[None, :]
        nd = torch.arange(D)[:, None] * torch.arange(D)[None, :]
        Ws_re = torch.cos(-2.0 * torch.pi * ns / S).to(float)
        Ws_im = torch.sin(-2.0 * torch.pi * ns / S).to(float)
        Wd_re = torch.cos(-2.0 * torch.pi * nd / D).to(float)
        Wd_im = torch.sin(-2.0 * torch.pi * nd / D).to(float)
        return {
            "x": _w((lambda *s: torch.randn(*s, dtype=torch.bfloat16) * 0.05)(B, S, D)),
            "dft_seq_re": _w(Ws_re),
            "dft_seq_im": _w(Ws_im),
            "dft_hid_re": _w(Wd_re),
            "dft_hid_im": _w(Wd_im),
        }
    _A_in = _A_setup()

    def _B_setup():
        B, S, D, F, C = 1, 2048, 640, 1536, 2
        return {
            "x": _w((lambda *s: torch.randn(*s, dtype=torch.bfloat16) * 0.05)(B, S, D)),
            "w_r": _w((lambda *s: torch.randn(*s, dtype=torch.bfloat16) * 1.6)(D)),
            "w_gate": _w((lambda *s: torch.randn(*s, dtype=torch.bfloat16) * 0.4)(D, F)),
            "w_up": _w((lambda *s: torch.randn(*s, dtype=torch.bfloat16) * 0.4)(D, F)),
            "w_down": _w((lambda *s: torch.randn(*s, dtype=torch.bfloat16) * 0.4)(F, D)),
        }
    _B_in = _B_setup()

    return {
        "A_x": _A_in["x"],
        "A_dft_seq_re": _A_in["dft_seq_re"],
        "A_dft_seq_im": _A_in["dft_seq_im"],
        "A_dft_hid_re": _A_in["dft_hid_re"],
        "A_dft_hid_im": _A_in["dft_hid_im"],
        "B_x": _B_in["x"],
        "B_w_r": _B_in["w_r"],
        "B_w_gate": _B_in["w_gate"],
        "B_w_up": _B_in["w_up"],
        "B_w_down": _B_in["w_down"],
    }

def reference(A_x, A_dft_seq_re, A_dft_seq_im, A_dft_hid_re, A_dft_hid_im, B_x, B_w_r, B_w_gate, B_w_up, B_w_down):
    def _A_ref(x, dft_seq_re, dft_seq_im, dft_hid_re, dft_hid_im):
        a = torch.einsum("bsd,ed->bse", x, dft_hid_re)
        b = torch.einsum("bsd,ed->bse", x, dft_hid_im)
        y = torch.einsum("ts,bse->bte", dft_seq_re, a) - torch.einsum("ts,bse->bte", dft_seq_im, b)
        return y

    def _B_ref(x, w_r, w_gate, w_up, w_down):
        B, S, D = x.shape
        C = 2
        r = x @ w_r
        idx = torch.argsort(-r, axis=-1)[:, :C]
        idx_e = (lambda x, n, axis: torch.repeat_interleave(x, n, dim=axis))(idx.reshape(B, C, 1), D, axis=2)
        x_sel = (lambda x, i, axis: torch.take_along_dim(x, i, dim=axis))(x, idx_e, axis=1)
        g = _silu(x_sel @ w_gate)
        u = x_sel @ w_up
        y = (g * u) @ w_down
        r_sel = _sigmoid((lambda x, i, axis: torch.take_along_dim(x, i, dim=axis))(r, idx, axis=1))
        y = y * r_sel.reshape(B, C, 1)
        b_off = (torch.arange(B) * S).reshape(B, 1)
        flat_idx = (idx + b_off).reshape(B * C)
        zero = (x * 0.0).reshape(B * S, D)
        upd = _scatter_add(zero, flat_idx, y.reshape(B * C, D), axis=0)
        return x + upd.reshape(B, S, D)

    x = A_x
    h = x + _A_ref(_layernorm(x, axis=-1), A_dft_seq_re, A_dft_seq_im, A_dft_hid_re, A_dft_hid_im)
    h2 = h + _B_ref(_layernorm(h, axis=-1), B_w_r, B_w_gate, B_w_up, B_w_down)
    return h2
```

```python
import struct, sys
NAME = "sequential_preLN__spectral_fnet__moe_arch_mod__prompt"
def fb(x): return "0x%08x" % struct.unpack("<I", struct.pack("<f", x))[0]
class A:
    def __init__(s): s.l = []
    def __call__(s, t):
        for x in t.strip("\n").split("\n"):
            x = x.strip()
            if x: s.l.append(x if x.endswith(":") else "    " + x)
    def txt(s): return "\n".join(s.l) + "\n"
def vr(b, n): return f"v[{b}:{b+n-1}]"
DPPF = "row_mask:0xf bank_mask:0xf"
WS_G, WS_HN, WS_H, WS_CAND, WS_ACT = 0, 0x300000, 0x600000, 0x900000, 0x901000
WS_SIZE = 0x1000000
XB = 2621440

def srd(a, d, nbytes):
    a(f"s_mov_b32 s{d+2}, {nbytes}\ns_mov_b32 s{d+3}, 0x00020000")

K1_B, K1_A = 81920, 81920 + 25600
K1_LDS = K1_A + 96 * 144
def k1(a):
    a(f"""
    s_cmp_ge_u32 s2, 256
    s_cbranch_scc1 k1_end
    s_load_dwordx2 s[4:5], s[0:1], 0
    s_load_dwordx2 s[8:9], s[0:1], 96
    v_lshrrev_b32 v1, 6, v0
    v_and_b32 v0, 63, v0
    s_and_b32 s12, s2, 7
    s_lshr_b32 s13, s2, 6
    v_readfirstlane_b32 s3, v1
    s_lshl_b32 s13, s13, 3
    s_add_u32 s12, s12, s13
    s_bfe_u32 s13, s2, 0x30003
    s_and_b32 s14, s13, 3
    s_add_u32 s14, s14, 1
    s_lshr_b32 s15, s13, 2
    v_and_b32 v1, 15, v0
    v_lshrrev_b32 v2, 4, v0
    s_cmp_ge_u32 s3, 4
    s_cbranch_scc1 k1_helper
    """)
    srd(a, 4, XB); srd(a, 8, WS_SIZE)
    a(f"""
    v_lshrrev_b32 v3, 2, v0
    s_lshl_b32 s16, s3, 4
    v_add_u32 v3, s16, v3
    s_mov_b32 s17, 40960
    v_mul_lo_u32 v3, v3, s17
    v_lshrrev_b32 v4, 5, v0
    v_mul_u32_u24 v4, 3, v4
    v_and_b32 v5, 3, v0
    v_xor_b32 v4, v4, v5
    v_lshl_add_u32 v3, v4, 4, v3
    s_mul_i32 s18, s12, 1280
    s_mul_i32 s19, s3, 20480
    s_mov_b32 m0, s19
    s_add_u32 s20, s18, 1280
    s_waitcnt lgkmcnt(0)
k1_dma:
    buffer_load_dwordx4 v3, s[4:7], s18 offen lds
    s_addk_i32 s18, 64
    s_addk_i32 m0, 1024
    s_cmp_lt_u32 s18, s20
    s_cbranch_scc1 k1_dma
    """)
    CR, CI, CN = 200, 208, 216
    a(f"""
    v_add_u32 v4, s16, v1
    v_cvt_f32_u32 v4, v4
    v_lshlrev_b32 v5, 8, v2
    v_add_u32 v5, s12, v5
    v_cvt_f32_u32 v5, v5
    s_mul_i32 s21, s14, 3
    v_cvt_f32_u32 v6, s21
    v_mul_f32 v5, v4, v5
    v_mul_f32 v6, {fb(0.25)}, v6
    v_mul_f32 v7, {fb(1/64)}, v4
    v_fmac_f32 v6, {fb(1/2048)}, v5
    v_fract_f32 v6, v6
    """)
    for ks in range(2):
        if ks: a("v_fmac_f32 v6, 0x41c00000, v7\nv_fract_f32 v6, v6")
        for jp in range(4):
            a(f"""
            v_cos_f32 v8, v6
            v_sin_f32 v9, v6
            v_add_f32 v6, v6, v7
            v_cos_f32 v10, v6
            v_sin_f32 v11, v6
            v_add_f32 v6, v6, v7
            v_cvt_pk_bf16_f32 v{CR+4*ks+jp}, v8, v10
            v_cvt_pk_bf16_f32 v{CN+4*ks+jp}, v9, v11
            v_cvt_pk_bf16_f32 v{CI+4*ks+jp}, -v9, -v11
            """)
    a(f"""
    s_and_b32 s21, s14, 1
    s_lshl_b32 s22, s21, 31
    s_or_b32 s22, s22, 0x3f800000
    s_and_b32 s23, s14, 2
    s_lshl_b32 s23, s23, 30
    s_or_b32 s23, s23, 0x3f800000
    s_cmp_eq_u32 s21, 1
    s_cselect_b32 s24, s23, 0
    s_cselect_b32 s23, 0, s23
    s_xor_b32 s25, s24, 0x80000000
    v_mov_b32 v12, s24
    v_mov_b32 v13, s25
    v_cmp_gt_u32 vcc, 8, v1
    v_lshrrev_b32 v4, 3, v1
    v_mul_u32_u24 v4, 3, v4
    v_cndmask_b32 v12, v12, v13, vcc
    v_xor_b32 v4, v4, v2
    v_lshlrev_b32 v4, 4, v4
    v_lshl_add_u32 v4, v1, 6, v4
    v_add_u32 v4, s19, v4
    v_lshlrev_b32 v5, 4, v0
    v_mov_b32 v14, 0
    v_mov_b32 v15, 0
    v_mov_b32 v16, 0
    v_mov_b32 v17, 0
    v_mov_b32 v18, 1.0
    s_mov_b32 s26, 0x3f803f80
    s_barrier
    """)
    B, X, P, Q, R = 20, 120, 132, 152, 172
    for f in range(25):
        a(f"ds_read_b128 {vr(B+4*f,4)}, v5 offset:{K1_B - 65536 + 1024*f}" if False else f"ds_read_b128 {vr(B+4*f,4)}, v19 offset:{1024*f}") if f else a(f"v_add_u32 v19, {K1_B}, v5\nds_read_b128 {vr(B,4)}, v19")
    a(f"s_waitcnt vmcnt(19)\nds_read_b128 {vr(X,4)}, v4")
    fill = {i: [] for i in range(20)}
    for j in range(20):
        fill[6 + j // 5].append(f"v_mul_f32 v{P+j}, s22, v{P+j}")
        fill[11 + j // 5].append(f"v_mul_f32 v{Q+j}, s22, v{Q+j}")
    rot = []
    for b in range(2):
        for i in range(4):
            re, im = P + 4*b + i, P + 8 + 4*b + i
            rot += [f"v_mul_f32 v{R+4*b+i}, s23, v{re}", f"v_mul_f32 v{R+8+4*b+i}, s23, v{im}",
                    f"v_fmac_f32 v{R+4*b+i}, s25, v{im}", f"v_fmac_f32 v{R+8+4*b+i}, s24, v{re}"]
    for i in range(4):
        rot += [f"v_mul_f32 v{R+16+i}, s23, v{P+16+i}"]
    for i in range(4):
        rot += [f"v_fmac_f32_dpp v{R+16+i}, v{P+16+i}, v12 row_ror:8 {DPPF}"]
    for j, t in enumerate(rot): fill[16 + min(j // 14, 2)].append(t)
    S = 224
    for i in range(20):
        q, ks = divmod(i, 5)
        x = X + 4 * (i % 3)
        if i < 19:
            a(f"s_waitcnt vmcnt({18-i})\nds_read_b128 {vr(X+4*((i+1)%3),4)}, v4 offset:{1024*(i+1)}\ns_waitcnt lgkmcnt(1)")
        else:
            a("s_waitcnt lgkmcnt(0)")
        dots = []
        for j in range(4):
            dots += [f"v_dot2c_f32_bf16 v{14+(j&1)}, s26, v{x+j}", f"v_dot2c_f32_bf16 v{16+(j&1)}, v{x+j}, v{x+j}"]
        acc = P if q % 2 == 0 else Q
        mf = []
        for b in range(5):
            c = "0" if (q < 2 and ks == 0) else vr(acc+4*b, 4)
            mf.append(f"v_mfma_f32_16x16x32_bf16 {vr(acc+4*b,4)}, {vr(x,4)}, {vr(B+20*ks+4*b,4)}, {c}")
        if i < 19:
            fl = dots + fill[i]
            per = -(-len(fl) // 5)
            for b in range(5):
                a(mf[b])
                for t in fl[b*per:(b+1)*per]: a(t)
        else:
            a(mf[0]); [a(t) for t in dots[:4]]
            a(mf[1]); [a(t) for t in dots[4:]]
            a(mf[2]); a("s_nop 1\nv_add_f32 v14, v14, v15\nv_add_f32 v16, v16, v17")
            a(mf[3])
            a(f"v_mfma_f32_16x16x4_f32 {vr(S,4)}, v14, v18, 0\nv_mfma_f32_16x16x4_f32 {vr(S+4,4)}, v16, v18, 0")
            a(mf[4])
    a(f"""
    s_lshl_b32 s27, s3, 5
    s_add_u32 s27, s27, {K1_A}
    v_lshl_add_u32 v6, v2, 3, s27
    v_mul_u32_u24 v7, 144, v1
    v_add_u32 v7, v6, v7
    v_and_b32 v8, 7, v1
    v_mul_u32_u24 v8, 144, v8
    v_lshrrev_b32 v9, 3, v1
    v_mul_u32_u24 v9, 6912, v9
    v_add3_u32 v6, v6, v8, v9
    s_nop 1
    """)
    T = 232
    for i in range(4): a(f"v_mul_f32 v{S+i}, {fb(1/640)}, v{S+i}")
    for i in range(4): a(f"v_mul_f32 v{S+4+i}, {fb(1/640)}, v{S+4+i}")
    for i in range(4): a(f"v_fma_f32 v{S+i}, -v{S+i}, v{S+i}, v{S+4+i}")
    for i in range(4): a(f"v_max_f32 v{S+i}, 0, v{S+i}")
    def rnd4():
        a(f"""v_cvt_pk_bf16_f32 v{T}, v{S}, v{S+1}
        v_cvt_pk_bf16_f32 v{T+1}, v{S+2}, v{S+3}
        v_lshlrev_b32 v{S}, 16, v{T}
        v_and_b32 v{S+1}, 0xffff0000, v{T}
        v_lshlrev_b32 v{S+2}, 16, v{T+1}
        v_and_b32 v{S+3}, 0xffff0000, v{T+1}""")
    rnd4()
    for i in range(4): a(f"v_add_f32 v{S+i}, {fb(1e-5)}, v{S+i}")
    rnd4()
    for i in range(4): a(f"v_sqrt_f32 v{S+i}, v{S+i}")
    a("s_nop 0")
    rnd4()
    for i in range(4): a(f"v_rcp_f32 v{S+i}, v{S+i}")
    for b in range(5):
        for i in range(4): a(f"v_add_f32 v{Q+4*b+i}, v{Q+4*b+i}, v{R+4*b+i}")
        for i in range(4): a(f"v_mul_f32 v{Q+4*b+i}, v{Q+4*b+i}, v{S+i}")
        a(f"v_cvt_pk_bf16_f32 v{R+4*b}, v{Q+4*b}, v{Q+4*b+1}\nv_cvt_pk_bf16_f32 v{R+4*b+1}, v{Q+4*b+2}, v{Q+4*b+3}")
        if b < 4: a(f"ds_write_b64 v7, {vr(R+4*b,2)} offset:{(b&1)*16*144 + (b>>1)*6912}")
        else: a(f"ds_write_b64 v6, {vr(R+4*b,2)} offset:{32*144}")
    a(f"""
    v_mul_u32_u24 v7, 144, v1
    v_lshl_add_u32 v7, v2, 4, v7
    v_add_u32 v7, {K1_A}, v7
    v_lshl_add_u32 v8, v2, 2, s16
    v_mul_lo_u32 v8, v8, s17
    s_mul_i32 s18, s12, 1280
    s_mul_i32 s19, s13, 160
    s_add_u32 s18, s18, s19
    v_lshl_add_u32 v8, v1, 2, v8
    v_add_u32 v8, s18, v8
    v_bfrev_b32 v9, 1
    v_cndmask_b32 v9, v9, v8, vcc
    s_mov_b32 s18, {2*40960}
    s_mov_b32 s19, {3*40960}
    s_waitcnt lgkmcnt(0)
    s_barrier
    """)
    D = 20
    for mb in range(3):
        for p in range(2):
            for ks in range(2):
                a(f"ds_read_b128 {vr(D+16*mb+8*p+4*ks,4)}, v7 offset:{mb*16*144 + p*6912 + 64*ks}")
    O = 70
    for mb in range(3):
        d = D + 16*mb; dr, di = O + 8*mb, O + 8*mb + 4
        a(f"""s_waitcnt lgkmcnt({10-4*mb})
        v_mfma_f32_16x16x32_bf16 {vr(dr,4)}, {vr(CR,4)}, {vr(d,4)}, 0
        v_mfma_f32_16x16x32_bf16 {vr(di,4)}, {vr(CI,4)}, {vr(d,4)}, 0
        v_mfma_f32_16x16x32_bf16 {vr(dr,4)}, {vr(CR+4,4)}, {vr(d+4,4)}, {vr(dr,4)}
        v_mfma_f32_16x16x32_bf16 {vr(di,4)}, {vr(CI+4,4)}, {vr(d+4,4)}, {vr(di,4)}
        s_waitcnt lgkmcnt({8-4*mb})
        v_mfma_f32_16x16x32_bf16 {vr(dr,4)}, {vr(CN,4)}, {vr(d+8,4)}, {vr(dr,4)}
        v_mfma_f32_16x16x32_bf16 {vr(di,4)}, {vr(CR,4)}, {vr(d+8,4)}, {vr(di,4)}
        v_mfma_f32_16x16x32_bf16 {vr(dr,4)}, {vr(CN+4,4)}, {vr(d+12,4)}, {vr(dr,4)}
        v_mfma_f32_16x16x32_bf16 {vr(di,4)}, {vr(CR+4,4)}, {vr(d+12,4)}, {vr(di,4)}""")
        def outs(m):
            dr, di = O + 8*m, O + 8*m + 4
            for i in range(4):
                a(f"v_cvt_pk_bf16_f32 v{100+4*m+i}, v{dr+i}, v{di+i}")
                so = ["0", "s17", "s18", "s19"][i]
                a(f"buffer_store_dword v{100+4*m+i}, v{9 if m == 2 else 8}, s[8:11], {so} offen offset:{64*m}")
        if mb: outs(mb - 1)
    a("s_nop 7")
    outs(2)
    a("s_endpgm")
    a(f"""
k1_helper:
    s_mul_i32 s16, s15, 160
    s_add_u32 s16, s16, s14
    v_and_b32 v3, 3, v1
    v_mul_u32_u24 v3, 40, v3
    v_add_u32 v3, s16, v3
    v_and_b32 v4, 12, v1
    v_add_u32 v4, v3, v4
    v_add_u32 v5, 16, v4
    v_and_b32 v6, 4, v1
    v_add3_u32 v6, v3, v6, 32
    v_cvt_f32_u32 v4, v4
    v_cvt_f32_u32 v5, v5
    v_cvt_f32_u32 v6, v6
    v_lshrrev_b32 v7, 3, v1
    v_cvt_f32_u32 v7, v7
    v_mul_f32 v4, {fb(1/640)}, v4
    v_mul_f32 v5, {fb(1/640)}, v5
    v_mul_f32 v6, {fb(1/640)}, v6
    v_mul_f32 v7, {fb(0.25)}, v7
    s_sub_u32 s3, s3, 4
k1_hloop:
    s_lshl_b32 s16, s3, 5
    v_lshl_add_u32 v8, v2, 3, s16
    v_cvt_f32_u32 v8, v8
    s_mul_i32 s17, s3, 5120
    s_add_u32 s17, s17, {K1_B}
    v_lshl_add_u32 v9, v0, 4, s17
    """)
    for st in range(2):
        ef = 4 + st
        a(f"v_mul_f32 v10, v{ef}, v8\nv_fract_f32 v10, v10")
        for jp in range(4):
            a(f"""
            v_cos_f32 v12, v10
            v_sin_f32 v13, v10
            v_add_f32 v10, v10, v{ef}
            v_cos_f32 v14, v10
            v_sin_f32 v15, v10
            v_add_f32 v10, v10, v{ef}
            v_cvt_pk_bf16_f32 v{16+8*st+jp}, v12, v14
            v_cvt_pk_bf16_f32 v{20+8*st+jp}, -v13, -v15
            """)
        a(f"ds_write_b128 v9, {vr(16+8*st,4)} offset:{1024*st}\nds_write_b128 v9, {vr(20+8*st,4)} offset:{1024*(2+st)}")
    a("v_fma_f32 v10, v6, v8, v7\nv_fract_f32 v10, v10")
    for jp in range(4):
        a(f"""
        v_cos_f32 v12, v10
        v_add_f32 v10, v10, v6
        v_cos_f32 v14, v10
        v_add_f32 v10, v10, v6
        v_cvt_pk_bf16_f32 v{32+jp}, v12, v14
        """)
    a(f"""
    ds_write_b128 v9, v[32:35] offset:4096
    s_add_u32 s3, s3, 4
    s_cmp_lt_u32 s3, 5
    s_cbranch_scc1 k1_hloop
    s_waitcnt lgkmcnt(0)
    s_barrier
k1_end:
    s_endpgm
    """)

YP = 2576
K2_KEY = 8 * YP
K2_LDS = K2_KEY + 64
def wave_red(a, regs, op="v_add_f32"):
    for m in ("quad_perm:[1,0,3,2]", "quad_perm:[2,3,0,1]", "row_half_mirror", "row_mirror"):
        if len(regs) < 3: a(f"s_nop {2-len(regs)}" if len(regs) == 2 else "s_nop 1")
        for r in regs: a(f"{op}_dpp v{r}, v{r}, v{r} {m} {DPPF}")
    for m in ("row_bcast:15 row_mask:0xa", "row_bcast:31 row_mask:0xc"):
        if len(regs) < 3: a(f"s_nop {2-len(regs)}" if len(regs) == 2 else "s_nop 1")
        for r in regs: a(f"{op}_dpp v{r}, v{r}, v{r} {m} bank_mask:0xf")
def k2(a):
    a(f"""
    s_cmp_ge_u32 s2, 256
    s_cbranch_scc1 k2_end
    s_load_dwordx2 s[4:5], s[0:1], 0
    s_load_dwordx2 s[8:9], s[0:1], 96
    s_load_dwordx2 s[28:29], s[0:1], 48
    s_load_dwordx2 s[32:33], s[0:1], 80
    v_lshrrev_b32 v1, 6, v0
    v_and_b32 v0, 63, v0
    s_and_b32 s12, s2, 7
    s_lshr_b32 s13, s2, 6
    v_readfirstlane_b32 s3, v1
    s_lshl_b32 s13, s13, 3
    s_add_u32 s12, s12, s13
    s_bfe_u32 s13, s2, 0x30003
    s_lshr_b32 s14, s3, 2
    s_and_b32 s15, s3, 3
    v_and_b32 v1, 15, v0
    v_lshrrev_b32 v2, 4, v0
    s_sub_u32 s16, 64, s12
    s_cmp_eq_u32 s12, 0
    s_cselect_b32 s16, 32, s16
    s_cmp_eq_u32 s14, 0
    s_cselect_b32 s16, s12, s16
    s_mul_i32 s17, s16, 40960
    """)
    srd(a, 4, XB); srd(a, 8, WS_SIZE); srd(a, 28, 1280); srd(a, 32, XB)
    GD = 32
    a(f"""
    v_mul_u32_u24 v3, 1280, v2
    v_lshl_add_u32 v3, v1, 4, v3
    s_lshl_b32 s18, s15, 8
    s_add_u32 s18, s18, s17
    s_cmp_eq_u32 s3, 0
    s_cselect_b32 s19, 1, 0
    s_cmp_eq_u32 s3, 5
    s_cselect_b32 s19, 1, s19
    s_waitcnt lgkmcnt(0)
    """)
    for ks in range(8):
        a(f"buffer_load_dwordx4 {vr(GD+4*ks,4)}, v3, s[8:11], s18 offen" + ("\ns_addk_i32 s18, 5120" if ks < 7 else ""))
    a("s_cmp_eq_u32 s19, 0\ns_cbranch_scc1 k2_noload2\ns_add_u32 s18, s17, 1024")
    for ks in range(8):
        a(f"buffer_load_dwordx4 {vr(GD+32+4*ks,4)}, v3, s[8:11], s18 offen" + ("\ns_addk_i32 s18, 5120" if ks < 7 else ""))
    a(f"""
k2_noload2:
    v_lshrrev_b32 v6, 2, v1
    s_lshl_b32 s20, s14, 2
    s_cmp_eq_u32 s12, 0
    s_cbranch_scc1 k2_u0
    s_lshl_b32 s21, s13, 2
    v_add_u32 v4, s21, v6
    s_mul_i32 s21, s14, 31
    v_xor_b32 v4, s21, v4
    s_xor_b32 s21, s20, 4
    v_add_u32 v5, s21, v2
    s_branch k2_t2done
k2_u0:
    v_lshrrev_b32 v4, 1, v6
    s_lshl_b32 s21, s13, 1
    v_add_u32 v4, s21, v4
    s_sub_u32 s21, 32, s14
    v_sub_u32 v7, s21, v4
    v_and_b32 v6, 1, v6
    v_cmp_eq_u32 vcc, 1, v6
    v_xor_b32 v5, 1, v2
    s_or_b32 s21, s13, s14
    v_cndmask_b32 v4, v4, v7, vcc
    v_cmp_eq_u32 vcc, 32, v4
    s_cmp_eq_u32 s21, 0
    s_cselect_b32 s21, 2, 0
    v_cndmask_b32 v4, v4, 16, vcc
    v_cmp_gt_u32 vcc, s21, v2
    s_nop 1
    v_cndmask_b32 v5, v5, v2, vcc
    v_add_u32 v5, s20, v5
k2_t2done:
    s_lshl_b32 s21, s15, 2
    s_nop 0
    v_readlane_b32 s22, v4, s21
    v_cvt_f32_u32 v6, v4
    v_cvt_f32_u32 v7, v2
    s_lshl_b32 s22, s22, 6
    s_add_u32 s22, s22, s16
    s_mul_i32 s23, s22, 1280
    v_lshlrev_b32 v8, 4, v0
    v_lshlrev_b32 v9, 2, v0
    v_mul_f32 v6, {fb(1/32)}, v6
    buffer_load_dwordx4 v[100:103], v8, s[4:7], s23 offen
    buffer_load_dword v104, v9, s[4:7], s23 offen offset:1024
    buffer_load_dwordx4 v[108:111], v8, s[28:31], 0 offen
    buffer_load_dword v112, v9, s[28:31], 0 offen offset:1024
    v_mul_f32 v7, v6, v7
    v_mul_f32 v6, 4.0, v6
    v_and_b32 v10, 3, v1
    """)
    for j in range(4):
        a(f"v_cmp_eq_u32 vcc, {j}, v10\ns_nop 1\nv_cndmask_b32 v{12+j}, 0, -1, vcc")
    AC = 128
    for ks in range(8):
        a(f"""v_cos_f32 v10, v7
        v_sin_f32 v11, v7
        v_add_f32 v7, v7, v6
        v_cvt_pk_bf16_f32 v10, v10, v11""")
        for j in range(4): a(f"v_and_b32 v{AC+4*ks+j}, v{12+j}, v10")
    def addrs(cbexpr, vd, vm):
        a(f"""
        v_add_u32 v10, {cbexpr}, v1
        v_mul_u32_u24 v11, 205, v10
        v_lshrrev_b32 v11, 11, v11
        v_mul_u32_u24 v16, 10, v11
        v_sub_u32 v16, v10, v16
        v_lshrrev_b32 v17, 2, v11
        v_mul_u32_u24 v17, 160, v17
        v_and_b32 v11, 3, v11
        v_add3_u32 v11, v11, v17, 1
        v_lshl_add_u32 v11, v16, 2, v11
        v_lshlrev_b32 v11, 2, v11
        v_add_u32 v{vd}, v18, v11
        v_sub_u32 v{vm}, v19, v11
        """)
    a(f"""
    v_add_u32 v18, s20, v2
    v_mul_u32_u24 v18, {YP}, v18
    v_mul_u32_u24 v19, {YP}, v5
    v_add_u32 v19, {4*520}, v19
    s_lshl_b32 s21, s15, 4
    s_mul_i32 s24, s3, {YP}
    v_mov_b32 v26, s24
    v_mov_b32 v27, 0
    ds_write_b32 v26, v27
    """)
    addrs("s21", 20, 21)
    a("s_cmp_eq_u32 s19, 0\ns_cbranch_scc1 k2_one")
    addrs("64", 22, 23)
    a(f"v_cmp_eq_u32 vcc, 15, v1\nv_add_u32 v24, {4*(640-520)}, v19\ns_nop 0\nv_cndmask_b32 v24, v23, v24, vcc")
    def item(gd, acc, vd, vm, vm3, vmbase):
        for ks in range(8):
            a(f"s_waitcnt vmcnt({vmbase-ks})")
            a(f"v_mfma_f32_16x16x32_bf16 {vr(acc,4)}, {vr(AC+4*ks,4)}, {vr(gd+4*ks,4)}, {vr(acc,4) if ks else 0}")
        return [f"ds_write_b32 v{vd}, v{acc+i} offset:{160*i}" for i in range(4)] + \
               [f"ds_write_b32 v{vm3 if i == 3 else vm}, v{acc+i} offset:{160*(3-i)}" for i in range(4)]
    w1 = item(GD, 160, 20, 21, 21, 19)
    w2 = item(GD + 32, 164, 22, 23, 24, 11)
    for t in w1: a(t)
    for t in w2: a(t)
    a("s_branch k2_ydone\nk2_one:")
    w1 = item(GD, 160, 20, 21, 21, 11)
    a("s_nop 7")
    for t in w1: a(t)
    Y, H = 32, 48
    a(f"""
k2_ydone:
    v_lshl_add_u32 v10, v0, 5, s24
    v_lshl_add_u32 v11, v0, 3, s24
    s_mov_b32 s25, 0xffff0000
    s_mov_b32 s26, 0x3f803f80
    s_waitcnt vmcnt(0) lgkmcnt(0)
    s_barrier
    ds_read_b128 v[32:35], v10
    ds_read_b128 v[36:39], v10 offset:16
    ds_read_b64 v[40:41], v11 offset:2048
    v_mov_b32 v12, 0
    v_mov_b32 v13, 0
    """)
    for j in range(5):
        a(f"v_lshlrev_b32 v{H+2*j}, 16, v{100+j}\nv_and_b32 v{H+2*j+1}, s25, v{100+j}")
    a("s_waitcnt lgkmcnt(0)")
    for j in range(10): a(f"v_add_f32 v{Y+j}, v{Y+j}, v{H+j}")
    for j in range(5): a(f"v_cvt_pk_bf16_f32 v{60+j}, v{Y+2*j}, v{Y+2*j+1}")
    for j in range(5): a(f"v_dot2c_f32_bf16 v12, s26, v{60+j}\nv_dot2c_f32_bf16 v13, v{60+j}, v{60+j}")
    for j in range(5):
        a(f"v_lshlrev_b32 v{H+2*j}, 16, v{60+j}\nv_and_b32 v{H+2*j+1}, s25, v{60+j}")
    wave_red(a, [12, 13])
    a(f"""
    s_nop 0
    v_readlane_b32 s36, v12, 63
    v_readlane_b32 s37, v13, 63
    v_mov_b32 v14, {fb(1/640)}
    v_mul_f32 v12, s36, v14
    v_mul_f32 v13, s37, v14
    v_fma_f32 v13, -v12, v12, v13
    v_max_f32 v13, 0, v13
    v_cvt_pk_bf16_f32 v13, v12, v13
    v_lshlrev_b32 v12, 16, v13
    v_and_b32 v13, s25, v13
    v_add_f32 v13, {fb(1e-5)}, v13
    v_cvt_pk_bf16_f32 v13, v13, v13
    v_and_b32 v13, s25, v13
    v_sqrt_f32 v13, v13
    s_nop 0
    v_cvt_pk_bf16_f32 v13, v13, v13
    v_and_b32 v13, s25, v13
    v_rcp_f32 v13, v13
    s_nop 0
    v_mul_f32 v12, v12, v13
    v_mov_b32 v14, 0
    """)
    for j in range(10): a(f"v_fma_f32 v{Y+j}, v{H+j}, v13, -v12")
    for j in range(5): a(f"v_cvt_pk_bf16_f32 v{68+j}, v{Y+2*j}, v{Y+2*j+1}")
    for j in range(5): a(f"v_dot2c_f32_bf16 v14, v{68+j}, v{108+j}")
    for j in range(5):
        a(f"v_lshlrev_b32 v{Y+2*j}, 16, v{68+j}\nv_and_b32 v{Y+2*j+1}, s25, v{68+j}")
    steps = []
    b = A(); wave_red(b, [14]); red = [t for t in b.l if "dpp" in t]
    for j in range(10): steps.append(f"v_add_f32 v{Y+j}, v{Y+j}, v{H+j}")
    for j in range(5): steps.append(f"v_cvt_pk_bf16_f32 v{76+j}, v{Y+2*j}, v{Y+2*j+1}")
    for k in range(6):
        a(red[k]); a(steps[2*k]); a(steps[2*k+1])
    for t in steps[12:]: a(t)
    a(f"""
    v_readlane_b32 s36, v14, 63
    buffer_store_dwordx4 v[76:79], v8, s[32:35], s23 offen
    buffer_store_dword v80, v9, s[32:35], s23 offen offset:1024
    v_cvt_pk_bf16_f32 v14, s36, s36
    v_ashrrev_i32 v15, 31, v14
    v_or_b32 v15, 0x80000000, v15
    v_xor_b32 v14, v14, v15
    v_and_b32 v14, s25, v14
    s_sub_u32 s36, 2047, s22
    v_or_b32 v14, s36, v14
    s_lshl_b32 s37, s3, 2
    v_mov_b32 v15, s37
    ds_write_b32 v15, v14 offset:{K2_KEY}
    v_and_b32 v15, 28, v9
    s_waitcnt lgkmcnt(0)
    s_barrier
    ds_read_b32 v15, v15 offset:{K2_KEY}
    s_waitcnt lgkmcnt(0)
    v_cmp_gt_u32 vcc, v15, v14
    s_bcnt1_i32_b32 s36, vcc_lo
    s_lshr_b32 s36, s36, 2
    s_cmp_ge_u32 s36, 2
    s_cbranch_scc1 k2_end
    s_lshl_b32 s37, s2, 1
    s_add_u32 s36, s36, s37
    s_lshl_b32 s36, s36, 2
    s_add_u32 s36, s36, {WS_CAND}
    s_add_u32 s37, s23, {WS_HN}
    s_add_u32 s38, s23, {WS_H}
    v_mov_b32 v15, 0
    buffer_store_dwordx4 v[68:71], v8, s[8:11], s37 offen
    buffer_store_dword v72, v9, s[8:11], s37 offen offset:1024
    buffer_store_dwordx4 v[60:63], v8, s[8:11], s38 offen
    buffer_store_dword v64, v9, s[8:11], s38 offen offset:1024
    buffer_store_dword v14, v15, s[8:11], s36 offen
k2_end:
    s_endpgm
    """)

def top2(a):
    a("""
    v_max_u32 v16, v8, v9
    v_min_u32 v17, v8, v9
    """)
    for r in range(10, 16):
        a(f"v_med3_u32 v17, v16, v17, v{r}\nv_max_u32 v16, v16, v{r}")
    a("v_mov_b32 v18, v16")
    wave_red(a, [18], "v_max_u32")
    a("s_nop 0\nv_readlane_b32 s20, v18, 63\ns_nop 1\nv_cmp_eq_u32 vcc, s20, v16\ns_nop 1\nv_cndmask_b32 v18, v16, v17, vcc")
    wave_red(a, [18], "v_max_u32")
    a("""s_nop 0
    v_readlane_b32 s21, v18, 63
    s_and_b32 s22, s20, 0x7ff
    s_sub_u32 s22, 2047, s22
    s_and_b32 s23, s21, 0x7ff
    s_sub_u32 s23, 2047, s23""")
def ffn(a, nm, down):
    nwg, nks, pitch = (40, 6, 1280) if down else (96, 5, 3072)
    a(f"""
    s_cmp_ge_u32 s2, {nwg}
    s_cbranch_scc1 {nm}_end
    s_load_dwordx4 s[12:15], s[0:1], {72 if down else 56}
    s_load_dwordx2 s[8:9], s[0:1], 96
    v_lshrrev_b32 v1, 6, v0
    v_and_b32 v0, 63, v0
    v_lshrrev_b32 v2, 4, v0
    v_readfirstlane_b32 s3, v1
    v_and_b32 v1, 15, v0
    v_lshrrev_b32 v3, 1, v0
    v_mul_u32_u24 v3, {pitch}, v3
    v_and_b32 v4, 1, v0
    v_lshl_add_u32 v3, v4, 4, v3
    v_lshlrev_b32 v4, 5, v0
    s_and_b32 s16, s3, {7 if down else 3}
    s_mul_i32 s17, s16, {32*nks*pitch}
    s_lshl_b32 s18, s2, 5
    s_add_u32 s17, s17, s18
    s_mul_i32 s19, s3, {1024*nks}
    s_mov_b32 m0, s19
    """)
    srd(a, 4, 1966080); srd(a, 8, WS_SIZE)
    a("s_waitcnt lgkmcnt(0)")
    if down:
        a("s_mov_b32 s4, s12\ns_mov_b32 s5, s13\ns_mov_b32 s12, s14\ns_mov_b32 s13, s15"); srd(a, 12, XB)
    else:
        a("s_cmp_lt_u32 s3, 4\ns_cselect_b32 s4, s12, s14\ns_cselect_b32 s5, s13, s15")
    a(f"""
    s_mov_b32 s24, {WS_CAND}
    buffer_load_dwordx4 v[8:11], v4, s[8:11], s24 offen
    buffer_load_dwordx4 v[12:15], v4, s[8:11], s24 offen offset:16
    """)
    AF, BF = 24, 48
    a(f"s_mul_i32 s25, s16, {64*nks}\nv_lshl_add_u32 v5, v2, 4, s25")
    if down:
        a(f"v_lshrrev_b32 v6, 3, v1\nv_mul_u32_u24 v6, 3072, v6\nv_add_u32 v5, v5, v6\ns_mov_b32 s25, {WS_ACT}")
        for j in range(nks): a(f"buffer_load_dwordx4 {vr(AF+4*j,4)}, v5, s[8:11], s25 offen offset:{64*j}")
    for j in range(nks):
        a(f"buffer_load_dwordx4 v3, s[4:7], s17 offen lds" + (f"\ns_addk_i32 m0, 1024\ns_add_u32 s17, s17, {32*pitch}" if j < nks-1 else ""))
    a(f"""
    v_lshrrev_b32 v6, 2, v1
    v_lshl_add_u32 v6, v2, 3, v6
    v_lshlrev_b32 v6, 5, v6
    v_and_b32 v7, 3, v1
    v_lshl_add_u32 v6, v7, 3, v6
    v_add_u32 v6, s19, v6
    s_waitcnt vmcnt({2*nks if down else nks})
    """)
    top2(a)
    a("s_mul_i32 s26, s22, 1280\ns_mul_i32 s27, s23, 1280\nv_mov_b32 v16, s26\nv_mov_b32 v17, s27")
    if down:
        a(f"""
        v_cmp_gt_u32 vcc, 32, v0
        v_mov_b32 v18, s20
        v_mov_b32 v19, s21
        v_cndmask_b32 v16, v17, v16, vcc
        v_cndmask_b32 v18, v19, v18, vcc
        v_lshl_add_u32 v16, v1, 1, v16
        v_add_u32 v16, s18, v16
        s_mov_b32 s26, {WS_HN}
        s_mov_b32 s27, {WS_H}
        buffer_load_ushort v20, v16, s[8:11], s26 offen
        buffer_load_ushort v21, v16, s[8:11], s27 offen
        s_waitcnt vmcnt(2)
        """)
    else:
        a(f"""
        v_cmp_gt_u32 vcc, 8, v1
        s_mov_b32 s25, {WS_HN}
        s_nop 0
        v_cndmask_b32 v16, v17, v16, vcc
        v_add_u32 v5, v5, v16
        """)
        for j in range(nks): a(f"buffer_load_dwordx4 {vr(AF+4*j,4)}, v5, s[8:11], s25 offen offset:{64*j}")
        a(f"s_waitcnt vmcnt({nks})")
    for j in range(nks):
        a(f"ds_read_b64_tr_b16 {vr(BF+4*j,2)}, v6 offset:{1024*j}\nds_read_b64_tr_b16 {vr(BF+4*j+2,2)}, v6 offset:{1024*j+128}")
    PB = 49152
    a(f"s_lshl_b32 s25, s3, 8\nv_lshl_add_u32 v7, v0, 2, s25\nv_lshlrev_b32 v4, 2, v0\ns_waitcnt lgkmcnt(0)")
    for j in range(nks):
        if not down: a(f"s_waitcnt vmcnt({nks-1-j})")
        a(f"v_mfma_f32_16x16x32_bf16 v[72:75], {vr(AF+4*j,4)}, {vr(BF+4*j,4)}, {'v[72:75]' if j else 0}")
    a(f"""
    s_nop 7
    ds_write_b32 v7, v72 offset:{PB}
    s_waitcnt lgkmcnt(0)
    s_barrier
    s_cmp_lg_u32 s3, 0
    s_cbranch_scc1 {nm}_end
    """)
    for w in range(8): a(f"ds_read_b32 v{24+w}, v4 offset:{PB+256*w}")
    a("s_mov_b32 s25, 0xffff0000\nv_and_b32 v7, 16, v0\nv_cmp_eq_u32 vcc, 0, v7\ns_waitcnt lgkmcnt(0)")
    a("v_add_f32 v24, v24, v25\nv_add_f32 v26, v26, v27\nv_add_f32 v28, v28, v29\nv_add_f32 v30, v30, v31\nv_add_f32 v24, v24, v26\nv_add_f32 v28, v28, v30")
    if down:
        a(f"""
        v_ashrrev_i32 v19, 31, v18
        v_not_b32 v19, v19
        v_or_b32 v19, 0x80000000, v19
        v_xor_b32 v18, v18, v19
        v_and_b32 v18, s25, v18
        v_mul_f32 v18, {fb(-1.4426950408889634)}, v18
        v_exp_f32 v18, v18
        v_add_f32 v24, v24, v28
        v_add_f32 v18, 1.0, v18
        v_rcp_f32 v18, v18
        s_nop 0
        v_cvt_pk_bf16_f32 v24, v24, v18
        v_lshlrev_b32 v25, 16, v24
        v_and_b32 v24, s25, v24
        v_mul_f32 v24, v24, v25
        v_cvt_pk_bf16_f32 v24, v24, v24
        v_and_b32 v24, s25, v24
        s_waitcnt vmcnt(0)
        v_lshlrev_b32 v20, 16, v20
        v_lshlrev_b32 v21, 16, v21
        v_add_f32 v24, v24, v20
        v_cvt_pk_bf16_f32 v24, v24, v24
        v_and_b32 v24, s25, v24
        v_add_f32 v24, v24, v21
        v_cvt_pk_bf16_f32 v24, v24, v24
        s_and_saveexec_b64 s[28:29], vcc
        buffer_store_short v24, v16, s[12:15], 0 offen
        """)
    else:
        a(f"""
        v_cvt_pk_bf16_f32 v24, v24, v28
        v_lshlrev_b32 v25, 16, v24
        v_and_b32 v24, s25, v24
        v_mul_f32 v26, {fb(-1.4426950408889634)}, v25
        v_exp_f32 v26, v26
        v_lshrrev_b32 v16, 5, v0
        v_add_f32 v26, 1.0, v26
        v_rcp_f32 v26, v26
        v_mul_u32_u24 v16, 3072, v16
        v_mul_f32 v25, v25, v26
        v_cvt_pk_bf16_f32 v25, v25, v25
        v_and_b32 v25, s25, v25
        v_mul_f32 v24, v24, v25
        v_cvt_pk_bf16_f32 v24, v24, v24
        v_lshl_add_u32 v16, v1, 1, v16
        s_add_u32 s18, s18, {WS_ACT}
        s_and_saveexec_b64 s[28:29], vcc
        buffer_store_short v24, v16, s[8:11], s18 offen
        """)
    a(f"{nm}_end:\ns_endpgm")

def kernel(name, body, vgpr, sgpr=64):
    a = A(); body(a)
    code = f".text\n.globl {name}\n.p2align 8\n.type {name},@function\n{name}:\n" + a.txt()
    desc = f""".amdhsa_kernel {name}
  .amdhsa_next_free_vgpr {vgpr}
  .amdhsa_next_free_sgpr {sgpr}
  .amdhsa_accum_offset {vgpr}
  .amdhsa_group_segment_fixed_size 0
  .amdhsa_kernarg_size 104
  .amdhsa_user_sgpr_count 2
  .amdhsa_user_sgpr_kernarg_segment_ptr 1
  .amdhsa_system_sgpr_workgroup_id_x 1
.end_amdhsa_kernel
"""
    return code, desc
def main(out):
    ks = [("fnet1_kernel", k1, 240, 256, K1_LDS), ("fnet2_kernel", k2, 168, 256, K2_LDS),
          ("gate_kernel", lambda a: ffn(a, "k3", False), 80, 96, 49152+2048), ("down_kernel", lambda a: ffn(a, "k4", True), 80, 40, 49152+2048)]
    hdr = "; FNet (2-D DFT as 3 MFMA stages) + LN + top-2 routed SwiGLU; generated by my own script\n"
    for n, b, v, g, l in ks: hdr += f"; @launch kernel={n} grid=({g},1,1) block=(512,1,1) lds={l}\n"
    hdr += '.amdgcn_target "amdgcn-amd-amdhsa--gfx950"\n'
    code = ""; desc = '.section .rodata,"a"\n'
    for n, b, v, g, l in ks:
        c, d = kernel(n, b, v); code += c; desc += ".p2align 6\n" + d
    open(out, "w").write(hdr + code + desc)
if __name__ == "__main__":
    main(sys.argv[1] if len(sys.argv) > 1 else f"cdna_kernels/{NAME}.s")
```

```python
import gen, sys
def mk(out, extra, dupl=None):
    ks = [("fnet1_kernel", gen.k1, 240, 256, gen.K1_LDS), ("fnet2_kernel", gen.k2, 168, 256, gen.K2_LDS),
          ("gate_kernel", lambda a: gen.ffn(a, "k3", False), 80, 96, 49152+2048), ("down_kernel", lambda a: gen.ffn(a, "k4", True), 80, 40, 49152+2048)]
    for i in range(extra): ks.append((f"e{i}_kernel", lambda a: a("s_endpgm"), 8, 1, 0))
    hdr = "; variant\n"
    L = list(ks)
    if dupl is not None: L = L[:dupl+1] + [L[dupl]] + L[dupl+1:]
    for n, b, v, g, l in L: hdr += f"; @launch kernel={n} grid=({g},1,1) block=(512,1,1) lds={l}\n"
    hdr += '.amdgcn_target "amdgcn-amd-amdhsa--gfx950"\n'
    code = ""; desc = '.section .rodata,"a"\n'
    for n, b, v, g, l in ks:
        c, d = gen.kernel(n, b, v); code += c; desc += ".p2align 6\n" + d
    open(out, "w").write(hdr + code + desc)
mk("v_e0.s", 0); mk("v_e1.s", 1); mk("v_e4.s", 4); mk("v_d0.s", 0, 0); mk("v_d1.s", 0, 1); mk("v_d3.s", 0, 3)
```

```python
import struct, sys
NAME = "sequential_preLN__spectral_fnet__moe_arch_mod__prompt"
def fb(x): return "0x%08x" % struct.unpack("<I", struct.pack("<f", x))[0]
class A:
    def __init__(s): s.l = []
    def __call__(s, t):
        for x in t.strip("\n").split("\n"):
            x = x.strip()
            if x: s.l.append(x if x.endswith(":") else "    " + x)
    def txt(s): return "\n".join(s.l) + "\n"
def vr(b, n): return f"v[{b}:{b+n-1}]"
DPPF = "row_mask:0xf bank_mask:0xf"
WS_G, WS_HN, WS_H, WS_CAND, WS_ACT = 0, 0x300000, 0x600000, 0x900000, 0x901000
WS_SIZE = 0x1000000
XB = 2621440

def srd(a, d, nbytes):
    a(f"s_mov_b32 s{d+2}, {nbytes}\ns_mov_b32 s{d+3}, 0x00020000")

K1_B, K1_A = 81920, 81920 + 25600
K1_LDS = K1_A + 96 * 144
def k1(a):
    a(f"""
    s_cmp_ge_u32 s2, 256
    s_cbranch_scc1 k1_end
    s_load_dwordx2 s[4:5], s[0:1], 0
    s_load_dwordx2 s[8:9], s[0:1], 96
    v_lshrrev_b32 v1, 6, v0
    v_and_b32 v0, 63, v0
    s_and_b32 s12, s2, 7
    s_lshr_b32 s13, s2, 6
    v_readfirstlane_b32 s3, v1
    s_lshl_b32 s13, s13, 3
    s_add_u32 s12, s12, s13
    s_bfe_u32 s13, s2, 0x30003
    s_and_b32 s14, s13, 3
    s_add_u32 s14, s14, 1
    s_lshr_b32 s15, s13, 2
    v_and_b32 v1, 15, v0
    v_lshrrev_b32 v2, 4, v0
    s_cmp_ge_u32 s3, 4
    s_cbranch_scc1 k1_helper
    """)
    srd(a, 4, XB); srd(a, 8, WS_SIZE)
    a(f"""
    v_lshrrev_b32 v3, 2, v0
    s_lshl_b32 s16, s3, 4
    v_add_u32 v3, s16, v3
    s_mov_b32 s17, 40960
    v_mul_lo_u32 v3, v3, s17
    v_lshrrev_b32 v4, 5, v0
    v_mul_u32_u24 v4, 3, v4
    v_and_b32 v5, 3, v0
    v_xor_b32 v4, v4, v5
    v_lshl_add_u32 v3, v4, 4, v3
    s_mul_i32 s18, s12, 1280
    s_mul_i32 s19, s3, 20480
    s_mov_b32 m0, s19
    s_add_u32 s20, s18, 1280
    s_waitcnt lgkmcnt(0)
k1_dma:
    buffer_load_dwordx4 v3, s[4:7], s18 offen lds
    s_addk_i32 s18, 64
    s_addk_i32 m0, 1024
    s_cmp_lt_u32 s18, s20
    s_cbranch_scc1 k1_dma
    """)
    CR, CI, CN = 200, 208, 216
    a(f"""
    v_add_u32 v4, s16, v1
    v_cvt_f32_u32 v4, v4
    v_lshlrev_b32 v5, 8, v2
    v_add_u32 v5, s12, v5
    v_cvt_f32_u32 v5, v5
    s_mul_i32 s21, s14, 3
    v_cvt_f32_u32 v6, s21
    v_mul_f32 v5, v4, v5
    v_mul_f32 v6, {fb(0.25)}, v6
    v_mul_f32 v7, {fb(1/64)}, v4
    v_fmac_f32 v6, {fb(1/2048)}, v5
    v_fract_f32 v6, v6
    """)
    for ks in range(2):
        if ks: a("v_fmac_f32 v6, 0x41c00000, v7\nv_fract_f32 v6, v6")
        for jp in range(4):
            a(f"""
            v_cos_f32 v8, v6
            v_sin_f32 v9, v6
            v_add_f32 v6, v6, v7
            v_cos_f32 v10, v6
            v_sin_f32 v11, v6
            v_add_f32 v6, v6, v7
            v_cvt_pk_bf16_f32 v{CR+4*ks+jp}, v8, v10
            v_cvt_pk_bf16_f32 v{CN+4*ks+jp}, v9, v11
            v_cvt_pk_bf16_f32 v{CI+4*ks+jp}, -v9, -v11
            """)
    a(f"""
    s_and_b32 s21, s14, 1
    s_lshl_b32 s22, s21, 31
    s_or_b32 s22, s22, 0x3f800000
    s_and_b32 s23, s14, 2
    s_lshl_b32 s23, s23, 30
    s_or_b32 s23, s23, 0x3f800000
    s_cmp_eq_u32 s21, 1
    s_cselect_b32 s24, s23, 0
    s_cselect_b32 s23, 0, s23
    s_xor_b32 s25, s24, 0x80000000
    v_mov_b32 v12, s24
    v_mov_b32 v13, s25
    v_cmp_gt_u32 vcc, 8, v1
    v_lshrrev_b32 v4, 3, v1
    v_mul_u32_u24 v4, 3, v4
    v_cndmask_b32 v12, v12, v13, vcc
    v_xor_b32 v4, v4, v2
    v_lshlrev_b32 v4, 4, v4
    v_lshl_add_u32 v4, v1, 6, v4
    v_add_u32 v4, s19, v4
    v_lshlrev_b32 v5, 4, v0
    v_mov_b32 v14, 0
    v_mov_b32 v15, 0
    v_mov_b32 v16, 0
    v_mov_b32 v17, 0
    v_mov_b32 v18, 1.0
    s_mov_b32 s26, 0x3f803f80
    ;STAMP 1
    s_barrier
    ;STAMP 2
    """)
    B, X, P, Q, R = 20, 120, 132, 152, 172
    for f in range(25):
        a(f"ds_read_b128 {vr(B+4*f,4)}, v5 offset:{K1_B - 65536 + 1024*f}" if False else f"ds_read_b128 {vr(B+4*f,4)}, v19 offset:{1024*f}") if f else a(f"v_add_u32 v19, {K1_B}, v5\nds_read_b128 {vr(B,4)}, v19")
    a(f"s_waitcnt vmcnt(19)\nds_read_b128 {vr(X,4)}, v4")
    fill = {i: [] for i in range(20)}
    for j in range(20):
        fill[6 + j // 5].append(f"v_mul_f32 v{P+j}, s22, v{P+j}")
        fill[11 + j // 5].append(f"v_mul_f32 v{Q+j}, s22, v{Q+j}")
    rot = []
    for b in range(2):
        for i in range(4):
            re, im = P + 4*b + i, P + 8 + 4*b + i
            rot += [f"v_mul_f32 v{R+4*b+i}, s23, v{re}", f"v_mul_f32 v{R+8+4*b+i}, s23, v{im}",
                    f"v_fmac_f32 v{R+4*b+i}, s25, v{im}", f"v_fmac_f32 v{R+8+4*b+i}, s24, v{re}"]
    for i in range(4):
        rot += [f"v_mul_f32 v{R+16+i}, s23, v{P+16+i}"]
    for i in range(4):
        rot += [f"v_fmac_f32_dpp v{R+16+i}, v{P+16+i}, v12 row_ror:8 {DPPF}"]
    for j, t in enumerate(rot): fill[16 + min(j // 14, 2)].append(t)
    S = 224
    for i in range(20):
        q, ks = divmod(i, 5)
        x = X + 4 * (i % 3)
        if i < 19:
            a(f"s_waitcnt vmcnt({18-i})\nds_read_b128 {vr(X+4*((i+1)%3),4)}, v4 offset:{1024*(i+1)}\ns_waitcnt lgkmcnt(1)")
        else:
            a("s_waitcnt lgkmcnt(0)")
        dots = []
        for j in range(4):
            dots += [f"v_dot2c_f32_bf16 v{14+(j&1)}, s26, v{x+j}", f"v_dot2c_f32_bf16 v{16+(j&1)}, v{x+j}, v{x+j}"]
        acc = P if q % 2 == 0 else Q
        mf = []
        for b in range(5):
            c = "0" if (q < 2 and ks == 0) else vr(acc+4*b, 4)
            mf.append(f"v_mfma_f32_16x16x32_bf16 {vr(acc+4*b,4)}, {vr(x,4)}, {vr(B+20*ks+4*b,4)}, {c}")
        if i < 19:
            fl = dots + fill[i]
            per = -(-len(fl) // 5)
            for b in range(5):
                a(mf[b])
                for t in fl[b*per:(b+1)*per]: a(t)
        else:
            a(mf[0]); [a(t) for t in dots[:4]]
            a(mf[1]); [a(t) for t in dots[4:]]
            a(mf[2]); a("s_nop 1\nv_add_f32 v14, v14, v15\nv_add_f32 v16, v16, v17")
            a(mf[3])
            a(f"v_mfma_f32_16x16x4_f32 {vr(S,4)}, v14, v18, 0\nv_mfma_f32_16x16x4_f32 {vr(S+4,4)}, v16, v18, 0")
            a(mf[4])
    a(f"""
    ;STAMP 3
    s_lshl_b32 s27, s3, 5
    s_add_u32 s27, s27, {K1_A}
    v_lshl_add_u32 v6, v2, 3, s27
    v_mul_u32_u24 v7, 144, v1
    v_add_u32 v7, v6, v7
    v_and_b32 v8, 7, v1
    v_mul_u32_u24 v8, 144, v8
    v_lshrrev_b32 v9, 3, v1
    v_mul_u32_u24 v9, 6912, v9
    v_add3_u32 v6, v6, v8, v9
    s_nop 1
    """)
    T = 232
    for i in range(4): a(f"v_mul_f32 v{S+i}, {fb(1/640)}, v{S+i}")
    for i in range(4): a(f"v_mul_f32 v{S+4+i}, {fb(1/640)}, v{S+4+i}")
    for i in range(4): a(f"v_fma_f32 v{S+i}, -v{S+i}, v{S+i}, v{S+4+i}")
    for i in range(4): a(f"v_max_f32 v{S+i}, 0, v{S+i}")
    def rnd4():
        a(f"""v_cvt_pk_bf16_f32 v{T}, v{S}, v{S+1}
        v_cvt_pk_bf16_f32 v{T+1}, v{S+2}, v{S+3}
        v_lshlrev_b32 v{S}, 16, v{T}
        v_and_b32 v{S+1}, 0xffff0000, v{T}
        v_lshlrev_b32 v{S+2}, 16, v{T+1}
        v_and_b32 v{S+3}, 0xffff0000, v{T+1}""")
    rnd4()
    for i in range(4): a(f"v_add_f32 v{S+i}, {fb(1e-5)}, v{S+i}")
    rnd4()
    for i in range(4): a(f"v_sqrt_f32 v{S+i}, v{S+i}")
    a("s_nop 0")
    rnd4()
    for i in range(4): a(f"v_rcp_f32 v{S+i}, v{S+i}")
    for b in range(5):
        for i in range(4): a(f"v_add_f32 v{Q+4*b+i}, v{Q+4*b+i}, v{R+4*b+i}")
        for i in range(4): a(f"v_mul_f32 v{Q+4*b+i}, v{Q+4*b+i}, v{S+i}")
        a(f"v_cvt_pk_bf16_f32 v{R+4*b}, v{Q+4*b}, v{Q+4*b+1}\nv_cvt_pk_bf16_f32 v{R+4*b+1}, v{Q+4*b+2}, v{Q+4*b+3}")
        if b < 4: a(f"ds_write_b64 v7, {vr(R+4*b,2)} offset:{(b&1)*16*144 + (b>>1)*6912}")
        else: a(f"ds_write_b64 v6, {vr(R+4*b,2)} offset:{32*144}")
    a(f"""
    v_mul_u32_u24 v7, 144, v1
    v_lshl_add_u32 v7, v2, 4, v7
    v_add_u32 v7, {K1_A}, v7
    v_lshl_add_u32 v8, v2, 2, s16
    v_mul_lo_u32 v8, v8, s17
    s_mul_i32 s18, s12, 1280
    s_mul_i32 s19, s13, 160
    s_add_u32 s18, s18, s19
    v_lshl_add_u32 v8, v1, 2, v8
    v_add_u32 v8, s18, v8
    v_bfrev_b32 v9, 1
    v_cndmask_b32 v9, v9, v8, vcc
    s_mov_b32 s18, {2*40960}
    s_mov_b32 s19, {3*40960}
    s_waitcnt lgkmcnt(0)
    s_barrier
    ;STAMP 4
    """)
    D = 20
    for mb in range(3):
        for p in range(2):
            for ks in range(2):
                a(f"ds_read_b128 {vr(D+16*mb+8*p+4*ks,4)}, v7 offset:{mb*16*144 + p*6912 + 64*ks}")
    O = 70
    for mb in range(3):
        d = D + 16*mb; dr, di = O + 8*mb, O + 8*mb + 4
        a(f"""s_waitcnt lgkmcnt({10-4*mb})
        v_mfma_f32_16x16x32_bf16 {vr(dr,4)}, {vr(CR,4)}, {vr(d,4)}, 0
        v_mfma_f32_16x16x32_bf16 {vr(di,4)}, {vr(CI,4)}, {vr(d,4)}, 0
        v_mfma_f32_16x16x32_bf16 {vr(dr,4)}, {vr(CR+4,4)}, {vr(d+4,4)}, {vr(dr,4)}
        v_mfma_f32_16x16x32_bf16 {vr(di,4)}, {vr(CI+4,4)}, {vr(d+4,4)}, {vr(di,4)}
        s_waitcnt lgkmcnt({8-4*mb})
        v_mfma_f32_16x16x32_bf16 {vr(dr,4)}, {vr(CN,4)}, {vr(d+8,4)}, {vr(dr,4)}
        v_mfma_f32_16x16x32_bf16 {vr(di,4)}, {vr(CR,4)}, {vr(d+8,4)}, {vr(di,4)}
        v_mfma_f32_16x16x32_bf16 {vr(dr,4)}, {vr(CN+4,4)}, {vr(d+12,4)}, {vr(dr,4)}
        v_mfma_f32_16x16x32_bf16 {vr(di,4)}, {vr(CR+4,4)}, {vr(d+12,4)}, {vr(di,4)}""")
        def outs(m):
            dr, di = O + 8*m, O + 8*m + 4
            for i in range(4):
                a(f"v_cvt_pk_bf16_f32 v{100+4*m+i}, v{dr+i}, v{di+i}")
                so = ["0", "s17", "s18", "s19"][i]
                a(f"buffer_store_dword v{100+4*m+i}, v{9 if m == 2 else 8}, s[8:11], {so} offen offset:{64*m}")
        if mb: outs(mb - 1)
    a("s_nop 7")
    outs(2)
    a(";STAMP 5")
    a("s_endpgm")
    a(f"""
k1_helper:
    s_mul_i32 s16, s15, 160
    s_add_u32 s16, s16, s14
    v_and_b32 v3, 3, v1
    v_mul_u32_u24 v3, 40, v3
    v_add_u32 v3, s16, v3
    v_and_b32 v4, 12, v1
    v_add_u32 v4, v3, v4
    v_add_u32 v5, 16, v4
    v_and_b32 v6, 4, v1
    v_add3_u32 v6, v3, v6, 32
    v_cvt_f32_u32 v4, v4
    v_cvt_f32_u32 v5, v5
    v_cvt_f32_u32 v6, v6
    v_lshrrev_b32 v7, 3, v1
    v_cvt_f32_u32 v7, v7
    v_mul_f32 v4, {fb(1/640)}, v4
    v_mul_f32 v5, {fb(1/640)}, v5
    v_mul_f32 v6, {fb(1/640)}, v6
    v_mul_f32 v7, {fb(0.25)}, v7
    s_sub_u32 s3, s3, 4
k1_hloop:
    s_lshl_b32 s16, s3, 5
    v_lshl_add_u32 v8, v2, 3, s16
    v_cvt_f32_u32 v8, v8
    s_mul_i32 s17, s3, 5120
    s_add_u32 s17, s17, {K1_B}
    v_lshl_add_u32 v9, v0, 4, s17
    """)
    for st in range(2):
        ef = 4 + st
        a(f"v_mul_f32 v10, v{ef}, v8\nv_fract_f32 v10, v10")
        for jp in range(4):
            a(f"""
            v_cos_f32 v12, v10
            v_sin_f32 v13, v10
            v_add_f32 v10, v10, v{ef}
            v_cos_f32 v14, v10
            v_sin_f32 v15, v10
            v_add_f32 v10, v10, v{ef}
            v_cvt_pk_bf16_f32 v{16+8*st+jp}, v12, v14
            v_cvt_pk_bf16_f32 v{20+8*st+jp}, -v13, -v15
            """)
        a(f"ds_write_b128 v9, {vr(16+8*st,4)} offset:{1024*st}\nds_write_b128 v9, {vr(20+8*st,4)} offset:{1024*(2+st)}")
    a("v_fma_f32 v10, v6, v8, v7\nv_fract_f32 v10, v10")
    for jp in range(4):
        a(f"""
        v_cos_f32 v12, v10
        v_add_f32 v10, v10, v6
        v_cos_f32 v14, v10
        v_add_f32 v10, v10, v6
        v_cvt_pk_bf16_f32 v{32+jp}, v12, v14
        """)
    a(f"""
    ds_write_b128 v9, v[32:35] offset:4096
    s_add_u32 s3, s3, 4
    s_cmp_lt_u32 s3, 5
    s_cbranch_scc1 k1_hloop
    s_waitcnt lgkmcnt(0)
    s_barrier
k1_end:
    s_endpgm
    """)

YP = 2576
K2_KEY = 8 * YP
K2_LDS = K2_KEY + 64
def wave_red(a, regs, op="v_add_f32"):
    for m in ("quad_perm:[1,0,3,2]", "quad_perm:[2,3,0,1]", "row_half_mirror", "row_mirror"):
        if len(regs) < 3: a(f"s_nop {2-len(regs)}" if len(regs) == 2 else "s_nop 1")
        for r in regs: a(f"{op}_dpp v{r}, v{r}, v{r} {m} {DPPF}")
    for m in ("row_bcast:15 row_mask:0xa", "row_bcast:31 row_mask:0xc"):
        if len(regs) < 3: a(f"s_nop {2-len(regs)}" if len(regs) == 2 else "s_nop 1")
        for r in regs: a(f"{op}_dpp v{r}, v{r}, v{r} {m} bank_mask:0xf")
def k2(a):
    a(f"""
    s_cmp_ge_u32 s2, 256
    s_cbranch_scc1 k2_end
    s_load_dwordx2 s[4:5], s[0:1], 0
    s_load_dwordx2 s[8:9], s[0:1], 96
    s_load_dwordx2 s[28:29], s[0:1], 48
    s_load_dwordx2 s[32:33], s[0:1], 80
    v_lshrrev_b32 v1, 6, v0
    v_and_b32 v0, 63, v0
    s_and_b32 s12, s2, 7
    s_lshr_b32 s13, s2, 6
    v_readfirstlane_b32 s3, v1
    s_lshl_b32 s13, s13, 3
    s_add_u32 s12, s12, s13
    s_bfe_u32 s13, s2, 0x30003
    s_lshr_b32 s14, s3, 2
    s_and_b32 s15, s3, 3
    v_and_b32 v1, 15, v0
    v_lshrrev_b32 v2, 4, v0
    s_sub_u32 s16, 64, s12
    s_cmp_eq_u32 s12, 0
    s_cselect_b32 s16, 32, s16
    s_cmp_eq_u32 s14, 0
    s_cselect_b32 s16, s12, s16
    s_mul_i32 s17, s16, 40960
    """)
    srd(a, 4, XB); srd(a, 8, WS_SIZE); srd(a, 28, 1280); srd(a, 32, XB)
    GD = 32
    a(f"""
    v_mul_u32_u24 v3, 1280, v2
    v_lshl_add_u32 v3, v1, 4, v3
    s_lshl_b32 s18, s15, 8
    s_add_u32 s18, s18, s17
    s_cmp_eq_u32 s3, 0
    s_cselect_b32 s19, 1, 0
    s_cmp_eq_u32 s3, 5
    s_cselect_b32 s19, 1, s19
    s_waitcnt lgkmcnt(0)
    """)
    for ks in range(8):
        a(f"buffer_load_dwordx4 {vr(GD+4*ks,4)}, v3, s[8:11], s18 offen" + ("\ns_addk_i32 s18, 5120" if ks < 7 else ""))
    a("s_cmp_eq_u32 s19, 0\ns_cbranch_scc1 k2_noload2\ns_add_u32 s18, s17, 1024")
    for ks in range(8):
        a(f"buffer_load_dwordx4 {vr(GD+32+4*ks,4)}, v3, s[8:11], s18 offen" + ("\ns_addk_i32 s18, 5120" if ks < 7 else ""))
    a(f"""
k2_noload2:
    v_lshrrev_b32 v6, 2, v1
    s_lshl_b32 s20, s14, 2
    s_cmp_eq_u32 s12, 0
    s_cbranch_scc1 k2_u0
    s_lshl_b32 s21, s13, 2
    v_add_u32 v4, s21, v6
    s_mul_i32 s21, s14, 31
    v_xor_b32 v4, s21, v4
    s_xor_b32 s21, s20, 4
    v_add_u32 v5, s21, v2
    s_branch k2_t2done
k2_u0:
    v_lshrrev_b32 v4, 1, v6
    s_lshl_b32 s21, s13, 1
    v_add_u32 v4, s21, v4
    s_sub_u32 s21, 32, s14
    v_sub_u32 v7, s21, v4
    v_and_b32 v6, 1, v6
    v_cmp_eq_u32 vcc, 1, v6
    v_xor_b32 v5, 1, v2
    s_or_b32 s21, s13, s14
    v_cndmask_b32 v4, v4, v7, vcc
    v_cmp_eq_u32 vcc, 32, v4
    s_cmp_eq_u32 s21, 0
    s_cselect_b32 s21, 2, 0
    v_cndmask_b32 v4, v4, 16, vcc
    v_cmp_gt_u32 vcc, s21, v2
    s_nop 1
    v_cndmask_b32 v5, v5, v2, vcc
    v_add_u32 v5, s20, v5
k2_t2done:
    s_lshl_b32 s21, s15, 2
    s_nop 0
    v_readlane_b32 s22, v4, s21
    v_cvt_f32_u32 v6, v4
    v_cvt_f32_u32 v7, v2
    s_lshl_b32 s22, s22, 6
    s_add_u32 s22, s22, s16
    s_mul_i32 s23, s22, 1280
    v_lshlrev_b32 v8, 4, v0
    v_lshlrev_b32 v9, 2, v0
    v_mul_f32 v6, {fb(1/32)}, v6
    buffer_load_dwordx4 v[100:103], v8, s[4:7], s23 offen
    buffer_load_dword v104, v9, s[4:7], s23 offen offset:1024
    buffer_load_dwordx4 v[108:111], v8, s[28:31], 0 offen
    buffer_load_dword v112, v9, s[28:31], 0 offen offset:1024
    v_mul_f32 v7, v6, v7
    v_mul_f32 v6, 4.0, v6
    v_and_b32 v10, 3, v1
    """)
    for j in range(4):
        a(f"v_cmp_eq_u32 vcc, {j}, v10\ns_nop 1\nv_cndmask_b32 v{12+j}, 0, -1, vcc")
    AC = 128
    for ks in range(8):
        a(f"""v_cos_f32 v10, v7
        v_sin_f32 v11, v7
        v_add_f32 v7, v7, v6
        v_cvt_pk_bf16_f32 v10, v10, v11""")
        for j in range(4): a(f"v_and_b32 v{AC+4*ks+j}, v{12+j}, v10")
    def addrs(cbexpr, vd, vm):
        a(f"""
        v_add_u32 v10, {cbexpr}, v1
        v_mul_u32_u24 v11, 205, v10
        v_lshrrev_b32 v11, 11, v11
        v_mul_u32_u24 v16, 10, v11
        v_sub_u32 v16, v10, v16
        v_lshrrev_b32 v17, 2, v11
        v_mul_u32_u24 v17, 160, v17
        v_and_b32 v11, 3, v11
        v_add3_u32 v11, v11, v17, 1
        v_lshl_add_u32 v11, v16, 2, v11
        v_lshlrev_b32 v11, 2, v11
        v_add_u32 v{vd}, v18, v11
        v_sub_u32 v{vm}, v19, v11
        """)
    a(f"""
    v_add_u32 v18, s20, v2
    v_mul_u32_u24 v18, {YP}, v18
    v_mul_u32_u24 v19, {YP}, v5
    v_add_u32 v19, {4*520}, v19
    s_lshl_b32 s21, s15, 4
    s_mul_i32 s24, s3, {YP}
    v_mov_b32 v26, s24
    v_mov_b32 v27, 0
    ds_write_b32 v26, v27
    """)
    addrs("s21", 20, 21)
    a("s_cmp_eq_u32 s19, 0\ns_cbranch_scc1 k2_one")
    addrs("64", 22, 23)
    a(f"v_cmp_eq_u32 vcc, 15, v1\nv_add_u32 v24, {4*(640-520)}, v19\ns_nop 0\nv_cndmask_b32 v24, v23, v24, vcc")
    def item(gd, acc, vd, vm, vm3, vmbase):
        for ks in range(8):
            a(f"s_waitcnt vmcnt({vmbase-ks})")
            a(f"v_mfma_f32_16x16x32_bf16 {vr(acc,4)}, {vr(AC+4*ks,4)}, {vr(gd+4*ks,4)}, {vr(acc,4) if ks else 0}")
        return [f"ds_write_b32 v{vd}, v{acc+i} offset:{160*i}" for i in range(4)] + \
               [f"ds_write_b32 v{vm3 if i == 3 else vm}, v{acc+i} offset:{160*(3-i)}" for i in range(4)]
    w1 = item(GD, 160, 20, 21, 21, 19)
    w2 = item(GD + 32, 164, 22, 23, 24, 11)
    for t in w1: a(t)
    for t in w2: a(t)
    a("s_branch k2_ydone\nk2_one:")
    w1 = item(GD, 160, 20, 21, 21, 11)
    a("s_nop 7")
    for t in w1: a(t)
    Y, H = 32, 48
    a(f"""
k2_ydone:
    v_lshl_add_u32 v10, v0, 5, s24
    v_lshl_add_u32 v11, v0, 3, s24
    s_mov_b32 s25, 0xffff0000
    s_mov_b32 s26, 0x3f803f80
    s_waitcnt vmcnt(0) lgkmcnt(0)
    ;STAMP 1
    s_barrier
    ;STAMP 2
    ds_read_b128 v[32:35], v10
    ds_read_b128 v[36:39], v10 offset:16
    ds_read_b64 v[40:41], v11 offset:2048
    v_mov_b32 v12, 0
    v_mov_b32 v13, 0
    """)
    for j in range(5):
        a(f"v_lshlrev_b32 v{H+2*j}, 16, v{100+j}\nv_and_b32 v{H+2*j+1}, s25, v{100+j}")
    a("s_waitcnt lgkmcnt(0)")
    for j in range(10): a(f"v_add_f32 v{Y+j}, v{Y+j}, v{H+j}")
    for j in range(5): a(f"v_cvt_pk_bf16_f32 v{60+j}, v{Y+2*j}, v{Y+2*j+1}")
    for j in range(5): a(f"v_dot2c_f32_bf16 v12, s26, v{60+j}\nv_dot2c_f32_bf16 v13, v{60+j}, v{60+j}")
    for j in range(5):
        a(f"v_lshlrev_b32 v{H+2*j}, 16, v{60+j}\nv_and_b32 v{H+2*j+1}, s25, v{60+j}")
    wave_red(a, [12, 13])
    a(f"""
    s_nop 0
    v_readlane_b32 s36, v12, 63
    v_readlane_b32 s37, v13, 63
    v_mov_b32 v14, {fb(1/640)}
    v_mul_f32 v12, s36, v14
    v_mul_f32 v13, s37, v14
    v_fma_f32 v13, -v12, v12, v13
    v_max_f32 v13, 0, v13
    v_cvt_pk_bf16_f32 v13, v12, v13
    v_lshlrev_b32 v12, 16, v13
    v_and_b32 v13, s25, v13
    v_add_f32 v13, {fb(1e-5)}, v13
    v_cvt_pk_bf16_f32 v13, v13, v13
    v_and_b32 v13, s25, v13
    v_sqrt_f32 v13, v13
    s_nop 0
    v_cvt_pk_bf16_f32 v13, v13, v13
    v_and_b32 v13, s25, v13
    v_rcp_f32 v13, v13
    s_nop 0
    v_mul_f32 v12, v12, v13
    v_mov_b32 v14, 0
    """)
    for j in range(10): a(f"v_fma_f32 v{Y+j}, v{H+j}, v13, -v12")
    for j in range(5): a(f"v_cvt_pk_bf16_f32 v{68+j}, v{Y+2*j}, v{Y+2*j+1}")
    for j in range(5): a(f"v_dot2c_f32_bf16 v14, v{68+j}, v{108+j}")
    for j in range(5):
        a(f"v_lshlrev_b32 v{Y+2*j}, 16, v{68+j}\nv_and_b32 v{Y+2*j+1}, s25, v{68+j}")
    steps = []
    b = A(); wave_red(b, [14]); red = [t for t in b.l if "dpp" in t]
    for j in range(10): steps.append(f"v_add_f32 v{Y+j}, v{Y+j}, v{H+j}")
    for j in range(5): steps.append(f"v_cvt_pk_bf16_f32 v{76+j}, v{Y+2*j}, v{Y+2*j+1}")
    for k in range(6):
        a(red[k]); a(steps[2*k]); a(steps[2*k+1])
    for t in steps[12:]: a(t)
    a(f"""
    v_readlane_b32 s36, v14, 63
    buffer_store_dwordx4 v[76:79], v8, s[32:35], s23 offen
    buffer_store_dword v80, v9, s[32:35], s23 offen offset:1024
    v_cvt_pk_bf16_f32 v14, s36, s36
    v_ashrrev_i32 v15, 31, v14
    v_or_b32 v15, 0x80000000, v15
    v_xor_b32 v14, v14, v15
    v_and_b32 v14, s25, v14
    s_sub_u32 s36, 2047, s22
    v_or_b32 v14, s36, v14
    s_lshl_b32 s37, s3, 2
    v_mov_b32 v15, s37
    ds_write_b32 v15, v14 offset:{K2_KEY}
    v_and_b32 v15, 28, v9
    s_waitcnt lgkmcnt(0)
    s_barrier
    ds_read_b32 v15, v15 offset:{K2_KEY}
    s_waitcnt lgkmcnt(0)
    v_cmp_gt_u32 vcc, v15, v14
    s_bcnt1_i32_b32 s36, vcc_lo
    s_lshr_b32 s36, s36, 2
    s_cmp_ge_u32 s36, 2
    s_cbranch_scc1 k2_end
    s_lshl_b32 s37, s2, 1
    s_add_u32 s36, s36, s37
    s_lshl_b32 s36, s36, 2
    s_add_u32 s36, s36, {WS_CAND}
    s_add_u32 s37, s23, {WS_HN}
    s_add_u32 s38, s23, {WS_H}
    v_mov_b32 v15, 0
    buffer_store_dwordx4 v[68:71], v8, s[8:11], s37 offen
    buffer_store_dword v72, v9, s[8:11], s37 offen offset:1024
    buffer_store_dwordx4 v[60:63], v8, s[8:11], s38 offen
    buffer_store_dword v64, v9, s[8:11], s38 offen offset:1024
    buffer_store_dword v14, v15, s[8:11], s36 offen
k2_end:
    s_endpgm
    """)

def top2(a):
    a("""
    v_max_u32 v16, v8, v9
    v_min_u32 v17, v8, v9
    """)
    for r in range(10, 16):
        a(f"v_med3_u32 v17, v16, v17, v{r}\nv_max_u32 v16, v16, v{r}")
    a("v_mov_b32 v18, v16")
    wave_red(a, [18], "v_max_u32")
    a("s_nop 0\nv_readlane_b32 s20, v18, 63\ns_nop 1\nv_cmp_eq_u32 vcc, s20, v16\ns_nop 1\nv_cndmask_b32 v18, v16, v17, vcc")
    wave_red(a, [18], "v_max_u32")
    a("""s_nop 0
    v_readlane_b32 s21, v18, 63
    s_and_b32 s22, s20, 0x7ff
    s_sub_u32 s22, 2047, s22
    s_and_b32 s23, s21, 0x7ff
    s_sub_u32 s23, 2047, s23""")
def ffn(a, nm, down):
    nwg, nks, pitch = (40, 6, 1280) if down else (96, 5, 3072)
    a(f"""
    s_cmp_ge_u32 s2, {nwg}
    s_cbranch_scc1 {nm}_end
    s_load_dwordx4 s[12:15], s[0:1], {72 if down else 56}
    s_load_dwordx2 s[8:9], s[0:1], 96
    v_lshrrev_b32 v1, 6, v0
    v_and_b32 v0, 63, v0
    v_lshrrev_b32 v2, 4, v0
    v_readfirstlane_b32 s3, v1
    v_and_b32 v1, 15, v0
    v_lshrrev_b32 v3, 1, v0
    v_mul_u32_u24 v3, {pitch}, v3
    v_and_b32 v4, 1, v0
    v_lshl_add_u32 v3, v4, 4, v3
    v_lshlrev_b32 v4, 5, v0
    s_and_b32 s16, s3, {7 if down else 3}
    s_mul_i32 s17, s16, {32*nks*pitch}
    s_lshl_b32 s18, s2, 5
    s_add_u32 s17, s17, s18
    s_mul_i32 s19, s3, {1024*nks}
    s_mov_b32 m0, s19
    """)
    srd(a, 4, 1966080); srd(a, 8, WS_SIZE)
    a("s_waitcnt lgkmcnt(0)")
    if down:
        a("s_mov_b32 s4, s12\ns_mov_b32 s5, s13\ns_mov_b32 s12, s14\ns_mov_b32 s13, s15"); srd(a, 12, XB)
    else:
        a("s_cmp_lt_u32 s3, 4\ns_cselect_b32 s4, s12, s14\ns_cselect_b32 s5, s13, s15")
    a(f"""
    s_mov_b32 s24, {WS_CAND}
    buffer_load_dwordx4 v[8:11], v4, s[8:11], s24 offen
    buffer_load_dwordx4 v[12:15], v4, s[8:11], s24 offen offset:16
    """)
    AF, BF = 24, 48
    a(f"s_mul_i32 s25, s16, {64*nks}\nv_lshl_add_u32 v5, v2, 4, s25")
    if down:
        a(f"v_lshrrev_b32 v6, 3, v1\nv_mul_u32_u24 v6, 3072, v6\nv_add_u32 v5, v5, v6\ns_mov_b32 s25, {WS_ACT}")
        for j in range(nks): a(f"buffer_load_dwordx4 {vr(AF+4*j,4)}, v5, s[8:11], s25 offen offset:{64*j}")
    for j in range(nks):
        a(f"buffer_load_dwordx4 v3, s[4:7], s17 offen lds" + (f"\ns_addk_i32 m0, 1024\ns_add_u32 s17, s17, {32*pitch}" if j < nks-1 else ""))
    a(f"""
    v_lshrrev_b32 v6, 2, v1
    v_lshl_add_u32 v6, v2, 3, v6
    v_lshlrev_b32 v6, 5, v6
    v_and_b32 v7, 3, v1
    v_lshl_add_u32 v6, v7, 3, v6
    v_add_u32 v6, s19, v6
    s_waitcnt vmcnt({2*nks if down else nks})
    """)
    a(";STAMP 1")
    top2(a)
    a(";STAMP 2")
    a("s_mul_i32 s26, s22, 1280\ns_mul_i32 s27, s23, 1280\nv_mov_b32 v16, s26\nv_mov_b32 v17, s27")
    if down:
        a(f"""
        v_cmp_gt_u32 vcc, 32, v0
        v_mov_b32 v18, s20
        v_mov_b32 v19, s21
        v_cndmask_b32 v16, v17, v16, vcc
        v_cndmask_b32 v18, v19, v18, vcc
        v_lshl_add_u32 v16, v1, 1, v16
        v_add_u32 v16, s18, v16
        s_mov_b32 s26, {WS_HN}
        s_mov_b32 s27, {WS_H}
        buffer_load_ushort v20, v16, s[8:11], s26 offen
        buffer_load_ushort v21, v16, s[8:11], s27 offen
        s_waitcnt vmcnt(2)
        """)
    else:
        a(f"""
        v_cmp_gt_u32 vcc, 8, v1
        s_mov_b32 s25, {WS_HN}
        s_nop 0
        v_cndmask_b32 v16, v17, v16, vcc
        v_add_u32 v5, v5, v16
        """)
        for j in range(nks): a(f"buffer_load_dwordx4 {vr(AF+4*j,4)}, v5, s[8:11], s25 offen offset:{64*j}")
        a(f"s_waitcnt vmcnt({nks})")
    for j in range(nks):
        a(f"ds_read_b64_tr_b16 {vr(BF+4*j,2)}, v6 offset:{1024*j}\nds_read_b64_tr_b16 {vr(BF+4*j+2,2)}, v6 offset:{1024*j+128}")
    PB = 49152
    a(f"s_lshl_b32 s25, s3, 8\nv_lshl_add_u32 v7, v0, 2, s25\nv_lshlrev_b32 v4, 2, v0\ns_waitcnt lgkmcnt(0)")
    for j in range(nks):
        if not down: a(f"s_waitcnt vmcnt({nks-1-j})")
        a(f"v_mfma_f32_16x16x32_bf16 v[72:75], {vr(AF+4*j,4)}, {vr(BF+4*j,4)}, {'v[72:75]' if j else 0}")
    a(f"""
    s_nop 7
    ds_write_b32 v7, v72 offset:{PB}
    s_waitcnt lgkmcnt(0)
    s_barrier
    s_cmp_lg_u32 s3, 0
    s_cbranch_scc1 {nm}_end
    """)
    for w in range(8): a(f"ds_read_b32 v{24+w}, v4 offset:{PB+256*w}")
    a("s_mov_b32 s25, 0xffff0000\nv_and_b32 v7, 16, v0\nv_cmp_eq_u32 vcc, 0, v7\ns_waitcnt lgkmcnt(0)")
    a("v_add_f32 v24, v24, v25\nv_add_f32 v26, v26, v27\nv_add_f32 v28, v28, v29\nv_add_f32 v30, v30, v31\nv_add_f32 v24, v24, v26\nv_add_f32 v28, v28, v30")
    if down:
        a(f"""
        v_ashrrev_i32 v19, 31, v18
        v_not_b32 v19, v19
        v_or_b32 v19, 0x80000000, v19
        v_xor_b32 v18, v18, v19
        v_and_b32 v18, s25, v18
        v_mul_f32 v18, {fb(-1.4426950408889634)}, v18
        v_exp_f32 v18, v18
        v_add_f32 v24, v24, v28
        v_add_f32 v18, 1.0, v18
        v_rcp_f32 v18, v18
        s_nop 0
        v_cvt_pk_bf16_f32 v24, v24, v18
        v_lshlrev_b32 v25, 16, v24
        v_and_b32 v24, s25, v24
        v_mul_f32 v24, v24, v25
        v_cvt_pk_bf16_f32 v24, v24, v24
        v_and_b32 v24, s25, v24
        s_waitcnt vmcnt(0)
        v_lshlrev_b32 v20, 16, v20
        v_lshlrev_b32 v21, 16, v21
        v_add_f32 v24, v24, v20
        v_cvt_pk_bf16_f32 v24, v24, v24
        v_and_b32 v24, s25, v24
        v_add_f32 v24, v24, v21
        v_cvt_pk_bf16_f32 v24, v24, v24
        s_and_saveexec_b64 s[28:29], vcc
        buffer_store_short v24, v16, s[12:15], 0 offen
        """)
    else:
        a(f"""
        v_cvt_pk_bf16_f32 v24, v24, v28
        v_lshlrev_b32 v25, 16, v24
        v_and_b32 v24, s25, v24
        v_mul_f32 v26, {fb(-1.4426950408889634)}, v25
        v_exp_f32 v26, v26
        v_lshrrev_b32 v16, 5, v0
        v_add_f32 v26, 1.0, v26
        v_rcp_f32 v26, v26
        v_mul_u32_u24 v16, 3072, v16
        v_mul_f32 v25, v25, v26
        v_cvt_pk_bf16_f32 v25, v25, v25
        v_and_b32 v25, s25, v25
        v_mul_f32 v24, v24, v25
        v_cvt_pk_bf16_f32 v24, v24, v24
        v_lshl_add_u32 v16, v1, 1, v16
        s_add_u32 s18, s18, {WS_ACT}
        s_and_saveexec_b64 s[28:29], vcc
        buffer_store_short v24, v16, s[8:11], s18 offen
        """)
    a(f"{nm}_end:\ns_endpgm")

def kernel(name, body, vgpr, sgpr=64):
    a = A(); body(a)
    code = f".text\n.globl {name}\n.p2align 8\n.type {name},@function\n{name}:\n" + a.txt()
    desc = f""".amdhsa_kernel {name}
  .amdhsa_next_free_vgpr {vgpr}
  .amdhsa_next_free_sgpr {sgpr}
  .amdhsa_accum_offset {vgpr}
  .amdhsa_group_segment_fixed_size 0
  .amdhsa_kernarg_size 104
  .amdhsa_user_sgpr_count 2
  .amdhsa_user_sgpr_kernarg_segment_ptr 1
  .amdhsa_system_sgpr_workgroup_id_x 1
.end_amdhsa_kernel
"""
    return code, desc
def main(out):
    ks = [("fnet1_kernel", k1, 240, 256, K1_LDS), ("fnet2_kernel", k2, 168, 256, K2_LDS),
          ("gate_kernel", lambda a: ffn(a, "k3", False), 80, 96, 49152+2048), ("down_kernel", lambda a: ffn(a, "k4", True), 80, 40, 49152+2048)]
    hdr = "; FNet (2-D DFT as 3 MFMA stages) + LN + top-2 routed SwiGLU; generated by my own script\n"
    for n, b, v, g, l in ks: hdr += f"; @launch kernel={n} grid=({g},1,1) block=(512,1,1) lds={l}\n"
    hdr += '.amdgcn_target "amdgcn-amd-amdhsa--gfx950"\n'
    code = ""; desc = '.section .rodata,"a"\n'
    for n, b, v, g, l in ks:
        c, d = kernel(n, b, v); code += c; desc += ".p2align 6\n" + d
    open(out, "w").write(hdr + code + desc)
if __name__ == "__main__":
    main(sys.argv[1] if len(sys.argv) > 1 else f"cdna_kernels/{NAME}.s")
```

```python
from gen import A, fb, vr, DPPF, XB, wave_red
WS_G, WS_SLOT, WS_KEY, WS_ACT = 0, 0x300000, 0x280000, 0x280800
SLOT = 3072
L_W = 121344
YP = 2576
L_KEY, L_TOP, L_PB, L_W5 = 24576, 24576 + 64, 28672, 32768
SPIN = 1 << 15
SC = "sc0 sc1"
def spin(a, lab, cnt="s50"):
    a(f"s_cbranch_vccz {lab}_ok\ns_add_u32 {cnt}, {cnt}, 1\ns_cmp_lt_u32 {cnt}, {SPIN}\ns_cbranch_scc1 {lab}\n{lab}_ok:")
def k2(a):
    a(f"""
k2_pre:
    s_lshr_b32 s14, s3, 2
    s_and_b32 s15, s3, 3
    s_sub_u32 s16, 64, s12
    s_cmp_eq_u32 s12, 0
    s_cselect_b32 s16, 32, s16
    s_cmp_eq_u32 s14, 0
    s_cselect_b32 s16, s12, s16
    s_mul_i32 s17, s16, 40960
    s_mov_b32 s50, 0
    v_mul_u32_u24 v3, 1280, v2
    v_lshl_add_u32 v3, v1, 4, v3
    s_lshl_b32 s18, s15, 8
    s_add_u32 s18, s18, s17
    s_cmp_eq_u32 s3, 0
    s_cselect_b32 s19, 1, 0
    s_cmp_eq_u32 s3, 5
    s_cselect_b32 s19, 1, s19
    v_lshrrev_b32 v6, 2, v1
    s_lshl_b32 s20, s14, 2
    s_cmp_eq_u32 s12, 0
    s_cbranch_scc1 k2_u0
    s_lshl_b32 s21, s13, 2
    v_add_u32 v4, s21, v6
    s_mul_i32 s21, s14, 31
    v_xor_b32 v4, s21, v4
    s_xor_b32 s21, s20, 4
    v_add_u32 v5, s21, v2
    s_branch k2_t2done
k2_u0:
    v_lshrrev_b32 v4, 1, v6
    s_lshl_b32 s21, s13, 1
    v_add_u32 v4, s21, v4
    s_sub_u32 s21, 32, s14
    v_sub_u32 v7, s21, v4
    v_and_b32 v6, 1, v6
    v_cmp_eq_u32 vcc, 1, v6
    v_xor_b32 v5, 1, v2
    s_or_b32 s21, s13, s14
    v_cndmask_b32 v4, v4, v7, vcc
    v_cmp_eq_u32 vcc, 32, v4
    s_cmp_eq_u32 s21, 0
    s_cselect_b32 s21, 2, 0
    v_cndmask_b32 v4, v4, 16, vcc
    v_cmp_gt_u32 vcc, s21, v2
    s_nop 1
    v_cndmask_b32 v5, v5, v2, vcc
    v_add_u32 v5, s20, v5
k2_t2done:
    s_lshl_b32 s21, s15, 2
    s_nop 0
    v_readlane_b32 s22, v4, s21
    v_cvt_f32_u32 v6, v4
    v_cvt_f32_u32 v7, v2
    s_lshl_b32 s22, s22, 6
    s_add_u32 s22, s22, s16
    s_mul_i32 s23, s22, 1280
    v_lshlrev_b32 v28, 4, v0
    v_lshlrev_b32 v29, 2, v0
    v_mul_f32 v6, {fb(1/32)}, v6
    v_mul_f32 v7, v6, v7
    v_mul_f32 v6, 4.0, v6
    v_and_b32 v10, 3, v1
    """)
    for j in range(4): a(f"v_cmp_eq_u32 s[{36+2*(j&1)}:{37+2*(j&1)}], {j}, v10" + (f"\nv_cndmask_b32 v{11+j}, 0, -1, s[{36+2*((j-1)&1)}:{37+2*((j-1)&1)}]" if False else "") + f"\ns_nop 1\nv_cndmask_b32 v{12+j}, 0, -1, s[{36+2*(j&1)}:{37+2*(j&1)}]")
    GD, AC = 32, 128
    for ks in range(8):
        a(f"""v_cos_f32 v10, v7
        v_sin_f32 v11, v7
        v_add_f32 v7, v7, v6
        v_cvt_pk_bf16_f32 v10, v10, v11""")
        for j in range(4): a(f"v_and_b32 v{AC+4*ks+j}, v{12+j}, v10")
    def addrs(cbexpr, vd, vm):
        a(f"""
        v_add_u32 v10, {cbexpr}, v1
        v_mul_u32_u24 v11, 205, v10
        v_lshrrev_b32 v11, 11, v11
        v_mul_u32_u24 v16, 10, v11
        v_sub_u32 v16, v10, v16
        v_lshrrev_b32 v17, 2, v11
        v_mul_u32_u24 v17, 160, v17
        v_and_b32 v11, 3, v11
        v_add3_u32 v11, v11, v17, 1
        v_lshl_add_u32 v11, v16, 2, v11
        v_lshlrev_b32 v11, 2, v11
        v_add_u32 v{vd}, v18, v11
        v_sub_u32 v{vm}, v19, v11
        """)
    a(f"""
    v_add_u32 v18, s20, v2
    v_mul_u32_u24 v18, {YP}, v18
    v_mul_u32_u24 v19, {YP}, v5
    v_add_u32 v19, {4*520}, v19
    s_lshl_b32 s21, s15, 4
    s_mul_i32 s24, s3, {YP}
    v_mov_b32 v26, s24
    v_mov_b32 v27, 0
    ds_write_b32 v26, v27
    """)
    addrs("s21", 20, 21)
    addrs("64", 22, 23)
    a(f"""v_cmp_eq_u32 vcc, 15, v1
    v_add_u32 v24, {4*(640-520)}, v19
    v_mov_b32 v30, 1
    v_cndmask_b32 v24, v23, v24, vcc
    s_mov_b32 s25, 0xffff0000
    s_mov_b32 s26, 0x3f803f80
    s_cmp_ge_u32 s3, 6
    s_cbranch_scc1 k2_nowait
    s_waitcnt vmcnt(0)
k2_nowait:
    ;STAMP 6
    s_barrier
    s_cmp_lg_u32 s3, 4
    s_cbranch_scc1 k2_s1w
    s_mov_b64 exec, 1
    buffer_store_byte v30, v27, s[44:47], s2 offen {SC}
    s_mov_b64 exec, -1
k2_s1:
    buffer_load_dword v31, v29, s[44:47], 0 offen {SC}
    s_waitcnt vmcnt(0)
    v_cmp_ne_u32 vcc, 0x01010101, v31
    """)
    spin(a, "k2_s1")
    a("""k2_s1w:
    buffer_load_dwordx4 v[100:103], v28, s[4:7], s23 offen
    buffer_load_dword v104, v29, s[4:7], s23 offen offset:1024
    buffer_load_dwordx4 v[108:111], v28, s[28:31], 0 offen
    buffer_load_dword v112, v29, s[28:31], 0 offen offset:1024
    s_barrier
    ;STAMP 7
    """)
    def loads(gd):
        for ks in range(8):
            a(f"buffer_load_dwordx4 {vr(gd+4*ks,4)}, v3, s[8:11], s18 offen" + ("\ns_addk_i32 s18, 5120" if ks < 7 else ""))
    def item(gd, acc, vd, vm, vm3, vmbase):
        for ks in range(8):
            a(f"s_waitcnt vmcnt({vmbase-ks})")
            a(f"v_mfma_f32_16x16x32_bf16 {vr(acc,4)}, {vr(AC+4*ks,4)}, {vr(gd+4*ks,4)}, {vr(acc,4) if ks else 0}")
        return [f"ds_write_b32 v{vd}, v{acc+i} offset:{160*i}" for i in range(4)] + \
               [f"ds_write_b32 v{vm3 if i == 3 else vm}, v{acc+i} offset:{160*(3-i)}" for i in range(4)]
    a("s_cmp_eq_u32 s19, 0\ns_cbranch_scc1 k2_one\ns_mov_b32 s21, s18\ns_add_u32 s18, s17, 1024")
    loads(GD + 32)
    a("s_mov_b32 s18, s21")
    loads(GD)
    w2 = item(GD + 32, 164, 22, 23, 24, 15)
    a("s_nop 7")
    for t in w2: a(t)
    a("s_branch k2_two\nk2_one:")
    loads(GD)
    a("k2_two:")
    w1 = item(GD, 160, 20, 21, 21, 7)
    Y, H = 32, 48
    a(f"""
    v_lshl_add_u32 v10, v0, 5, s24
    v_lshl_add_u32 v11, v0, 3, s24
    v_mov_b32 v12, 0
    v_mov_b32 v13, 0""")
    for j in range(2): a(f"v_lshlrev_b32 v{H+2*j}, 16, v{100+j}\nv_and_b32 v{H+2*j+1}, s25, v{100+j}")
    for t in w1: a(t)
    for j in range(2, 5): a(f"v_lshlrev_b32 v{H+2*j}, 16, v{100+j}\nv_and_b32 v{H+2*j+1}, s25, v{100+j}")
    a(f"""
    s_waitcnt lgkmcnt(0)
    ;STAMP 8
    s_barrier
    ds_read_b128 v[32:35], v10
    ds_read_b128 v[36:39], v10 offset:16
    ds_read_b64 v[40:41], v11 offset:2048
    s_waitcnt lgkmcnt(0)
    """)
    for j in range(10): a(f"v_add_f32 v{Y+j}, v{Y+j}, v{H+j}")
    for j in range(5): a(f"v_cvt_pk_bf16_f32 v{60+j}, v{Y+2*j}, v{Y+2*j+1}")
    for j in range(5): a(f"v_dot2c_f32_bf16 v12, s26, v{60+j}\nv_dot2c_f32_bf16 v13, v{60+j}, v{60+j}")
    for j in range(5):
        a(f"v_lshlrev_b32 v{H+2*j}, 16, v{60+j}\nv_and_b32 v{H+2*j+1}, s25, v{60+j}")
    wave_red(a, [12, 13])
    a(f"""
    s_nop 0
    v_readlane_b32 s36, v12, 63
    v_readlane_b32 s37, v13, 63
    v_mov_b32 v14, {fb(1/640)}
    v_mul_f32 v12, s36, v14
    v_mul_f32 v13, s37, v14
    v_fma_f32 v13, -v12, v12, v13
    v_max_f32 v13, 0, v13
    v_cvt_pk_bf16_f32 v13, v12, v13
    v_lshlrev_b32 v12, 16, v13
    v_and_b32 v13, s25, v13
    v_add_f32 v13, {fb(1e-5)}, v13
    v_cvt_pk_bf16_f32 v13, v13, v13
    v_and_b32 v13, s25, v13
    v_sqrt_f32 v13, v13
    s_nop 0
    v_cvt_pk_bf16_f32 v13, v13, v13
    v_and_b32 v13, s25, v13
    v_rcp_f32 v13, v13
    s_nop 0
    v_mul_f32 v12, v12, v13
    v_mov_b32 v14, 0
    """)
    for j in range(10): a(f"v_fma_f32 v{Y+j}, v{H+j}, v13, -v12")
    for j in range(5): a(f"v_cvt_pk_bf16_f32 v{68+j}, v{Y+2*j}, v{Y+2*j+1}")
    for j in range(5): a(f"v_dot2c_f32_bf16 v14, v{68+j}, v{108+j}")
    for j in range(5):
        a(f"v_lshlrev_b32 v{Y+2*j}, 16, v{68+j}\nv_and_b32 v{Y+2*j+1}, s25, v{68+j}")
    b = A(); wave_red(b, [14]); red = [t for t in b.l if "dpp" in t]
    steps = [f"v_add_f32 v{Y+j}, v{Y+j}, v{H+j}" for j in range(10)] + ["v_min_u32 v60, -2, v60", "v_min_u32 v61, -2, v61"]
    for k in range(6):
        a(red[k]); a(steps[2*k]); a(steps[2*k+1])
    a(f"""
    v_readlane_b32 s36, v14, 63
    s_lshl_b32 s37, s3, 2
    v_mov_b32 v15, s37
    v_cvt_pk_bf16_f32 v14, s36, s36
    v_ashrrev_i32 v16, 31, v14
    v_or_b32 v16, 0x80000000, v16
    v_xor_b32 v14, v14, v16
    v_and_b32 v14, s25, v14
    v_or_b32 v16, s3, v14
    ds_write_b32 v15, v16 offset:{L_KEY}
    v_and_b32 v15, 28, v29
    """)
    for j in range(5): a(f"v_cvt_pk_bf16_f32 v{76+j}, v{Y+2*j}, v{Y+2*j+1}")
    for j in (62, 63, 64, 68, 69, 70, 71, 72): a(f"v_min_u32 v{j}, -2, v{j}")
    a(f"""
    s_waitcnt lgkmcnt(0)
    s_barrier
    ds_read_b32 v15, v15 offset:{L_KEY}
    v_mov_b32 v17, s22
    s_mov_b32 s51, -1
    s_waitcnt lgkmcnt(0)
    v_cmp_gt_u32 vcc, v15, v16
    s_bcnt1_i32_b32 s36, vcc_lo
    s_lshr_b32 s36, s36, 2
    s_cmp_ge_u32 s36, 2
    s_cbranch_scc1 k2_plain
    s_lshl_b32 s37, s2, 1
    s_add_u32 s36, s36, s37
    v_or_b32 v14, s36, v14
    s_mul_i32 s37, s36, {SLOT}
    s_add_u32 s37, s37, {WS_SLOT}
    s_lshl_b32 s36, s36, 2
    s_add_u32 s36, s36, {WS_KEY}
    buffer_store_dwordx4 v[68:71], v28, s[8:11], s37 offen sc1
    buffer_store_dword v72, v29, s[8:11], s37 offen offset:1024 sc1
    s_mov_b64 exec, 1
    buffer_store_dword v14, v27, s[8:11], s36 offen {SC}
    buffer_store_dword v17, v27, s[8:11], s37 offen offset:2560 sc1
    s_mov_b64 exec, -1
    buffer_store_dwordx4 v[60:63], v28, s[8:11], s37 offen offset:1280 sc1
    buffer_store_dword v64, v29, s[8:11], s37 offen offset:2304 sc1
    v_readfirstlane_b32 s51, v14
    s_branch k2_s2
k2_plain:
    buffer_store_dwordx4 v[76:79], v28, s[32:35], s23 offen
    buffer_store_dword v80, v29, s[32:35], s23 offen offset:1024
k2_s2:
    ;STAMP 9
    s_cmp_lg_u32 s3, 0
    s_cbranch_scc1 k2_s2w
    v_lshlrev_b32 v4, 5, v0
    s_mov_b32 s24, {WS_KEY}
k2_s2p:
    buffer_load_dwordx4 v[8:11], v4, s[8:11], s24 offen {SC}
    buffer_load_dwordx4 v[12:15], v4, s[8:11], s24 offen offset:16 {SC}
    s_waitcnt vmcnt(0)
    v_max3_u32 v16, v8, v9, v10
    v_max3_u32 v17, v11, v12, v13
    v_max3_u32 v18, v14, v15, v16
    v_max_u32 v18, v17, v18
    v_cmp_eq_u32 vcc, -1, v18
    """)
    spin(a, "k2_s2p")
    a("v_mov_b32 v19, v18\nv_max_u32 v16, v8, v9\nv_min_u32 v17, v8, v9")
    b = A(); wave_red(b, [19], "v_max_u32"); red = [t for t in b.l if "dpp" in t]
    for k, r in enumerate(range(10, 16)):
        a(red[k]); a(f"v_med3_u32 v17, v16, v17, v{r}\nv_max_u32 v16, v16, v{r}")
    a("v_readlane_b32 s20, v19, 63\ns_nop 1\nv_cmp_eq_u32 vcc, s20, v16\ns_nop 1\nv_cndmask_b32 v18, v16, v17, vcc")
    wave_red(a, [18], "v_max_u32")
    a(f"""
    v_mov_b32 v16, s20
    v_readlane_b32 s21, v18, 63
    s_nop 1
    v_mov_b32 v17, s21
    ds_write_b64 v27, v[16:17] offset:{L_TOP}
    s_waitcnt lgkmcnt(0)
k2_s2w:
    s_barrier
    ds_read_b64 v[16:17], v27 offset:{L_TOP}
    s_waitcnt lgkmcnt(0)
    ;STAMP 10
    v_readfirstlane_b32 s20, v16
    v_readfirstlane_b32 s21, v17
    s_cmp_ge_u32 s51, s21
    s_cbranch_scc1 k2_sel
    buffer_store_dwordx4 v[76:79], v28, s[32:35], s23 offen
    buffer_store_dword v80, v29, s[32:35], s23 offen offset:1024
k2_sel:
    s_cmp_ge_u32 s2, 136
    s_cbranch_scc1 k_end
    """)

def ffn(a):
    AF, BF, PB = 32, 88, L_PB
    a(f"""
    s_and_b32 s22, s20, 0x1ff
    s_and_b32 s23, s21, 0x1ff
    s_mul_i32 s22, s22, {SLOT}
    s_mul_i32 s23, s23, {SLOT}
    v_mov_b32 v16, s22
    v_mov_b32 v17, s23
    v_lshrrev_b32 v6, 2, v1
    v_lshl_add_u32 v6, v2, 3, v6
    v_lshlrev_b32 v6, 5, v6
    v_and_b32 v7, 3, v1
    v_lshl_add_u32 v6, v7, 3, v6
    s_mul_i32 s19, s3, 5120
    s_add_u32 s19, s19, {L_W}
    v_add_u32 v7, s19, v6
    s_and_b32 s17, s2, 7
    s_lshr_b32 s18, s2, 3
    s_mov_b32 s26, {WS_SLOT}
    v_cmp_gt_u32 vcc, 8, v1
    s_cmp_ge_u32 s2, 96
    s_cbranch_scc1 k4
    s_and_b32 s16, s3, 3
    s_mul_i32 s16, s16, 320
    v_cndmask_b32 v5, v17, v16, vcc
    v_lshl_add_u32 v5, v2, 4, v5
    s_add_u32 s26, s26, s16
    s_mul_i32 s17, s17, 12
    """)
    def common(nm, nks, soff):
        for j in range(nks):
            va, o = ("v7", 1024*j) if j < 5 else ("v6", L_W5)
            a(f"ds_read_b64_tr_b16 {vr(BF+4*j,2)}, {va} offset:{o}\nds_read_b64_tr_b16 {vr(BF+4*j+2,2)}, {va} offset:{o+128}")
        a(f"{nm}_p:")
        for j in range(nks): a(f"buffer_load_dwordx4 {vr(AF+4*j,4)}, v5, s[8:11], {soff} offen offset:{64*j} {SC}")
        a("s_waitcnt vmcnt(0)")
        n = 4*nks
        a(f"v_max3_u32 v8, v{AF}, v{AF+1}, v{AF+2}\nv_max3_u32 v9, v{AF+3}, v{AF+4}, v{AF+5}")
        for k in range(6, n, 4): a(f"v_max3_u32 v8, v8, v{AF+k}, v{AF+k+1}" + (f"\nv_max3_u32 v9, v9, v{AF+k+2}, v{AF+k+3}" if k+2 < n else ""))
        if nm == "k4": a("v_max3_u32 v8, v8, v20, v21\nv_max_u32 v9, v9, v22")
        a("v_max_u32 v8, v8, v9\nv_cmp_eq_u32 vcc, -1, v8")
        spin(a, nm + "_p")
        a(f";STAMP 11\ns_lshl_b32 s27, s3, 8\nv_lshl_add_u32 v7, v0, 2, s27\ns_waitcnt lgkmcnt(0)")
        for j in range(nks):
            a(f"v_mfma_f32_16x16x32_bf16 v[84:87], {vr(AF+4*j,4)}, {vr(BF+4*j,4)}, {'v[84:87]' if j else 0}")
        a(f"""
        s_add_u32 s18, s18, s17
        s_lshl_b32 s18, s18, 5
        s_nop 5
        ds_write_b32 v7, v84 offset:{PB}
        s_waitcnt lgkmcnt(0)
        s_barrier
        s_cmp_lg_u32 s3, 0
        s_cbranch_scc1 k_end
        """)
        for w in range(8): a(f"ds_read_b32 v{32+w}, v29 offset:{PB+256*w}")
        a("v_and_b32 v7, " + ("17" if nm == "k3" else "16") + ", v0\nv_cmp_eq_u32 vcc, 0, v7\ns_waitcnt lgkmcnt(0)")
        a("v_add_f32 v32, v32, v33\nv_add_f32 v34, v34, v35\nv_add_f32 v36, v36, v37\nv_add_f32 v38, v38, v39\nv_add_f32 v24, v32, v34\nv_add_f32 v25, v36, v38")
    common("k3", 5, "s26")
    a(f"""
    v_cvt_pk_bf16_f32 v24, v24, v25
    v_lshlrev_b32 v25, 16, v24
    v_and_b32 v24, s25, v24
    v_mul_f32 v26, {fb(-1.4426950408889634)}, v25
    v_exp_f32 v26, v26
    v_lshrrev_b32 v16, 5, v0
    v_add_f32 v26, 1.0, v26
    v_rcp_f32 v26, v26
    v_mul_u32_u24 v16, 3072, v16
    v_mul_f32 v25, v25, v26
    v_cvt_pk_bf16_f32 v25, v25, v25
    v_and_b32 v25, s25, v25
    v_mul_f32 v24, v24, v25
    v_lshl_add_u32 v16, v1, 1, v16
    s_add_u32 s18, s18, {WS_ACT}
    v_mov_b32_dpp v25, v24 quad_perm:[1,1,3,3] {DPPF}
    v_cvt_pk_bf16_f32 v24, v24, v25
    v_min_u32 v24, -2, v24
    s_and_saveexec_b64 s[36:37], vcc
    buffer_store_dword v24, v16, s[8:11], s18 offen {SC}
    s_endpgm
k4:
    s_mul_i32 s16, s3, 384
    s_add_u32 s16, s16, {WS_ACT}
    v_cndmask_b32 v5, 3072, 0, vcc
    """.replace("v_cndmask_b32 v5, 3072, 0, vcc", "v_lshrrev_b32 v5, 3, v1\nv_mul_u32_u24 v5, 3072, v5"))
    a(f"""
    v_lshl_add_u32 v5, v2, 4, v5
    s_lshl_b32 s19, s3, 10
    v_add_u32 v6, s19, v6
    s_mul_i32 s17, s17, 5
    s_sub_u32 s18, s18, 12
    s_add_u32 s19, s18, s17
    s_lshl_b32 s19, s19, 5
    v_cmp_gt_u32 vcc, 32, v0
    v_mov_b32 v18, s20
    v_mov_b32 v19, s21
    v_cndmask_b32 v16, v17, v16, vcc
    v_cndmask_b32 v18, v19, v18, vcc
    v_and_b32 v17, 14, v1
    v_lshl_add_u32 v17, v17, 1, v16
    v_add_u32 v17, s19, v17
    """)
    b = A(); a2 = a
    mark = len(a.l)
    common("k4", 6, "s16")
    i = a.l.index("k4_p:", mark)
    a.l[i+1:i+1] = ["    " + t for t in (f"buffer_load_dword v20, v17, s[8:11], s26 offen {SC}", f"buffer_load_dword v21, v17, s[8:11], s26 offen offset:1280 {SC}", f"buffer_load_dword v22, v16, s[8:11], s26 offen offset:2560 {SC}")]
    a(f"""
    v_ashrrev_i32 v19, 31, v18
    v_not_b32 v19, v19
    v_or_b32 v19, 0x80000000, v19
    v_xor_b32 v18, v18, v19
    v_and_b32 v18, s25, v18
    v_mul_f32 v18, {fb(-1.4426950408889634)}, v18
    v_exp_f32 v18, v18
    v_add_f32 v24, v24, v25
    v_add_f32 v18, 1.0, v18
    v_rcp_f32 v18, v18
    v_and_b32 v19, 1, v1
    v_lshlrev_b32 v19, 4, v19
    v_cvt_pk_bf16_f32 v24, v24, v18
    v_lshlrev_b32 v25, 16, v24
    v_and_b32 v24, s25, v24
    v_mul_f32 v24, v24, v25
    v_cvt_pk_bf16_f32 v24, v24, v24
    v_and_b32 v24, s25, v24
    v_lshrrev_b32 v20, v19, v20
    v_lshrrev_b32 v21, v19, v21
    v_lshlrev_b32 v20, 16, v20
    v_lshlrev_b32 v21, 16, v21
    v_and_b32 v22, 0x7ff, v22
    v_mul_u32_u24 v22, 1280, v22
    v_add_f32 v24, v24, v20
    v_cvt_pk_bf16_f32 v24, v24, v24
    v_and_b32 v24, s25, v24
    v_add_f32 v24, v24, v21
    v_cvt_pk_bf16_f32 v24, v24, v24
    v_lshl_add_u32 v22, v1, 1, v22
    s_and_saveexec_b64 s[36:37], vcc
    buffer_store_short v24, v22, s[32:35], s18 offen
    """)
```

```python
import sys
from gen import A, fb, vr, DPPF, NAME, XB, wave_red
WS_G, WS_SLOT, WS_KEY, WS_ACT = 0, 0x300000, 0x280000, 0x280800
WS_SIZE = 0x1000000
SLOT = 3072
L_B, L_A, L_W = 81920, 107520, 121344
LDS = L_W + 40960
YP = 2576
L_KEY, L_TOP, L_PB, L_W5 = 24576, 24576 + 64, 28672, 32768
SPIN = 1 << 15
SC = "sc0 sc1"
def srd(a, d, nbytes): a(f"s_mov_b32 s{d+2}, {nbytes}\ns_mov_b32 s{d+3}, 0x00020000")

def entry(a):
    a(f"""
    s_cmp_ge_u32 s2, 256
    s_cbranch_scc1 k_end
    s_load_dwordx2 s[4:5], s[0:1], 0
    s_load_dwordx4 s[44:47], s[0:1], 88
    s_load_dwordx8 s[52:59], s[0:1], 56
    s_load_dwordx2 s[28:29], s[0:1], 48
    v_lshrrev_b32 v1, 6, v0
    v_and_b32 v0, 63, v0
    s_and_b32 s12, s2, 7
    s_lshr_b32 s13, s2, 6
    v_readfirstlane_b32 s3, v1
    s_lshl_b32 s13, s13, 3
    s_add_u32 s12, s12, s13
    s_bfe_u32 s13, s2, 0x30003
    s_and_b32 s14, s13, 3
    s_add_u32 s14, s14, 1
    s_lshr_b32 s15, s13, 2
    v_and_b32 v1, 15, v0
    v_lshrrev_b32 v2, 4, v0
    """)
    srd(a, 4, XB); srd(a, 8, WS_SIZE)
    a("s_cmp_ge_u32 s3, 4\ns_cbranch_scc1 k_helper")
def ptrs(a):
    a("s_mov_b32 s8, s46\ns_mov_b32 s9, s47\ns_mov_b32 s32, s58\ns_mov_b32 s33, s59")
    srd(a, 44, 256); srd(a, 28, 1280); srd(a, 32, XB)

def k1main(a):
    a(f"""
    v_lshrrev_b32 v3, 2, v0
    s_lshl_b32 s16, s3, 4
    v_add_u32 v3, s16, v3
    s_mov_b32 s17, 40960
    v_mul_lo_u32 v3, v3, s17
    v_lshrrev_b32 v4, 5, v0
    v_mul_u32_u24 v4, 3, v4
    v_and_b32 v5, 3, v0
    v_xor_b32 v4, v4, v5
    v_lshl_add_u32 v3, v4, 4, v3
    s_mul_i32 s18, s12, 1280
    s_mul_i32 s19, s3, 20480
    s_mov_b32 m0, s19
    s_add_u32 s20, s18, 1280
    s_waitcnt lgkmcnt(0)
k1_dma:
    buffer_load_dwordx4 v3, s[4:7], s18 offen lds
    s_addk_i32 s18, 64
    s_addk_i32 m0, 1024
    s_cmp_lt_u32 s18, s20
    s_cbranch_scc1 k1_dma
    """)
    ptrs(a)
    CR, CI, CN = 200, 208, 216
    B, X, P, Q, R, S, SQ, ONE, T = 20, 120, 132, 152, 172, 192, 196, 224, 228
    a(f"""
    v_add_u32 v4, s16, v1
    v_cvt_f32_u32 v4, v4
    v_lshlrev_b32 v5, 8, v2
    v_add_u32 v5, s12, v5
    v_cvt_f32_u32 v5, v5
    s_mul_i32 s21, s14, 3
    v_cvt_f32_u32 v6, s21
    v_mul_f32 v5, v4, v5
    v_mul_f32 v6, {fb(0.25)}, v6
    v_mul_f32 v7, {fb(1/64)}, v4
    v_fmac_f32 v6, {fb(1/2048)}, v5
    v_fract_f32 v6, v6
    s_and_b32 s21, s14, 1
    s_lshl_b32 s22, s21, 31
    s_or_b32 s22, s22, 0x3f800000
    s_and_b32 s23, s14, 2
    s_lshl_b32 s23, s23, 30
    s_or_b32 s23, s23, 0x3f800000
    s_cmp_eq_u32 s21, 1
    s_cselect_b32 s24, s23, 0
    s_cselect_b32 s23, 0, s23
    s_xor_b32 s25, s24, 0x80000000
    v_mov_b32 v12, s24
    v_mov_b32 v13, s25
    v_cmp_gt_u32 vcc, 8, v1
    v_lshrrev_b32 v4, 3, v1
    v_mul_u32_u24 v4, 3, v4
    v_cndmask_b32 v12, v12, v13, vcc
    v_xor_b32 v4, v4, v2
    v_lshlrev_b32 v4, 4, v4
    v_lshl_add_u32 v4, v1, 6, v4
    v_add_u32 v4, s19, v4
    v_lshlrev_b32 v19, 4, v0
    v_add_u32 v19, {L_B}, v19
    v_lshlrev_b32 v13, 2, v2
    v_sub_u32 v13, v1, v13
    v_mov_b32 v18, 1.0
    """)
    for i in range(4): a(f"v_mov_b32 v{ONE+i}, 0x3f803f80\nv_cmp_eq_u32 s[{36+2*i}:{37+2*i}], {i}, v13")
    a(";STAMP 1\ns_barrier\n;STAMP 2")
    xb = lambda i: [120, 124, 128, 172, 176][i] if i < 5 else X + 4 * (i % 3)
    for f in range(25):
        a(f"ds_read_b128 {vr(B+4*f,4)}, v19 offset:{1024*f}")
        if f % 5 == 4: a(f"s_waitcnt vmcnt({19-f//5})\nds_read_b128 {vr(xb(f//5),4)}, v4 offset:{1024*(f//5)}")
    fill = {i: [] for i in range(20)}
    for j in range(20):
        fill[6 + j // 5].append(f"v_mul_f32 v{P+j}, s22, v{P+j}")
        fill[11 + j // 5].append(f"v_mul_f32 v{Q+j}, s22, v{Q+j}")
    slots = [0, 1, 2, 3, 4, 5, 10, 15]
    for ks in range(2):
        for jp in range(4):
            f = fill[slots[4*ks+jp]]
            if ks and not jp: f += ["v_fmac_f32 v6, 0x41c00000, v7", "v_fract_f32 v6, v6"]
            f += f"""v_cos_f32 v8, v6
            v_sin_f32 v9, v6
            v_add_f32 v6, v6, v7
            v_cos_f32 v10, v6
            v_sin_f32 v11, v6
            v_add_f32 v6, v6, v7
            v_cvt_pk_bf16_f32 v{CR+4*ks+jp}, v8, v10
            v_cvt_pk_bf16_f32 v{CN+4*ks+jp}, v9, v11
            v_cvt_pk_bf16_f32 v{CI+4*ks+jp}, -v9, -v11""".split("\n")
    rot = []
    for b in range(2):
        for i in range(4):
            re, im = P + 4*b + i, P + 8 + 4*b + i
            rot += [f"v_mul_f32 v{R+4*b+i}, s23, v{re}", f"v_mul_f32 v{R+8+4*b+i}, s23, v{im}",
                    f"v_fmac_f32 v{R+4*b+i}, s25, v{im}", f"v_fmac_f32 v{R+8+4*b+i}, s24, v{re}"]
    for i in range(4): rot += [f"v_mul_f32 v{R+16+i}, s23, v{P+16+i}"]
    for i in range(4): rot += [f"v_fmac_f32_dpp v{R+16+i}, v{P+16+i}, v12 row_ror:8 {DPPF}"]
    for j, t in enumerate(rot): fill[16 + min(j // 14, 2)].append(t)
    for i in range(20):
        q, ks = divmod(i, 5)
        x = xb(i)
        if 3 <= i <= 17: a(f"s_waitcnt vmcnt({17-i})\nds_read_b128 {vr(xb(i+2),4)}, v4 offset:{1024*(i+2)}")
        a(f"s_waitcnt lgkmcnt({[15, 15, 12, 7][i] if i < 4 else min(2, 19-i)})")
        acc = P if q % 2 == 0 else Q
        mf = []
        for b in range(5):
            c = "0" if (q < 2 and ks == 0) else vr(acc+4*b, 4)
            mf.append(f"v_mfma_f32_16x16x32_bf16 {vr(acc+4*b,4)}, {vr(x,4)}, {vr(B+20*ks+4*b,4)}, {c}")
        st = [f"v_mfma_f32_16x16x32_bf16 {vr(SQ,4)}, {vr(x,4)}, {vr(x,4)}, {vr(SQ,4) if i else 0}",
              f"v_mfma_f32_16x16x32_bf16 {vr(S,4)}, {vr(x,4)}, {vr(ONE,4)}, {vr(S,4) if i else 0}"]
        if i < 19:
            mf = mf + st; fl = fill[i]
            per = -(-len(fl) // 7)
            for b in range(7):
                a(mf[b])
                for t in fl[b*per:(b+1)*per]: a(t)
        else:
            a(st[0]); a(st[1]); a(mf[0]); a(mf[1])
            a(f"""
            s_lshl_b32 s27, s3, 5
            s_add_u32 s27, s27, {L_A}
            v_lshl_add_u32 v6, v2, 3, s27
            v_mul_u32_u24 v7, 144, v1
            v_add_u32 v7, v6, v7
            v_and_b32 v8, 7, v1
            v_cndmask_b32 v14, 0, v{SQ}, s[36:37]
            v_cndmask_b32 v14, v14, v{SQ+1}, s[38:39]
            v_cndmask_b32 v14, v14, v{SQ+2}, s[40:41]
            v_cndmask_b32 v14, v14, v{SQ+3}, s[42:43]
            v_mul_u32_u24 v8, 144, v8
            v_lshrrev_b32 v9, 3, v1
            v_mfma_f32_16x16x4_f32 {vr(SQ,4)}, v14, v18, 0
            v_mul_u32_u24 v9, 6912, v9
            v_add3_u32 v6, v6, v8, v9""")
            a(mf[2]); [a(f"v_mul_f32 v{S+k}, {fb(1/640)}, v{S+k}") for k in range(4)]
            a(mf[3]); a(mf[4])
    a(";STAMP 3\ns_nop 3")
    for i in range(4): a(f"v_mul_f32 v{SQ+i}, {fb(1/640)}, v{SQ+i}")
    for i in range(4): a(f"v_fma_f32 v{S+i}, -v{S+i}, v{S+i}, v{SQ+i}")
    for i in range(4): a(f"v_max_f32 v{S+i}, 0, v{S+i}")
    def rnd4():
        a(f"""v_cvt_pk_bf16_f32 v{T}, v{S}, v{S+1}
        v_cvt_pk_bf16_f32 v{T+1}, v{S+2}, v{S+3}
        v_lshlrev_b32 v{S}, 16, v{T}
        v_and_b32 v{S+1}, 0xffff0000, v{T}
        v_lshlrev_b32 v{S+2}, 16, v{T+1}
        v_and_b32 v{S+3}, 0xffff0000, v{T+1}""")
    rnd4()
    for i in range(4): a(f"v_add_f32 v{S+i}, {fb(1e-5)}, v{S+i}")
    rnd4()
    for i in range(4): a(f"v_sqrt_f32 v{S+i}, v{S+i}")
    for i in range(4): a(f"v_add_f32 v{Q+i}, v{Q+i}, v{R+i}")
    rnd4()
    for i in range(4): a(f"v_rcp_f32 v{S+i}, v{S+i}")
    for i in range(4, 20): a(f"v_add_f32 v{Q+i}, v{Q+i}, v{R+i}")
    for b in range(5):
        for i in range(4): a(f"v_mul_f32 v{Q+4*b+i}, v{Q+4*b+i}, v{S+i}")
        a(f"v_cvt_pk_bf16_f32 v{R+4*b}, v{Q+4*b}, v{Q+4*b+1}\nv_cvt_pk_bf16_f32 v{R+4*b+1}, v{Q+4*b+2}, v{Q+4*b+3}")
        if b < 4: a(f"ds_write_b64 v7, {vr(R+4*b,2)} offset:{(b&1)*16*144 + (b>>1)*6912}")
        else: a(f"ds_write_b64 v6, {vr(R+4*b,2)} offset:{32*144}")
    a(f"""
    v_mul_u32_u24 v7, 144, v1
    v_lshl_add_u32 v7, v2, 4, v7
    v_add_u32 v7, {L_A}, v7
    v_lshl_add_u32 v8, v2, 2, s16
    v_mul_lo_u32 v8, v8, s17
    s_mul_i32 s18, s12, 1280
    s_mul_i32 s19, s13, 160
    s_add_u32 s18, s18, s19
    v_lshl_add_u32 v8, v1, 2, v8
    v_add_u32 v8, s18, v8
    v_bfrev_b32 v9, 1
    v_cndmask_b32 v9, v9, v8, vcc
    s_mov_b32 s18, {2*40960}
    s_mov_b32 s19, {3*40960}
    s_waitcnt lgkmcnt(0)
    s_barrier
    ;STAMP 4
    """)
    D = 20
    for mb in range(3):
        for p in range(2):
            for ks in range(2):
                a(f"ds_read_b128 {vr(D+16*mb+8*p+4*ks,4)}, v7 offset:{mb*16*144 + p*6912 + 64*ks}")
    O = 70
    def outs(m):
        dr, di = O + 8*m, O + 8*m + 4
        for i in range(4):
            a(f"v_cvt_pk_bf16_f32 v{100+4*m+i}, v{dr+i}, v{di+i}")
            so = ["0", "s17", "s18", "s19"][i]
            a(f"buffer_store_dword v{100+4*m+i}, v{9 if m == 2 else 8}, s[8:11], {so} offen offset:{64*m} sc1")
    for mb in range(3):
        d = D + 16*mb; dr, di = O + 8*mb, O + 8*mb + 4
        a(f"""s_waitcnt lgkmcnt({10-4*mb})
        v_mfma_f32_16x16x32_bf16 {vr(dr,4)}, {vr(CR,4)}, {vr(d,4)}, 0
        v_mfma_f32_16x16x32_bf16 {vr(di,4)}, {vr(CI,4)}, {vr(d,4)}, 0
        v_mfma_f32_16x16x32_bf16 {vr(dr,4)}, {vr(CR+4,4)}, {vr(d+4,4)}, {vr(dr,4)}
        v_mfma_f32_16x16x32_bf16 {vr(di,4)}, {vr(CI+4,4)}, {vr(d+4,4)}, {vr(di,4)}
        s_waitcnt lgkmcnt({8-4*mb})
        v_mfma_f32_16x16x32_bf16 {vr(dr,4)}, {vr(CN,4)}, {vr(d+8,4)}, {vr(dr,4)}
        v_mfma_f32_16x16x32_bf16 {vr(di,4)}, {vr(CR,4)}, {vr(d+8,4)}, {vr(di,4)}
        v_mfma_f32_16x16x32_bf16 {vr(dr,4)}, {vr(CN+4,4)}, {vr(d+12,4)}, {vr(dr,4)}
        v_mfma_f32_16x16x32_bf16 {vr(di,4)}, {vr(CR+4,4)}, {vr(d+12,4)}, {vr(di,4)}""")
        if mb: outs(mb - 1)
    a("s_nop 7")
    outs(2)
    a(";STAMP 5\ns_branch k2_pre")

def helper(a):
    a(f"""
k_helper:
    s_mul_i32 s16, s15, 160
    s_add_u32 s16, s16, s14
    v_and_b32 v3, 3, v1
    v_mul_u32_u24 v3, 40, v3
    v_add_u32 v3, s16, v3
    v_and_b32 v4, 12, v1
    v_add_u32 v4, v3, v4
    v_add_u32 v5, 16, v4
    v_and_b32 v6, 4, v1
    v_add3_u32 v6, v3, v6, 32
    v_cvt_f32_u32 v4, v4
    v_cvt_f32_u32 v5, v5
    v_cvt_f32_u32 v6, v6
    v_lshrrev_b32 v7, 3, v1
    v_cvt_f32_u32 v7, v7
    v_mul_f32 v4, {fb(1/640)}, v4
    v_mul_f32 v5, {fb(1/640)}, v5
    v_mul_f32 v6, {fb(1/640)}, v6
    v_mul_f32 v7, {fb(0.25)}, v7
    v_cos_f32 v24, v4
    v_cos_f32 v25, v5
    v_cos_f32 v26, v6
    s_sub_u32 s18, s3, 4
    s_movk_i32 s19, 31
    v_add_f32 v24, v24, v24
    v_add_f32 v25, v25, v25
    v_add_f32 v26, v26, v26
k1_hloop:
    s_lshl_b32 s16, s18, 5
    v_lshl_add_u32 v8, v2, 3, s16
    v_cvt_f32_u32 v8, v8
    s_mul_i32 s17, s18, 5120
    s_add_u32 s17, s17, {L_B}
    v_lshl_add_u32 v9, v0, 4, s17
    """)
    for j, (st, ph) in enumerate([(0, "0"), (1, "0"), (0, fb(0.25)), (1, fb(0.25)), (2, "v7")]):
        a(f"s_bitcmp1_b32 s19, {j}\ns_cbranch_scc0 k1_hs{j}")
        if ph.startswith("0x"): a(f"v_fmaak_f32 v10, v{4+st}, v8, {ph}")
        else: a(f"v_fma_f32 v10, v{4+st}, v8, {ph}")
        a(f"v_fract_f32 v10, v10\nv_add_f32 v11, v10, v{4+st}\nv_cos_f32 v12, v10\nv_cos_f32 v13, v11\ns_nop 0")
        for k in range(2, 8): a(f"v_fma_f32 v{12+k}, v{24+st}, v{11+k}, -v{10+k}")
        for k in range(4): a(f"v_cvt_pk_bf16_f32 v{20+k}, v{12+2*k}, v{13+2*k}")
        a(f"ds_write_b128 v9, v[20:23] offset:{1024*j}\nk1_hs{j}:")
    a(f"""
    s_cmp_eq_u32 s18, 4
    s_cbranch_scc1 k1_hdone
    s_lshl_b32 s19, 1, s18
    s_cmp_eq_u32 s18, 0
    s_cselect_b32 s19, 17, s19
    s_mov_b32 s18, 4
    s_branch k1_hloop
k1_hdone:
    s_waitcnt lgkmcnt(0)
    ;STAMP 1
    s_barrier
    """)
    ptrs(a)
    a(f"""
    v_mov_b32 v4, -1
    v_mov_b32 v5, -1
    v_mov_b32 v6, -1
    v_mov_b32 v7, -1
    v_lshlrev_b32 v3, 4, v0
    s_cmp_ge_u32 s3, 6
    s_cbranch_scc1 k_wdma
    s_mul_i32 s16, s2, {2*SLOT}
    s_add_u32 s16, s16, {WS_SLOT}
    s_cmp_eq_u32 s3, 5
    s_cbranch_scc1 k_clr
    s_cmp_lg_u32 s2, 0
    s_cbranch_scc1 k_hb2
    s_mov_b32 s16, {WS_KEY+2048}
    s_mov_b32 s17, {WS_KEY}
    buffer_store_dwordx4 v[4:7], v3, s[8:11], s17 offen sc1
    buffer_store_dwordx4 v[4:7], v3, s[8:11], s17 offen offset:1024 sc1
k_clr:
    s_add_u32 s17, s16, 4096
    buffer_store_dwordx4 v[4:7], v3, s[8:11], s16 offen sc1
    buffer_store_dwordx4 v[4:7], v3, s[8:11], s16 offen offset:1024 sc1
    buffer_store_dwordx4 v[4:7], v3, s[8:11], s16 offen offset:2048 sc1
    buffer_store_dwordx4 v[4:7], v3, s[8:11], s16 offen offset:3072 sc1
    buffer_store_dwordx4 v[4:7], v3, s[8:11], s17 offen sc1
    buffer_store_dwordx4 v[4:7], v3, s[8:11], s17 offen offset:1024 sc1
k_hb2:
    s_barrier
    s_branch k2_pre
k_wdma:
    s_cmp_ge_u32 s2, 136
    s_cbranch_scc1 k_hb2
    s_sub_u32 s16, s3, 6
    s_cmp_eq_u32 s16, 0
    s_cselect_b32 s40, s52, s54
    s_cselect_b32 s41, s53, s55
    s_and_b32 s17, s2, 7
    s_lshr_b32 s18, s2, 3
    s_mul_i32 s19, s17, 12
    s_add_u32 s48, s19, s18
    s_movk_i32 s49, 3072
    s_mov_b32 s20, 0
    s_mov_b32 s21, 0
    s_cmp_lt_u32 s2, 96
    s_cbranch_scc1 k_wd1
    s_mov_b32 s40, s56
    s_mov_b32 s41, s57
    s_mul_i32 s19, s17, 5
    s_add_u32 s48, s19, s18
    s_sub_u32 s48, s48, 12
    s_movk_i32 s49, 1280
    s_mul_i32 s20, s16, {768*1280}
    s_mov_b32 s21, {32*1280}
k_wd1:
    s_lshl_b32 s48, s48, 5
    s_add_u32 s20, s20, s48
    s_mov_b32 s23, s20
    s_lshl_b32 s22, s49, 5
    v_lshrrev_b32 v3, 1, v0
    v_mul_lo_u32 v3, v3, s49
    v_and_b32 v4, 1, v0
    v_lshl_add_u32 v3, v4, 4, v3
    s_mul_i32 s24, s16, 20480
    s_add_u32 m0, s24, {L_W}
    """)
    srd(a, 40, 1966080)
    a("s_mov_b32 s25, 0\nk_wd2:")
    for j in range(5): a("buffer_load_dwordx4 v3, s[40:43], s20 offen lds\ns_addk_i32 m0, 1024\ns_add_u32 s20, s20, s22")
    a(f"""
    s_add_u32 s20, s20, s21
    s_add_u32 s25, s25, 1
    s_cmp_lt_u32 s25, 4
    s_cbranch_scc1 k_wd2
    s_barrier
    s_cmp_lt_u32 s2, 96
    s_cbranch_scc1 k2_pre
    s_lshl_b32 s24, s16, 12
    s_add_u32 m0, s24, {L_W5}
    s_add_u32 s20, s23, {160*1280}
    """)
    for j in range(4): a(f"buffer_load_dwordx4 v3, s[40:43], s20 offen lds\ns_addk_i32 m0, 1024\ns_add_u32 s20, s20, {192*1280}")

from gen2b import k2, ffn
def body(a):
    entry(a); k1main(a); helper(a); k2(a); ffn(a); a("k_end:\ns_endpgm")
def main(out):
    import gen
    hdr = f"; FNet (2-D DFT as 3 MFMA stages) + LN + top-2 routed SwiGLU, one persistent launch; generated by my own script\n; @launch grid=(256,1,1) block=(512,1,1) lds={LDS}\n"
    hdr += '.amdgcn_target "amdgcn-amd-amdhsa--gfx950"\n'
    c, d = gen.kernel(NAME + "_kernel", body, 240)
    open(out, "w").write(hdr + c + '.section .rodata,"a"\n.p2align 6\n' + d)
if __name__ == "__main__":
    main(sys.argv[1] if len(sys.argv) > 1 else f"cdna_kernels/{NAME}.s")
```

```python
from gen import A, fb, vr, DPPF, XB, wave_red
WS_G, WS_SLOT, WS_KEY, WS_ACT = 0, 0x300000, 0x280000, 0x284000
SLOT = 3072
L_W = 121344
YP = 2576
L_KEY, L_TOP, L_PB, L_W5 = 24576, 24576 + 64, 28672, 32768
SPIN = 1 << 15
SC = "sc1"
def spin(a, lab, cnt="s50"):
    a(f"s_cbranch_vccz {lab}_ok\ns_add_u32 {cnt}, {cnt}, 1\ns_cmp_lt_u32 {cnt}, {SPIN}\ns_cbranch_scc1 {lab}\n{lab}_ok:")
def k2(a):
    a(f"""
k2_pre:
    s_lshr_b32 s14, s3, 2
    s_and_b32 s15, s3, 3
    s_sub_u32 s16, 64, s12
    s_cmp_eq_u32 s12, 0
    s_cselect_b32 s16, 32, s16
    s_cmp_eq_u32 s14, 0
    s_cselect_b32 s16, s12, s16
    s_mul_i32 s17, s16, 40960
    v_mul_u32_u24 v3, 1280, v2
    v_lshl_add_u32 v3, v1, 4, v3
    s_lshl_b32 s18, s15, 8
    s_add_u32 s18, s18, s17
    s_cmp_eq_u32 s3, 0
    s_cselect_b32 s19, 1, 0
    s_cmp_eq_u32 s3, 5
    s_cselect_b32 s19, 1, s19
    v_lshrrev_b32 v6, 2, v1
    s_lshl_b32 s20, s14, 2
    s_cmp_eq_u32 s12, 0
    s_cbranch_scc1 k2_u0
    s_lshl_b32 s21, s13, 2
    v_add_u32 v4, s21, v6
    s_mul_i32 s21, s14, 31
    v_xor_b32 v4, s21, v4
    s_xor_b32 s21, s20, 4
    v_add_u32 v5, s21, v2
    s_branch k2_t2done
k2_u0:
    v_lshrrev_b32 v4, 1, v6
    s_lshl_b32 s21, s13, 1
    v_add_u32 v4, s21, v4
    s_sub_u32 s21, 32, s14
    v_sub_u32 v7, s21, v4
    v_and_b32 v6, 1, v6
    v_cmp_eq_u32 vcc, 1, v6
    v_xor_b32 v5, 1, v2
    s_or_b32 s21, s13, s14
    v_cndmask_b32 v4, v4, v7, vcc
    v_cmp_eq_u32 vcc, 32, v4
    s_cmp_eq_u32 s21, 0
    s_cselect_b32 s21, 2, 0
    v_cndmask_b32 v4, v4, 16, vcc
    v_cmp_gt_u32 vcc, s21, v2
    s_nop 1
    v_cndmask_b32 v5, v5, v2, vcc
    v_add_u32 v5, s20, v5
k2_t2done:
    s_lshl_b32 s21, s15, 2
    s_nop 0
    v_readlane_b32 s22, v4, s21
    v_cvt_f32_u32 v6, v4
    v_cvt_f32_u32 v7, v2
    s_lshl_b32 s22, s22, 6
    s_add_u32 s22, s22, s16
    s_mul_i32 s23, s22, 1280
    v_lshlrev_b32 v28, 4, v0
    v_lshlrev_b32 v29, 2, v0
    v_mul_f32 v6, {fb(1/32)}, v6
    v_mul_f32 v7, v6, v7
    v_mul_f32 v6, 4.0, v6
    v_and_b32 v10, 3, v1
    """)
    for j in range(4): a(f"v_cmp_eq_u32 s[{36+2*(j&1)}:{37+2*(j&1)}], {j}, v10" + (f"\nv_cndmask_b32 v{11+j}, 0, -1, s[{36+2*((j-1)&1)}:{37+2*((j-1)&1)}]" if False else "") + f"\ns_nop 1\nv_cndmask_b32 v{12+j}, 0, -1, s[{36+2*(j&1)}:{37+2*(j&1)}]")
    GD, AC = 32, 128
    for ks in range(8):
        a(f"""v_cos_f32 v10, v7
        v_sin_f32 v11, v7
        v_add_f32 v7, v7, v6
        v_cvt_pk_bf16_f32 v10, v10, v11""")
        for j in range(4): a(f"v_and_b32 v{AC+4*ks+j}, v{12+j}, v10")
    def addrs(cbexpr, vd, vm):
        a(f"""
        v_add_u32 v10, {cbexpr}, v1
        v_mul_u32_u24 v11, 205, v10
        v_lshrrev_b32 v11, 11, v11
        v_mul_u32_u24 v16, 10, v11
        v_sub_u32 v16, v10, v16
        v_lshrrev_b32 v17, 2, v11
        v_mul_u32_u24 v17, 160, v17
        v_and_b32 v11, 3, v11
        v_add3_u32 v11, v11, v17, 1
        v_lshl_add_u32 v11, v16, 2, v11
        v_lshlrev_b32 v11, 2, v11
        v_add_u32 v{vd}, v18, v11
        v_sub_u32 v{vm}, v19, v11
        """)
    a(f"""
    v_add_u32 v18, s20, v2
    v_mul_u32_u24 v18, {YP}, v18
    v_mul_u32_u24 v19, {YP}, v5
    v_add_u32 v19, {4*520}, v19
    s_lshl_b32 s21, s15, 4
    s_mul_i32 s24, s3, {YP}
    v_mov_b32 v26, s24
    v_mov_b32 v27, 0
    ds_write_b32 v26, v27
    """)
    addrs("s21", 20, 21)
    addrs("64", 22, 23)
    a(f"""v_cmp_eq_u32 vcc, 15, v1
    v_add_u32 v24, {4*(640-520)}, v19
    s_nop 0
    v_cndmask_b32 v24, v23, v24, vcc
    s_mov_b32 s25, 0xffff0000
    s_mov_b32 s26, 0x3f803f80
    s_cmp_ge_u32 s3, 6
    s_cbranch_scc1 k2_nowait
    s_waitcnt vmcnt(0)
k2_nowait:
    ;STAMP 6
    s_barrier
    s_cmp_lt_u32 s3, 4
    s_cbranch_scc1 k2_s1w
    s_lshl_b32 s36, s3, 12
    s_add_u32 s36, s36, {WS_KEY - 16384}
    v_lshlrev_b32 v30, 6, v0
    s_cmp_lg_u32 s3, 4
    s_cbranch_scc1 k2_s1
    s_lshl_b32 s37, s2, 6
    s_add_u32 s37, s37, {WS_KEY}
    s_mov_b64 exec, 1
    buffer_store_dword v27, v27, s[8:11], s37 offen {SC}
    s_mov_b64 exec, -1
k2_s1:
    buffer_load_dword v31, v30, s[8:11], s36 offen {SC}
    s_waitcnt vmcnt(0)
    v_cmp_ne_u32 vcc, 0, v31
    """)
    spin(a, "k2_s1")
    a("""k2_s1w:
    buffer_load_dwordx4 v[100:103], v28, s[4:7], s23 offen
    buffer_load_dword v104, v29, s[4:7], s23 offen offset:1024
    buffer_load_dwordx4 v[108:111], v28, s[28:31], 0 offen
    buffer_load_dword v112, v29, s[28:31], 0 offen offset:1024
    s_barrier
    ;STAMP 7
    """)
    def loads(gd):
        for ks in range(8):
            a(f"buffer_load_dwordx4 {vr(gd+4*ks,4)}, v3, s[8:11], s18 offen" + ("\ns_addk_i32 s18, 5120" if ks < 7 else ""))
    def item(gd, acc, vd, vm, vm3, vmbase):
        for ks in range(8):
            a(f"s_waitcnt vmcnt({vmbase-ks})")
            a(f"v_mfma_f32_16x16x32_bf16 {vr(acc,4)}, {vr(AC+4*ks,4)}, {vr(gd+4*ks,4)}, {vr(acc,4) if ks else 0}")
        return [f"ds_write_b32 v{vd}, v{acc+i} offset:{160*i}" for i in range(4)] + \
               [f"ds_write_b32 v{vm3 if i == 3 else vm}, v{acc+i} offset:{160*(3-i)}" for i in range(4)]
    a("s_cmp_eq_u32 s19, 0\ns_cbranch_scc1 k2_one\ns_mov_b32 s21, s18\ns_add_u32 s18, s17, 1024")
    loads(GD + 32)
    a("s_mov_b32 s18, s21")
    loads(GD)
    w2 = item(GD + 32, 164, 22, 23, 24, 15)
    a("s_nop 7")
    for t in w2: a(t)
    a("s_branch k2_two\nk2_one:")
    loads(GD)
    a("k2_two:")
    w1 = item(GD, 160, 20, 21, 21, 7)
    Y, H = 32, 48
    a(f"""
    v_lshl_add_u32 v10, v0, 5, s24
    v_lshl_add_u32 v11, v0, 3, s24
    v_mov_b32 v12, 0
    v_mov_b32 v13, 0""")
    for j in range(2): a(f"v_lshlrev_b32 v{H+2*j}, 16, v{100+j}\nv_and_b32 v{H+2*j+1}, s25, v{100+j}")
    for t in w1: a(t)
    for j in range(2, 5): a(f"v_lshlrev_b32 v{H+2*j}, 16, v{100+j}\nv_and_b32 v{H+2*j+1}, s25, v{100+j}")
    a(f"""
    s_waitcnt lgkmcnt(0)
    ;STAMP 8
    s_barrier
    ds_read_b128 v[32:35], v10
    ds_read_b128 v[36:39], v10 offset:16
    ds_read_b64 v[40:41], v11 offset:2048
    s_waitcnt lgkmcnt(0)
    """)
    for j in range(10): a(f"v_add_f32 v{Y+j}, v{Y+j}, v{H+j}")
    for j in range(5): a(f"v_cvt_pk_bf16_f32 v{60+j}, v{Y+2*j}, v{Y+2*j+1}")
    for j in range(5): a(f"v_dot2c_f32_bf16 v12, s26, v{60+j}\nv_dot2c_f32_bf16 v13, v{60+j}, v{60+j}")
    for j in range(5):
        a(f"v_lshlrev_b32 v{H+2*j}, 16, v{60+j}\nv_and_b32 v{H+2*j+1}, s25, v{60+j}")
    wave_red(a, [12, 13])
    a(f"""
    s_nop 0
    v_readlane_b32 s36, v12, 63
    v_readlane_b32 s37, v13, 63
    v_mov_b32 v14, {fb(1/640)}
    v_mul_f32 v12, s36, v14
    v_mul_f32 v13, s37, v14
    v_fma_f32 v13, -v12, v12, v13
    v_max_f32 v13, 0, v13
    v_cvt_pk_bf16_f32 v13, v12, v13
    v_lshlrev_b32 v12, 16, v13
    v_and_b32 v13, s25, v13
    v_add_f32 v13, {fb(1e-5)}, v13
    v_cvt_pk_bf16_f32 v13, v13, v13
    v_and_b32 v13, s25, v13
    v_sqrt_f32 v13, v13
    s_nop 0
    v_cvt_pk_bf16_f32 v13, v13, v13
    v_and_b32 v13, s25, v13
    v_rcp_f32 v13, v13
    s_nop 0
    v_mul_f32 v12, v12, v13
    v_mov_b32 v14, 0
    """)
    for j in range(10): a(f"v_fma_f32 v{Y+j}, v{H+j}, v13, -v12")
    for j in range(5): a(f"v_cvt_pk_bf16_f32 v{68+j}, v{Y+2*j}, v{Y+2*j+1}")
    for j in range(5): a(f"v_dot2c_f32_bf16 v14, v{68+j}, v{108+j}")
    for j in range(5):
        a(f"v_lshlrev_b32 v{Y+2*j}, 16, v{68+j}\nv_and_b32 v{Y+2*j+1}, s25, v{68+j}")
    b = A(); wave_red(b, [14]); red = [t for t in b.l if "dpp" in t]
    steps = [f"v_add_f32 v{Y+j}, v{Y+j}, v{H+j}" for j in range(10)] + ["v_min_u32 v60, -2, v60", "v_min_u32 v61, -2, v61"]
    for k in range(6):
        a(red[k]); a(steps[2*k]); a(steps[2*k+1])
    a(f"""
    v_readlane_b32 s36, v14, 63
    s_lshl_b32 s37, s3, 2
    v_mov_b32 v15, s37
    v_cvt_pk_bf16_f32 v14, s36, s36
    v_ashrrev_i32 v16, 31, v14
    v_or_b32 v16, 0x80000000, v16
    v_xor_b32 v14, v14, v16
    v_and_b32 v14, s25, v14
    v_or_b32 v16, s3, v14
    ds_write_b32 v15, v16 offset:{L_KEY}
    v_and_b32 v15, 28, v29
    """)
    for j in range(5): a(f"v_cvt_pk_bf16_f32 v{76+j}, v{Y+2*j}, v{Y+2*j+1}")
    for j in (62, 63, 64, 68, 69, 70, 71, 72): a(f"v_min_u32 v{j}, -2, v{j}")
    a(f"""
    s_waitcnt lgkmcnt(0)
    s_barrier
    ds_read_b32 v15, v15 offset:{L_KEY}
    v_mov_b32 v17, s22
    s_mov_b32 s51, -1
    s_waitcnt lgkmcnt(0)
    v_cmp_gt_u32 vcc, v15, v16
    s_bcnt1_i32_b32 s36, vcc_lo
    s_lshr_b32 s36, s36, 2
    s_cmp_ge_u32 s36, 2
    s_cbranch_scc1 k2_plain
    s_lshl_b32 s37, s2, 1
    s_add_u32 s37, s36, s37
    v_or_b32 v14, s37, v14
    s_mul_i32 s37, s37, {SLOT}
    s_add_u32 s37, s37, {WS_SLOT}
    s_lshl_b32 s38, s2, 4
    s_add_u32 s36, s36, s38
    s_lshl_b32 s36, s36, 2
    s_add_u32 s36, s36, {WS_KEY + 8}
    buffer_store_dwordx4 v[68:71], v28, s[8:11], s37 offen sc1
    buffer_store_dword v72, v29, s[8:11], s37 offen offset:1024 sc1
    s_mov_b64 exec, 1
    buffer_store_dword v14, v27, s[8:11], s36 offen {SC}
    buffer_store_dword v17, v27, s[8:11], s37 offen offset:2560 sc1
    s_mov_b64 exec, -1
    buffer_store_dwordx4 v[60:63], v28, s[8:11], s37 offen offset:1280 sc1
    buffer_store_dword v64, v29, s[8:11], s37 offen offset:2304 sc1
    v_readfirstlane_b32 s51, v14
    s_branch k2_s2
k2_plain:
    buffer_store_dwordx4 v[76:79], v28, s[32:35], s23 offen
    buffer_store_dword v80, v29, s[32:35], s23 offen offset:1024
k2_s2:
    ;STAMP 9
    s_cmp_lg_u32 s3, 0
    s_cbranch_scc1 k2_s2w
    v_lshlrev_b32 v4, 6, v0
    s_mov_b32 s24, {WS_KEY}
    s_mov_b32 s36, {WS_KEY+4096}
    s_mov_b32 s37, {WS_KEY+8192}
    s_mov_b32 s38, {WS_KEY+12288}
k2_s2p:
    buffer_load_dwordx2 v[8:9], v4, s[8:11], s24 offen offset:8 {SC}
    buffer_load_dwordx2 v[10:11], v4, s[8:11], s36 offen offset:8 {SC}
    buffer_load_dwordx2 v[12:13], v4, s[8:11], s37 offen offset:8 {SC}
    buffer_load_dwordx2 v[14:15], v4, s[8:11], s38 offen offset:8 {SC}
    s_waitcnt vmcnt(0)
    v_max3_u32 v16, v8, v9, v10
    v_max3_u32 v17, v11, v12, v13
    v_max3_u32 v18, v14, v15, v16
    v_max_u32 v18, v17, v18
    v_cmp_eq_u32 vcc, -1, v18
    """)
    spin(a, "k2_s2p")
    a("v_mov_b32 v19, v18\nv_max_u32 v16, v8, v9\nv_min_u32 v17, v8, v9")
    b = A(); wave_red(b, [19], "v_max_u32"); red = [t for t in b.l if "dpp" in t]
    for k, r in enumerate(range(10, 16)):
        a(red[k]); a(f"v_med3_u32 v17, v16, v17, v{r}\nv_max_u32 v16, v16, v{r}")
    a("v_readlane_b32 s20, v19, 63\ns_nop 1\nv_cmp_eq_u32 vcc, s20, v16\ns_nop 1\nv_cndmask_b32 v18, v16, v17, vcc")
    wave_red(a, [18], "v_max_u32")
    a(f"""
    v_mov_b32 v16, s20
    v_readlane_b32 s21, v18, 63
    s_nop 1
    v_mov_b32 v17, s21
    ds_write_b64 v27, v[16:17] offset:{L_TOP}
    s_waitcnt lgkmcnt(0)
k2_s2w:
    s_barrier
    ds_read_b64 v[16:17], v27 offset:{L_TOP}
    s_waitcnt lgkmcnt(0)
    ;STAMP 10
    v_readfirstlane_b32 s20, v16
    v_readfirstlane_b32 s21, v17
    s_cmp_ge_u32 s51, s21
    s_cbranch_scc1 k2_sel
    buffer_store_dwordx4 v[76:79], v28, s[32:35], s23 offen
    buffer_store_dword v80, v29, s[32:35], s23 offen offset:1024
k2_sel:
    s_cmp_ge_u32 s2, 136
    s_cbranch_scc1 k_end
    """)

def ffn(a):
    AF, BF, PB = 32, 88, L_PB
    a(f"""
    s_and_b32 s22, s20, 0x1ff
    s_and_b32 s23, s21, 0x1ff
    s_mul_i32 s22, s22, {SLOT}
    s_mul_i32 s23, s23, {SLOT}
    v_mov_b32 v16, s22
    v_mov_b32 v17, s23
    v_lshrrev_b32 v6, 2, v1
    v_lshl_add_u32 v6, v2, 3, v6
    v_lshlrev_b32 v6, 5, v6
    v_and_b32 v7, 3, v1
    v_lshl_add_u32 v6, v7, 3, v6
    s_mul_i32 s19, s3, 5120
    s_add_u32 s19, s19, {L_W}
    v_add_u32 v7, s19, v6
    s_and_b32 s17, s2, 7
    s_lshr_b32 s18, s2, 3
    s_mov_b32 s26, {WS_SLOT}
    v_cmp_gt_u32 vcc, 8, v1
    s_cmp_ge_u32 s2, 96
    s_cbranch_scc1 k4
    s_and_b32 s16, s3, 3
    s_mul_i32 s16, s16, 320
    v_cndmask_b32 v5, v17, v16, vcc
    v_lshl_add_u32 v5, v2, 4, v5
    s_add_u32 s26, s26, s16
    s_mul_i32 s17, s17, 12
    """)
    def common(nm, nks, soff):
        for j in range(nks):
            va, o = ("v7", 1024*j) if j < 5 else ("v6", L_W5)
            a(f"ds_read_b64_tr_b16 {vr(BF+4*j,2)}, {va} offset:{o}\nds_read_b64_tr_b16 {vr(BF+4*j+2,2)}, {va} offset:{o+128}")
        a(f"{nm}_p:")
        for j in range(nks): a(f"buffer_load_dwordx4 {vr(AF+4*j,4)}, v5, s[8:11], {soff} offen offset:{64*j} {SC}")
        a("s_waitcnt vmcnt(0)")
        n = 4*nks
        a(f"v_max3_u32 v8, v{AF}, v{AF+1}, v{AF+2}\nv_max3_u32 v9, v{AF+3}, v{AF+4}, v{AF+5}")
        for k in range(6, n, 4): a(f"v_max3_u32 v8, v8, v{AF+k}, v{AF+k+1}" + (f"\nv_max3_u32 v9, v9, v{AF+k+2}, v{AF+k+3}" if k+2 < n else ""))
        a("v_max_u32 v8, v8, v9\nv_cmp_eq_u32 vcc, -1, v8")
        spin(a, nm + "_p")
        a(f";STAMP 11\ns_lshl_b32 s27, s3, 8\nv_lshl_add_u32 v7, v0, 2, s27\ns_waitcnt lgkmcnt(0)")
        for j in range(nks):
            a(f"v_mfma_f32_16x16x32_bf16 v[84:87], {vr(AF+4*j,4)}, {vr(BF+4*j,4)}, {'v[84:87]' if j else 0}")
        a(f"""
        s_add_u32 s18, s18, s17
        s_lshl_b32 s18, s18, 5
        s_nop 5
        ds_write_b32 v7, v84 offset:{PB}
        s_waitcnt lgkmcnt(0)
        s_barrier
        s_cmp_lg_u32 s3, 0
        s_cbranch_scc1 k_end
        """)
        for w in range(8): a(f"ds_read_b32 v{32+w}, v29 offset:{PB+256*w}")
        a("v_and_b32 v7, " + ("17" if nm == "k3" else "16") + ", v0\nv_cmp_eq_u32 vcc, 0, v7\ns_waitcnt lgkmcnt(0)")
        a("v_add_f32 v32, v32, v33\nv_add_f32 v34, v34, v35\nv_add_f32 v36, v36, v37\nv_add_f32 v38, v38, v39\nv_add_f32 v24, v32, v34\nv_add_f32 v25, v36, v38")
    common("k3", 5, "s26")
    a(f"""
    v_cvt_pk_bf16_f32 v24, v24, v25
    v_lshlrev_b32 v25, 16, v24
    v_and_b32 v24, s25, v24
    v_mul_f32 v26, {fb(-1.4426950408889634)}, v25
    v_exp_f32 v26, v26
    v_lshrrev_b32 v16, 5, v0
    v_add_f32 v26, 1.0, v26
    v_rcp_f32 v26, v26
    v_mul_u32_u24 v16, 3072, v16
    v_mul_f32 v25, v25, v26
    v_cvt_pk_bf16_f32 v25, v25, v25
    v_and_b32 v25, s25, v25
    v_mul_f32 v24, v24, v25
    v_lshl_add_u32 v16, v1, 1, v16
    s_add_u32 s18, s18, {WS_ACT}
    v_mov_b32_dpp v25, v24 quad_perm:[1,1,3,3] {DPPF}
    v_cvt_pk_bf16_f32 v24, v24, v25
    v_min_u32 v24, -2, v24
    s_and_saveexec_b64 s[36:37], vcc
    buffer_store_dword v24, v16, s[8:11], s18 offen {SC}
    s_endpgm
k4:
    s_mul_i32 s16, s3, 384
    s_add_u32 s16, s16, {WS_ACT}
    v_cndmask_b32 v5, 3072, 0, vcc
    """.replace("v_cndmask_b32 v5, 3072, 0, vcc", "v_lshrrev_b32 v5, 3, v1\nv_mul_u32_u24 v5, 3072, v5"))
    a(f"""
    v_lshl_add_u32 v5, v2, 4, v5
    s_lshl_b32 s19, s3, 10
    v_add_u32 v6, s19, v6
    s_mul_i32 s17, s17, 5
    s_sub_u32 s18, s18, 12
    s_add_u32 s19, s18, s17
    s_lshl_b32 s19, s19, 5
    v_cmp_gt_u32 vcc, 32, v0
    v_mov_b32 v18, s20
    v_mov_b32 v19, s21
    v_cndmask_b32 v16, v17, v16, vcc
    v_cndmask_b32 v18, v19, v18, vcc
    v_and_b32 v17, 14, v1
    v_lshl_add_u32 v17, v17, 1, v16
    v_add_u32 v17, s19, v17
    """)
    a(f"""
    s_cmp_lg_u32 s3, 0
    s_cbranch_scc1 k4_h_ok
k4_h:
    buffer_load_dword v20, v17, s[8:11], s26 offen {SC}
    buffer_load_dword v21, v17, s[8:11], s26 offen offset:1280 {SC}
    buffer_load_dword v22, v16, s[8:11], s26 offen offset:2560 {SC}
    s_waitcnt vmcnt(0)
    v_max3_u32 v8, v20, v21, v22
    v_cmp_eq_u32 vcc, -1, v8
    """)
    spin(a, "k4_h")
    common("k4", 6, "s16")
    a(f"""
    v_ashrrev_i32 v19, 31, v18
    v_not_b32 v19, v19
    v_or_b32 v19, 0x80000000, v19
    v_xor_b32 v18, v18, v19
    v_and_b32 v18, s25, v18
    v_mul_f32 v18, {fb(-1.4426950408889634)}, v18
    v_exp_f32 v18, v18
    v_add_f32 v24, v24, v25
    v_add_f32 v18, 1.0, v18
    v_rcp_f32 v18, v18
    v_and_b32 v19, 1, v1
    v_lshlrev_b32 v19, 4, v19
    v_cvt_pk_bf16_f32 v24, v24, v18
    v_lshlrev_b32 v25, 16, v24
    v_and_b32 v24, s25, v24
    v_mul_f32 v24, v24, v25
    v_cvt_pk_bf16_f32 v24, v24, v24
    v_and_b32 v24, s25, v24
    v_lshrrev_b32 v20, v19, v20
    v_lshrrev_b32 v21, v19, v21
    v_lshlrev_b32 v20, 16, v20
    v_lshlrev_b32 v21, 16, v21
    v_and_b32 v22, 0x7ff, v22
    v_mul_u32_u24 v22, 1280, v22
    v_add_f32 v24, v24, v20
    v_cvt_pk_bf16_f32 v24, v24, v24
    v_and_b32 v24, s25, v24
    v_add_f32 v24, v24, v21
    v_cvt_pk_bf16_f32 v24, v24, v24
    v_lshl_add_u32 v22, v1, 1, v22
    s_and_saveexec_b64 s[36:37], vcc
    buffer_store_short v24, v22, s[32:35], s18 offen
    """)
```

```python
import sys
from gen2b import k2, ffn, spin
from gen import A, fb, vr, DPPF, NAME, XB, wave_red
WS_G, WS_SLOT, WS_KEY, WS_ACT = 0, 0x300000, 0x280000, 0x284000
WS_SIZE = 0x1000000
SLOT = 3072
L_B, L_A, L_W = 81920, 107520, 121344
LDS = L_W + 40960
YP = 2576
L_KEY, L_TOP, L_PB, L_W5 = 24576, 24576 + 64, 28672, 32768
SPIN = 1 << 15
SC = "sc0 sc1"
def srd(a, d, nbytes): a(f"s_mov_b32 s{d+2}, {nbytes}\ns_mov_b32 s{d+3}, 0x00020000")

def entry(a):
    a(f"""
    s_cmp_ge_u32 s2, 256
    s_cbranch_scc1 k_end
    s_load_dwordx2 s[4:5], s[0:1], 0
    s_load_dwordx4 s[44:47], s[0:1], 88
    s_load_dwordx8 s[52:59], s[0:1], 56
    s_load_dwordx2 s[28:29], s[0:1], 48
    v_lshrrev_b32 v1, 6, v0
    v_and_b32 v0, 63, v0
    s_and_b32 s12, s2, 7
    s_lshr_b32 s13, s2, 6
    v_readfirstlane_b32 s3, v1
    s_lshl_b32 s13, s13, 3
    s_add_u32 s12, s12, s13
    s_bfe_u32 s13, s2, 0x30003
    s_and_b32 s14, s13, 3
    s_add_u32 s14, s14, 1
    s_lshr_b32 s15, s13, 2
    v_and_b32 v1, 15, v0
    v_lshrrev_b32 v2, 4, v0
    """)
    srd(a, 4, XB); srd(a, 8, WS_SIZE)
    a("s_cmp_ge_u32 s3, 4\ns_cbranch_scc1 k_helper")
def ptrs(a):
    a("s_mov_b32 s8, s46\ns_mov_b32 s9, s47\ns_mov_b32 s32, s58\ns_mov_b32 s33, s59")
    srd(a, 44, 256); srd(a, 28, 1280); srd(a, 32, XB)

def k1main(a):
    a(f"""
    v_lshrrev_b32 v3, 2, v0
    s_lshl_b32 s16, s3, 4
    v_add_u32 v3, s16, v3
    s_mov_b32 s17, 40960
    v_mul_lo_u32 v3, v3, s17
    v_lshrrev_b32 v4, 5, v0
    v_mul_u32_u24 v4, 3, v4
    v_and_b32 v5, 3, v0
    v_xor_b32 v4, v4, v5
    v_lshl_add_u32 v3, v4, 4, v3
    s_mul_i32 s18, s12, 1280
    s_mul_i32 s19, s3, 20480
    s_mov_b32 m0, s19
    s_add_u32 s20, s18, 1280
    s_waitcnt lgkmcnt(0)
k1_dma:
    buffer_load_dwordx4 v3, s[4:7], s18 offen lds
    s_addk_i32 s18, 64
    s_addk_i32 m0, 1024
    s_cmp_lt_u32 s18, s20
    s_cbranch_scc1 k1_dma
    """)
    ptrs(a)
    CR, CI, CN = 200, 208, 216
    B, X, P, Q, R, S, SQ, ONE, T = 20, 120, 132, 152, 172, 192, 196, 224, 228
    a(f"""
    v_add_u32 v4, s16, v1
    v_cvt_f32_u32 v4, v4
    v_lshlrev_b32 v5, 8, v2
    v_add_u32 v5, s12, v5
    v_cvt_f32_u32 v5, v5
    s_mul_i32 s21, s14, 3
    v_cvt_f32_u32 v6, s21
    v_mul_f32 v5, v4, v5
    v_mul_f32 v6, {fb(0.25)}, v6
    v_mul_f32 v7, {fb(1/64)}, v4
    v_fmac_f32 v6, {fb(1/2048)}, v5
    v_fract_f32 v6, v6
    s_and_b32 s21, s14, 1
    s_lshl_b32 s22, s21, 31
    s_or_b32 s22, s22, 0x3f800000
    s_and_b32 s23, s14, 2
    s_lshl_b32 s23, s23, 30
    s_or_b32 s23, s23, 0x3f800000
    s_cmp_eq_u32 s21, 1
    s_cselect_b32 s24, s23, 0
    s_cselect_b32 s23, 0, s23
    s_xor_b32 s25, s24, 0x80000000
    v_mov_b32 v12, s24
    v_mov_b32 v13, s25
    v_cmp_gt_u32 vcc, 8, v1
    v_lshrrev_b32 v4, 3, v1
    v_mul_u32_u24 v4, 3, v4
    v_cndmask_b32 v12, v12, v13, vcc
    v_xor_b32 v4, v4, v2
    v_lshlrev_b32 v4, 4, v4
    v_lshl_add_u32 v4, v1, 6, v4
    v_add_u32 v4, s19, v4
    v_lshlrev_b32 v19, 4, v0
    v_add_u32 v19, {L_B}, v19
    v_lshlrev_b32 v13, 2, v2
    v_sub_u32 v13, v1, v13
    v_mov_b32 v18, 1.0
    """)
    for i in range(4): a(f"v_mov_b32 v{ONE+i}, 0x3f803f80\nv_cmp_eq_u32 s[{36+2*i}:{37+2*i}], {i}, v13")
    a("s_mov_b32 s50, 0\n;STAMP 1\ns_barrier\n;STAMP 2")
    xb = lambda i: [120, 124, 128, 172, 176][i] if i < 5 else X + 4 * (i % 3)
    for f in range(25):
        a(f"ds_read_b128 {vr(B+4*f,4)}, v19 offset:{1024*f}")
        if f % 5 == 4: a(f"s_waitcnt vmcnt({19-f//5})\nds_read_b128 {vr(xb(f//5),4)}, v4 offset:{1024*(f//5)}")
    fill = {i: [] for i in range(20)}
    for j in range(20):
        fill[6 + j // 5].append(f"v_mul_f32 v{P+j}, s22, v{P+j}")
        fill[11 + j // 5].append(f"v_mul_f32 v{Q+j}, s22, v{Q+j}")
    slots = [0, 1, 2, 3, 4, 5, 10, 15]
    for ks in range(2):
        for jp in range(4):
            f = fill[slots[4*ks+jp]]
            if ks and not jp: f += ["v_fmac_f32 v6, 0x41c00000, v7", "v_fract_f32 v6, v6"]
            f += f"""v_cos_f32 v8, v6
            v_sin_f32 v9, v6
            v_add_f32 v6, v6, v7
            v_cos_f32 v10, v6
            v_sin_f32 v11, v6
            v_add_f32 v6, v6, v7
            v_cvt_pk_bf16_f32 v{CR+4*ks+jp}, v8, v10
            v_cvt_pk_bf16_f32 v{CN+4*ks+jp}, v9, v11
            v_cvt_pk_bf16_f32 v{CI+4*ks+jp}, -v9, -v11""".split("\n")
    rot = []
    for b in range(2):
        for i in range(4):
            re, im = P + 4*b + i, P + 8 + 4*b + i
            rot += [f"v_mul_f32 v{R+4*b+i}, s23, v{re}", f"v_mul_f32 v{R+8+4*b+i}, s23, v{im}",
                    f"v_fmac_f32 v{R+4*b+i}, s25, v{im}", f"v_fmac_f32 v{R+8+4*b+i}, s24, v{re}"]
    for i in range(4): rot += [f"v_mul_f32 v{R+16+i}, s23, v{P+16+i}"]
    for i in range(4): rot += [f"v_fmac_f32_dpp v{R+16+i}, v{P+16+i}, v12 row_ror:8 {DPPF}"]
    for j, t in enumerate(rot): fill[16 + min(j // 14, 2)].append(t)
    for i in range(20):
        q, ks = divmod(i, 5)
        x = xb(i)
        if 3 <= i <= 17: a(f"s_waitcnt vmcnt({17-i})\nds_read_b128 {vr(xb(i+2),4)}, v4 offset:{1024*(i+2)}")
        a(f"s_waitcnt lgkmcnt({[15, 15, 12, 7][i] if i < 4 else min(2, 19-i)})")
        acc = P if q % 2 == 0 else Q
        mf = []
        for b in range(5):
            c = "0" if (q < 2 and ks == 0) else vr(acc+4*b, 4)
            mf.append(f"v_mfma_f32_16x16x32_bf16 {vr(acc+4*b,4)}, {vr(x,4)}, {vr(B+20*ks+4*b,4)}, {c}")
        st = [f"v_mfma_f32_16x16x32_bf16 {vr(SQ,4)}, {vr(x,4)}, {vr(x,4)}, {vr(SQ,4) if i else 0}",
              f"v_mfma_f32_16x16x32_bf16 {vr(S,4)}, {vr(x,4)}, {vr(ONE,4)}, {vr(S,4) if i else 0}"]
        if i < 19:
            mf = mf + st; fl = fill[i]
            per = -(-len(fl) // 7)
            for b in range(7):
                a(mf[b])
                for t in fl[b*per:(b+1)*per]: a(t)
        else:
            a(st[0]); a(st[1]); a(mf[0]); a(mf[1])
            a(f"""
            s_lshl_b32 s27, s3, 5
            s_add_u32 s27, s27, {L_A}
            v_lshl_add_u32 v6, v2, 3, s27
            v_mul_u32_u24 v7, 144, v1
            v_add_u32 v7, v6, v7
            v_and_b32 v8, 7, v1
            v_cndmask_b32 v14, 0, v{SQ}, s[36:37]
            v_cndmask_b32 v14, v14, v{SQ+1}, s[38:39]
            v_cndmask_b32 v14, v14, v{SQ+2}, s[40:41]
            v_cndmask_b32 v14, v14, v{SQ+3}, s[42:43]
            v_mul_u32_u24 v8, 144, v8
            v_lshrrev_b32 v9, 3, v1
            v_mfma_f32_16x16x4_f32 {vr(SQ,4)}, v14, v18, 0
            v_mul_u32_u24 v9, 6912, v9
            v_add3_u32 v6, v6, v8, v9""")
            a(mf[2]); [a(f"v_mul_f32 v{S+k}, {fb(1/640)}, v{S+k}") for k in range(4)]
            a(mf[3]); a(mf[4])
    a(";STAMP 3\ns_nop 3")
    for i in range(4): a(f"v_mul_f32 v{SQ+i}, {fb(1/640)}, v{SQ+i}")
    for i in range(4): a(f"v_fma_f32 v{S+i}, -v{S+i}, v{S+i}, v{SQ+i}")
    for i in range(4): a(f"v_max_f32 v{S+i}, 0, v{S+i}")
    def rnd4():
        a(f"""v_cvt_pk_bf16_f32 v{T}, v{S}, v{S+1}
        v_cvt_pk_bf16_f32 v{T+1}, v{S+2}, v{S+3}
        v_lshlrev_b32 v{S}, 16, v{T}
        v_and_b32 v{S+1}, 0xffff0000, v{T}
        v_lshlrev_b32 v{S+2}, 16, v{T+1}
        v_and_b32 v{S+3}, 0xffff0000, v{T+1}""")
    rnd4()
    for i in range(4): a(f"v_add_f32 v{S+i}, {fb(1e-5)}, v{S+i}")
    rnd4()
    for i in range(4): a(f"v_sqrt_f32 v{S+i}, v{S+i}")
    for i in range(4): a(f"v_add_f32 v{Q+i}, v{Q+i}, v{R+i}")
    rnd4()
    for i in range(4): a(f"v_rcp_f32 v{S+i}, v{S+i}")
    for i in range(4, 20): a(f"v_add_f32 v{Q+i}, v{Q+i}, v{R+i}")
    for b in range(5):
        for i in range(4): a(f"v_mul_f32 v{Q+4*b+i}, v{Q+4*b+i}, v{S+i}")
        a(f"v_cvt_pk_bf16_f32 v{R+4*b}, v{Q+4*b}, v{Q+4*b+1}\nv_cvt_pk_bf16_f32 v{R+4*b+1}, v{Q+4*b+2}, v{Q+4*b+3}")
        if b < 4: a(f"ds_write_b64 v7, {vr(R+4*b,2)} offset:{(b&1)*16*144 + (b>>1)*6912}")
        else: a(f"ds_write_b64 v6, {vr(R+4*b,2)} offset:{32*144}")
    a(f"""
    v_mul_u32_u24 v7, 144, v1
    v_lshl_add_u32 v7, v2, 4, v7
    v_add_u32 v7, {L_A}, v7
    v_lshl_add_u32 v8, v2, 2, s16
    v_mul_lo_u32 v8, v8, s17
    s_mul_i32 s18, s12, 1280
    s_mul_i32 s19, s13, 160
    s_add_u32 s18, s18, s19
    v_lshl_add_u32 v8, v1, 2, v8
    v_add_u32 v8, s18, v8
    v_bfrev_b32 v9, 1
    v_cndmask_b32 v9, v9, v8, vcc
    s_mov_b32 s18, {2*40960}
    s_mov_b32 s19, {3*40960}
    s_waitcnt lgkmcnt(0)
    s_barrier
    ;STAMP 4
    """)
    D = 20
    for mb in range(3):
        for p in range(2):
            for ks in range(2):
                a(f"ds_read_b128 {vr(D+16*mb+8*p+4*ks,4)}, v7 offset:{mb*16*144 + p*6912 + 64*ks}")
    O = 70
    def outs(m):
        dr, di = O + 8*m, O + 8*m + 4
        for i in range(4):
            a(f"v_cvt_pk_bf16_f32 v{100+4*m+i}, v{dr+i}, v{di+i}")
            so = ["0", "s17", "s18", "s19"][i]
            a(f"buffer_store_dword v{100+4*m+i}, v{9 if m == 2 else 8}, s[8:11], {so} offen offset:{64*m} sc1")
    for mb in range(3):
        d = D + 16*mb; dr, di = O + 8*mb, O + 8*mb + 4
        a(f"""s_waitcnt lgkmcnt({10-4*mb})
        v_mfma_f32_16x16x32_bf16 {vr(dr,4)}, {vr(CR,4)}, {vr(d,4)}, 0
        v_mfma_f32_16x16x32_bf16 {vr(di,4)}, {vr(CI,4)}, {vr(d,4)}, 0
        v_mfma_f32_16x16x32_bf16 {vr(dr,4)}, {vr(CR+4,4)}, {vr(d+4,4)}, {vr(dr,4)}
        v_mfma_f32_16x16x32_bf16 {vr(di,4)}, {vr(CI+4,4)}, {vr(d+4,4)}, {vr(di,4)}
        s_waitcnt lgkmcnt({8-4*mb})
        v_mfma_f32_16x16x32_bf16 {vr(dr,4)}, {vr(CN,4)}, {vr(d+8,4)}, {vr(dr,4)}
        v_mfma_f32_16x16x32_bf16 {vr(di,4)}, {vr(CR,4)}, {vr(d+8,4)}, {vr(di,4)}
        v_mfma_f32_16x16x32_bf16 {vr(dr,4)}, {vr(CN+4,4)}, {vr(d+12,4)}, {vr(dr,4)}
        v_mfma_f32_16x16x32_bf16 {vr(di,4)}, {vr(CR+4,4)}, {vr(d+12,4)}, {vr(di,4)}""")
        if mb: outs(mb - 1)
    a("s_nop 7")
    outs(2)
    a(";STAMP 5\ns_branch k2_pre")

def helper(a):
    a(f"""
k_helper:
    s_getpc_b64 s[20:21]
k_pc:
    s_sub_u32 s20, s20, k_pc-{NAME}_kernel
    s_subb_u32 s21, s21, 0
    s_lshl_b32 s16, s3, 12
    s_sub_u32 s16, s16, 16384
    v_lshl_add_u32 v40, v0, 6, s16
    v_min_u32 v40, k_end-{NAME}_kernel, v40
    global_load_dword v41, v40, s[20:21]
    s_mul_i32 s16, s15, 160
    s_add_u32 s16, s16, s14
    v_and_b32 v3, 3, v1
    v_mul_u32_u24 v3, 40, v3
    v_add_u32 v3, s16, v3
    v_and_b32 v4, 12, v1
    v_add_u32 v4, v3, v4
    v_add_u32 v5, 16, v4
    v_and_b32 v6, 4, v1
    v_add3_u32 v6, v3, v6, 32
    v_cvt_f32_u32 v4, v4
    v_cvt_f32_u32 v5, v5
    v_cvt_f32_u32 v6, v6
    v_lshrrev_b32 v7, 3, v1
    v_cvt_f32_u32 v7, v7
    v_mul_f32 v4, {fb(1/640)}, v4
    v_mul_f32 v5, {fb(1/640)}, v5
    v_mul_f32 v6, {fb(1/640)}, v6
    v_mul_f32 v7, {fb(0.25)}, v7
    v_cos_f32 v24, v4
    v_cos_f32 v25, v5
    v_cos_f32 v26, v6
    s_sub_u32 s18, s3, 4
    s_movk_i32 s19, 31
    v_add_f32 v24, v24, v24
    v_add_f32 v25, v25, v25
    v_add_f32 v26, v26, v26
    s_and_b32 s20, s2, 7
    s_lshr_b32 s21, s2, 3
    v_mul_u32_u24 v40, 86, v0
    v_lshrrev_b32 v40, 8, v40
    v_mul_u32_u24 v42, 3, v40
    v_sub_u32 v42, v0, v42
    v_mul_u32_u24 v40, 3072, v40
    v_lshl_add_u32 v40, v42, 7, v40
    s_mul_i32 s22, s21, {20*3072}
    s_mul_i32 s23, s20, 384
    s_mov_b32 s42, 1966080
    s_mov_b32 s43, 0x00020000
    s_cmp_lt_u32 s18, 2
    s_cbranch_scc1 k_pf
    v_lshrrev_b32 v40, 1, v0
    v_mul_u32_u24 v40, 1280, v40
    v_and_b32 v42, 1, v0
    v_lshl_add_u32 v40, v42, 7, v40
    s_lshl_b32 s21, s21, 1
    s_add_u32 s21, s21, s18
    s_sub_u32 s21, s21, 2
    s_mul_i32 s22, s21, {24*1280}
    s_mul_i32 s23, s20, 160
k_pf:
    s_add_u32 s22, s22, s23
    s_waitcnt lgkmcnt(0)
    s_cmp_eq_u32 s18, 0
    s_cselect_b32 s40, s52, s54
    s_cselect_b32 s41, s53, s55
    s_cmp_ge_u32 s18, 2
    s_cselect_b32 s40, s56, s40
    s_cselect_b32 s41, s57, s41
    buffer_load_dword v41, v40, s[40:43], s22 offen
    buffer_load_dword v41, v40, s[40:43], s22 offen offset:64
    s_mov_b32 s8, s46
    s_mov_b32 s9, s47
    v_mov_b32 v36, -1
    v_mov_b32 v37, -1
    v_mov_b32 v38, -1
    v_mov_b32 v39, -1
    v_lshlrev_b32 v3, 4, v0
    s_cmp_lg_u32 s2, 0
    s_cbranch_scc1 k1_hloop
    s_lshl_b32 s20, s18, 12
    s_add_u32 s20, s20, {WS_KEY}
    buffer_store_dwordx4 v[36:39], v3, s[8:11], s20 offen sc1
    buffer_store_dwordx4 v[36:39], v3, s[8:11], s20 offen offset:1024 sc1
    buffer_store_dwordx4 v[36:39], v3, s[8:11], s20 offen offset:2048 sc1
    buffer_store_dwordx4 v[36:39], v3, s[8:11], s20 offen offset:3072 sc1
k1_hloop:
    s_lshl_b32 s16, s18, 5
    v_lshl_add_u32 v8, v2, 3, s16
    v_cvt_f32_u32 v8, v8
    s_mul_i32 s17, s18, 5120
    s_add_u32 s17, s17, {L_B}
    v_lshl_add_u32 v9, v0, 4, s17
    """)
    for j, (st, ph) in enumerate([(0, "0"), (1, "0"), (0, fb(0.25)), (1, fb(0.25)), (2, "v7")]):
        a(f"s_bitcmp1_b32 s19, {j}\ns_cbranch_scc0 k1_hs{j}")
        if ph.startswith("0x"): a(f"v_fmaak_f32 v10, v{4+st}, v8, {ph}")
        else: a(f"v_fma_f32 v10, v{4+st}, v8, {ph}")
        a(f"v_fract_f32 v10, v10\nv_add_f32 v11, v10, v{4+st}\nv_cos_f32 v12, v10\nv_cos_f32 v13, v11\ns_nop 0")
        for k in range(2, 8): a(f"v_fma_f32 v{12+k}, v{24+st}, v{11+k}, -v{10+k}")
        for k in range(4): a(f"v_cvt_pk_bf16_f32 v{20+k}, v{12+2*k}, v{13+2*k}")
        a(f"ds_write_b128 v9, v[20:23] offset:{1024*j}\nk1_hs{j}:")
    a(f"""
    s_cmp_eq_u32 s18, 4
    s_cbranch_scc1 k1_hdone
    s_lshl_b32 s19, 1, s18
    s_cmp_eq_u32 s18, 0
    s_cselect_b32 s19, 17, s19
    s_mov_b32 s18, 4
    s_branch k1_hloop
k1_hdone:
    s_cmp_lg_u32 s2, 0
    s_cbranch_scc1 k1_hd2
    s_waitcnt vmcnt(0)
k1_hd2:
    s_waitcnt lgkmcnt(0)
    ;STAMP 1
    s_barrier
    """)
    ptrs(a)
    a(f"""
    s_mov_b32 s50, 0
    s_cmp_ge_u32 s3, 6
    s_cbranch_scc1 k_wdma
    s_mul_i32 s16, s2, {2*SLOT}
    s_add_u32 s16, s16, {WS_SLOT}
    s_cmp_eq_u32 s3, 5
    s_cbranch_scc1 k_clr
    v_lshlrev_b32 v4, 2, v0
    s_cmp_lg_u32 s2, 0
    s_cbranch_scc1 k_go
    buffer_store_dword v36, v4, s[44:47], 0 offen sc1
    s_mov_b32 s16, {WS_ACT}
k_clr:
    s_add_u32 s17, s16, 4096
    buffer_store_dwordx4 v[36:39], v3, s[8:11], s16 offen sc1
    buffer_store_dwordx4 v[36:39], v3, s[8:11], s16 offen offset:1024 sc1
    buffer_store_dwordx4 v[36:39], v3, s[8:11], s16 offen offset:2048 sc1
    buffer_store_dwordx4 v[36:39], v3, s[8:11], s16 offen offset:3072 sc1
    buffer_store_dwordx4 v[36:39], v3, s[8:11], s17 offen sc1
    buffer_store_dwordx4 v[36:39], v3, s[8:11], s17 offen offset:1024 sc1
    s_branch k_hb2
k_go:
    buffer_load_dword v5, v4, s[44:47], 0 offen sc1
    s_waitcnt vmcnt(0)
    v_cmp_eq_u32 vcc, 0, v5
    """)
    spin(a, "k_go")
    a(f"""
k_hb2:
    s_barrier
    s_branch k2_pre
k_wdma:
    s_cmp_ge_u32 s2, 136
    s_cbranch_scc1 k_hb2
    s_sub_u32 s16, s3, 6
    s_cmp_eq_u32 s16, 0
    s_cselect_b32 s40, s52, s54
    s_cselect_b32 s41, s53, s55
    s_and_b32 s17, s2, 7
    s_lshr_b32 s18, s2, 3
    s_mul_i32 s19, s17, 12
    s_add_u32 s48, s19, s18
    s_movk_i32 s49, 3072
    s_mov_b32 s20, 0
    s_mov_b32 s21, 0
    s_cmp_lt_u32 s2, 96
    s_cbranch_scc1 k_wd1
    s_mov_b32 s40, s56
    s_mov_b32 s41, s57
    s_mul_i32 s19, s17, 5
    s_add_u32 s48, s19, s18
    s_sub_u32 s48, s48, 12
    s_movk_i32 s49, 1280
    s_mul_i32 s20, s16, {768*1280}
    s_mov_b32 s21, {32*1280}
k_wd1:
    s_lshl_b32 s48, s48, 5
    s_add_u32 s20, s20, s48
    s_mov_b32 s23, s20
    s_lshl_b32 s22, s49, 5
    v_lshrrev_b32 v3, 1, v0
    v_mul_lo_u32 v3, v3, s49
    v_and_b32 v4, 1, v0
    v_lshl_add_u32 v3, v4, 4, v3
    s_mul_i32 s24, s16, 20480
    s_add_u32 m0, s24, {L_W}
    """)
    srd(a, 40, 1966080)
    a("s_mov_b32 s25, 0\ns_waitcnt vmcnt(0)\n;STAMP 2\nk_wd2:")
    for j in range(5): a("buffer_load_dwordx4 v3, s[40:43], s20 offen lds\ns_addk_i32 m0, 1024\ns_add_u32 s20, s20, s22")
    a(f"""
    s_add_u32 s20, s20, s21
    s_add_u32 s25, s25, 1
    s_cmp_lt_u32 s25, 4
    s_cbranch_scc1 k_wd2
    s_barrier
    s_cmp_lt_u32 s2, 96
    s_cbranch_scc1 k2_pre
    s_lshl_b32 s24, s16, 12
    s_add_u32 m0, s24, {L_W5}
    s_add_u32 s20, s23, {160*1280}
    """)
    for j in range(4): a(f"buffer_load_dwordx4 v3, s[40:43], s20 offen lds\ns_addk_i32 m0, 1024\ns_add_u32 s20, s20, {192*1280}")

def body(a):
    entry(a); k1main(a); helper(a); k2(a); ffn(a); a("k_end:\ns_endpgm")
def main(out):
    import gen
    hdr = f"; FNet (2-D DFT as 3 MFMA stages) + LN + top-2 routed SwiGLU, one persistent launch; generated by my own script\n; @launch grid=(256,1,1) block=(512,1,1) lds={LDS}\n"
    hdr += '.amdgcn_target "amdgcn-amd-amdhsa--gfx950"\n'
    c, d = gen.kernel(NAME + "_kernel", body, 240)
    open(out, "w").write(hdr + c + '.section .rodata,"a"\n.p2align 6\n' + d)
if __name__ == "__main__":
    main(sys.argv[1] if len(sys.argv) > 1 else f"cdna_kernels/{NAME}.s")
```

```python
from gen import A, fb, vr, DPPF, XB, wave_red
WS_G, WS_SLOT, WS_KEY, WS_ACT = 0, 0x300000, 0x280000, 0x284000
SLOT = 3072
L_W = 121344
YP = 2576
L_KEY, L_TOP, L_PB, L_W5 = 24576, 24576 + 64, 28672, 32768
SPIN = 1 << 15
SC = "sc1"
def spin(a, lab, cnt="s50"):
    a(f"s_cbranch_vccz {lab}_ok\ns_add_u32 {cnt}, {cnt}, 1\ns_cmp_lt_u32 {cnt}, {SPIN}\ns_cbranch_scc1 {lab}\n{lab}_ok:")
def k2(a):
    a(f"""
k2_pre:
    s_lshr_b32 s14, s3, 2
    s_and_b32 s15, s3, 3
    s_sub_u32 s16, 64, s12
    s_cmp_eq_u32 s12, 0
    s_cselect_b32 s16, 32, s16
    s_cmp_eq_u32 s14, 0
    s_cselect_b32 s16, s12, s16
    s_mul_i32 s17, s16, 40960
    v_mul_u32_u24 v3, 1280, v2
    v_lshl_add_u32 v3, v1, 4, v3
    s_lshl_b32 s18, s15, 8
    s_add_u32 s18, s18, s17
    s_cmp_eq_u32 s3, 0
    s_cselect_b32 s19, 1, 0
    s_cmp_eq_u32 s3, 5
    s_cselect_b32 s19, 1, s19
    v_lshrrev_b32 v6, 2, v1
    s_lshl_b32 s20, s14, 2
    s_cmp_eq_u32 s12, 0
    s_cbranch_scc1 k2_u0
    s_lshl_b32 s21, s13, 2
    v_add_u32 v4, s21, v6
    s_mul_i32 s21, s14, 31
    v_xor_b32 v4, s21, v4
    s_xor_b32 s21, s20, 4
    v_add_u32 v5, s21, v2
    s_branch k2_t2done
k2_u0:
    v_lshrrev_b32 v4, 1, v6
    s_lshl_b32 s21, s13, 1
    v_add_u32 v4, s21, v4
    s_sub_u32 s21, 32, s14
    v_sub_u32 v7, s21, v4
    v_and_b32 v6, 1, v6
    v_cmp_eq_u32 vcc, 1, v6
    v_xor_b32 v5, 1, v2
    s_or_b32 s21, s13, s14
    v_cndmask_b32 v4, v4, v7, vcc
    v_cmp_eq_u32 vcc, 32, v4
    s_cmp_eq_u32 s21, 0
    s_cselect_b32 s21, 2, 0
    v_cndmask_b32 v4, v4, 16, vcc
    v_cmp_gt_u32 vcc, s21, v2
    s_nop 1
    v_cndmask_b32 v5, v5, v2, vcc
    v_add_u32 v5, s20, v5
k2_t2done:
    s_lshl_b32 s21, s15, 2
    s_nop 0
    v_readlane_b32 s22, v4, s21
    v_cvt_f32_u32 v6, v4
    v_cvt_f32_u32 v7, v2
    s_lshl_b32 s22, s22, 6
    s_add_u32 s22, s22, s16
    s_mul_i32 s23, s22, 1280
    v_lshlrev_b32 v28, 4, v0
    v_lshlrev_b32 v29, 2, v0
    v_mul_f32 v6, {fb(1/32)}, v6
    v_mul_f32 v7, v6, v7
    v_mul_f32 v6, 4.0, v6
    v_and_b32 v10, 3, v1
    """)
    for j in range(4): a(f"v_cmp_eq_u32 s[{36+2*(j&1)}:{37+2*(j&1)}], {j}, v10" + (f"\nv_cndmask_b32 v{11+j}, 0, -1, s[{36+2*((j-1)&1)}:{37+2*((j-1)&1)}]" if False else "") + f"\ns_nop 1\nv_cndmask_b32 v{12+j}, 0, -1, s[{36+2*(j&1)}:{37+2*(j&1)}]")
    GD, AC = 32, 128
    for ks in range(8):
        a(f"""v_cos_f32 v10, v7
        v_sin_f32 v11, v7
        v_add_f32 v7, v7, v6
        v_cvt_pk_bf16_f32 v10, v10, v11""")
        for j in range(4): a(f"v_and_b32 v{AC+4*ks+j}, v{12+j}, v10")
    def addrs(cbexpr, vd, vm):
        a(f"""
        v_add_u32 v10, {cbexpr}, v1
        v_mul_u32_u24 v11, 205, v10
        v_lshrrev_b32 v11, 11, v11
        v_mul_u32_u24 v16, 10, v11
        v_sub_u32 v16, v10, v16
        v_lshrrev_b32 v17, 2, v11
        v_mul_u32_u24 v17, 160, v17
        v_and_b32 v11, 3, v11
        v_add3_u32 v11, v11, v17, 1
        v_lshl_add_u32 v11, v16, 2, v11
        v_lshlrev_b32 v11, 2, v11
        v_add_u32 v{vd}, v18, v11
        v_sub_u32 v{vm}, v19, v11
        """)
    a(f"""
    v_add_u32 v18, s20, v2
    v_mul_u32_u24 v18, {YP}, v18
    v_mul_u32_u24 v19, {YP}, v5
    v_add_u32 v19, {4*520}, v19
    s_lshl_b32 s21, s15, 4
    s_mul_i32 s24, s3, {YP}
    v_mov_b32 v26, s24
    v_mov_b32 v27, 0
    ds_write_b32 v26, v27
    """)
    addrs("s21", 20, 21)
    addrs("64", 22, 23)
    a(f"""v_cmp_eq_u32 vcc, 15, v1
    v_add_u32 v24, {4*(640-520)}, v19
    s_nop 0
    v_cndmask_b32 v24, v23, v24, vcc
    s_mov_b32 s25, 0xffff0000
    s_mov_b32 s26, 0x3f803f80
    s_cmp_ge_u32 s3, 6
    s_cbranch_scc1 k2_nowait
    s_cmp_lg_u32 s3, 4
    s_cbranch_scc1 k2_go_ok
k2_go:
    buffer_load_dword v31, v29, s[44:47], 0 offen {SC}
    s_waitcnt vmcnt(0)
    v_cmp_eq_u32 vcc, 0, v31
    """)
    spin(a, "k2_go")
    a(f"""
    s_waitcnt vmcnt(0)
k2_nowait:
    ;STAMP 6
    s_barrier
    s_cmp_lt_u32 s3, 4
    s_cbranch_scc1 k2_s1w
    s_lshl_b32 s36, s3, 12
    s_add_u32 s36, s36, {WS_KEY - 16384}
    v_lshlrev_b32 v30, 6, v0
    s_cmp_lg_u32 s3, 4
    s_cbranch_scc1 k2_s1
    s_lshl_b32 s37, s2, 6
    s_add_u32 s37, s37, {WS_KEY}
    s_mov_b64 exec, 1
    buffer_store_dword v27, v27, s[8:11], s37 offen {SC}
    s_mov_b64 exec, -1
k2_s1:
    buffer_load_dword v31, v30, s[8:11], s36 offen {SC}
    s_waitcnt vmcnt(0)
    v_cmp_ne_u32 vcc, 0, v31
    """)
    spin(a, "k2_s1")
    a("""k2_s1w:
    buffer_load_dwordx4 v[100:103], v28, s[4:7], s23 offen
    buffer_load_dword v104, v29, s[4:7], s23 offen offset:1024
    buffer_load_dwordx4 v[108:111], v28, s[28:31], 0 offen
    buffer_load_dword v112, v29, s[28:31], 0 offen offset:1024
    s_barrier
    ;STAMP 7
    """)
    def loads(gd):
        for ks in range(8):
            a(f"buffer_load_dwordx4 {vr(gd+4*ks,4)}, v3, s[8:11], s18 offen" + ("\ns_addk_i32 s18, 5120" if ks < 7 else ""))
    def item(gd, acc, vd, vm, vm3, vmbase):
        for ks in range(8):
            a(f"s_waitcnt vmcnt({vmbase-ks})")
            a(f"v_mfma_f32_16x16x32_bf16 {vr(acc,4)}, {vr(AC+4*ks,4)}, {vr(gd+4*ks,4)}, {vr(acc,4) if ks else 0}")
        return [f"ds_write_b32 v{vd}, v{acc+i} offset:{160*i}" for i in range(4)] + \
               [f"ds_write_b32 v{vm3 if i == 3 else vm}, v{acc+i} offset:{160*(3-i)}" for i in range(4)]
    a("s_cmp_eq_u32 s19, 0\ns_cbranch_scc1 k2_one\ns_mov_b32 s21, s18\ns_add_u32 s18, s17, 1024")
    loads(GD + 32)
    a("s_mov_b32 s18, s21")
    loads(GD)
    w2 = item(GD + 32, 164, 22, 23, 24, 15)
    a("s_nop 7")
    for t in w2: a(t)
    a("s_branch k2_two\nk2_one:")
    loads(GD)
    a("k2_two:")
    w1 = item(GD, 160, 20, 21, 21, 7)
    Y, H = 32, 48
    a(f"""
    v_lshl_add_u32 v10, v0, 5, s24
    v_lshl_add_u32 v11, v0, 3, s24
    v_mov_b32 v12, 0
    v_mov_b32 v13, 0""")
    for j in range(2): a(f"v_lshlrev_b32 v{H+2*j}, 16, v{100+j}\nv_and_b32 v{H+2*j+1}, s25, v{100+j}")
    for t in w1: a(t)
    for j in range(2, 5): a(f"v_lshlrev_b32 v{H+2*j}, 16, v{100+j}\nv_and_b32 v{H+2*j+1}, s25, v{100+j}")
    a(f"""
    s_waitcnt lgkmcnt(0)
    ;STAMP 8
    s_barrier
    ds_read_b128 v[32:35], v10
    ds_read_b128 v[36:39], v10 offset:16
    ds_read_b64 v[40:41], v11 offset:2048
    s_waitcnt lgkmcnt(0)
    """)
    for j in range(10): a(f"v_add_f32 v{Y+j}, v{Y+j}, v{H+j}")
    for j in range(5): a(f"v_cvt_pk_bf16_f32 v{60+j}, v{Y+2*j}, v{Y+2*j+1}")
    for j in range(5): a(f"v_dot2c_f32_bf16 v12, s26, v{60+j}\nv_dot2c_f32_bf16 v13, v{60+j}, v{60+j}")
    for j in range(5):
        a(f"v_lshlrev_b32 v{H+2*j}, 16, v{60+j}\nv_and_b32 v{H+2*j+1}, s25, v{60+j}")
    wave_red(a, [12, 13])
    a(f"""
    s_nop 0
    v_readlane_b32 s36, v12, 63
    v_readlane_b32 s37, v13, 63
    v_mov_b32 v14, {fb(1/640)}
    v_mul_f32 v12, s36, v14
    v_mul_f32 v13, s37, v14
    v_fma_f32 v13, -v12, v12, v13
    v_max_f32 v13, 0, v13
    v_cvt_pk_bf16_f32 v13, v12, v13
    v_lshlrev_b32 v12, 16, v13
    v_and_b32 v13, s25, v13
    v_add_f32 v13, {fb(1e-5)}, v13
    v_cvt_pk_bf16_f32 v13, v13, v13
    v_and_b32 v13, s25, v13
    v_sqrt_f32 v13, v13
    s_nop 0
    v_cvt_pk_bf16_f32 v13, v13, v13
    v_and_b32 v13, s25, v13
    v_rcp_f32 v13, v13
    s_nop 0
    v_mul_f32 v12, v12, v13
    v_mov_b32 v14, 0
    """)
    for j in range(10): a(f"v_fma_f32 v{Y+j}, v{H+j}, v13, -v12")
    for j in range(5): a(f"v_cvt_pk_bf16_f32 v{68+j}, v{Y+2*j}, v{Y+2*j+1}")
    for j in range(5): a(f"v_dot2c_f32_bf16 v14, v{68+j}, v{108+j}")
    for j in range(5):
        a(f"v_lshlrev_b32 v{Y+2*j}, 16, v{68+j}\nv_and_b32 v{Y+2*j+1}, s25, v{68+j}")
    b = A(); wave_red(b, [14]); red = [t for t in b.l if "dpp" in t]
    steps = [f"v_add_f32 v{Y+j}, v{Y+j}, v{H+j}" for j in range(10)] + ["v_min_u32 v60, -2, v60", "v_min_u32 v61, -2, v61"]
    for k in range(6):
        a(red[k]); a(steps[2*k]); a(steps[2*k+1])
    a(f"""
    v_readlane_b32 s36, v14, 63
    s_lshl_b32 s37, s3, 2
    v_mov_b32 v15, s37
    v_cvt_pk_bf16_f32 v14, s36, s36
    v_ashrrev_i32 v16, 31, v14
    v_or_b32 v16, 0x80000000, v16
    v_xor_b32 v14, v14, v16
    v_and_b32 v14, s25, v14
    v_or_b32 v16, s3, v14
    ds_write_b32 v15, v16 offset:{L_KEY}
    v_and_b32 v15, 28, v29
    """)
    for j in range(5): a(f"v_cvt_pk_bf16_f32 v{76+j}, v{Y+2*j}, v{Y+2*j+1}")
    for j in (62, 63, 64, 68, 69, 70, 71, 72): a(f"v_min_u32 v{j}, -2, v{j}")
    a(f"""
    s_waitcnt lgkmcnt(0)
    s_barrier
    ds_read_b32 v15, v15 offset:{L_KEY}
    v_mov_b32 v17, s22
    s_mov_b32 s51, -1
    s_waitcnt lgkmcnt(0)
    v_cmp_gt_u32 vcc, v15, v16
    s_bcnt1_i32_b32 s36, vcc_lo
    s_lshr_b32 s36, s36, 2
    s_cmp_ge_u32 s36, 2
    s_cbranch_scc1 k2_plain
    s_lshl_b32 s37, s2, 1
    s_add_u32 s37, s36, s37
    v_or_b32 v14, s37, v14
    s_mul_i32 s37, s37, {SLOT}
    s_add_u32 s37, s37, {WS_SLOT}
    s_lshl_b32 s38, s2, 4
    s_add_u32 s36, s36, s38
    s_lshl_b32 s36, s36, 2
    s_add_u32 s36, s36, {WS_KEY + 8}
    buffer_store_dwordx4 v[68:71], v28, s[8:11], s37 offen sc1
    buffer_store_dword v72, v29, s[8:11], s37 offen offset:1024 sc1
    s_mov_b64 exec, 1
    buffer_store_dword v14, v27, s[8:11], s36 offen {SC}
    buffer_store_dword v17, v27, s[8:11], s37 offen offset:2560 sc1
    s_mov_b64 exec, -1
    buffer_store_dwordx4 v[60:63], v28, s[8:11], s37 offen offset:1280 sc1
    buffer_store_dword v64, v29, s[8:11], s37 offen offset:2304 sc1
    v_readfirstlane_b32 s51, v14
    s_branch k2_s2
k2_plain:
    ;STAMP 9
    s_cmp_ge_u32 s36, 6
    s_cbranch_scc1 k2_st
    v_lshlrev_b32 v4, 6, v0
    s_lshl_b32 s24, s36, 12
    s_add_u32 s24, s24, {WS_KEY - 8192}
    s_lshl_b32 s36, s36, 3
    v_mov_b32 v5, s36
k2_s2p:
    buffer_load_dwordx2 v[8:9], v4, s[8:11], s24 offen offset:8 {SC}
    s_waitcnt vmcnt(0)
    v_max_u32 v16, v8, v9
    v_cmp_eq_u32 vcc, -1, v16
    """)
    spin(a, "k2_s2p")
    a("v_mov_b32 v19, v16\nv_min_u32 v17, v8, v9")
    wave_red(a, [19], "v_max_u32")
    a("s_nop 0\nv_readlane_b32 s20, v19, 63\ns_nop 1\nv_cmp_eq_u32 vcc, s20, v16\ns_nop 1\nv_cndmask_b32 v18, v16, v17, vcc")
    wave_red(a, [18], "v_max_u32")
    a(f"""
    v_mov_b32 v16, s20
    v_readlane_b32 s21, v18, 63
    s_nop 1
    v_mov_b32 v17, s21
    ds_write_b64 v5, v[16:17] offset:{L_TOP - 16}
k2_st:
    buffer_store_dwordx4 v[76:79], v28, s[32:35], s23 offen
    buffer_store_dword v80, v29, s[32:35], s23 offen offset:1024
k2_s2:
    s_waitcnt lgkmcnt(0)
    s_barrier
    ds_read_b128 v[8:11], v27 offset:{L_TOP}
    ds_read_b128 v[12:15], v27 offset:{L_TOP + 16}
    s_waitcnt lgkmcnt(0)
    ;STAMP 10
    v_min_u32 v16, v8, v10
    v_min_u32 v17, v12, v14
    v_max3_u32 v9, v9, v11, v16
    v_max3_u32 v13, v13, v15, v17
    v_max_u32 v8, v8, v10
    v_max_u32 v12, v12, v14
    v_min_u32 v16, v8, v12
    v_max3_u32 v17, v9, v13, v16
    v_max_u32 v16, v8, v12
    s_nop 0
    v_readfirstlane_b32 s21, v17
    v_readfirstlane_b32 s20, v16
    s_cmp_ge_u32 s51, s21
    s_cbranch_scc1 k2_sel
    buffer_store_dwordx4 v[76:79], v28, s[32:35], s23 offen
    buffer_store_dword v80, v29, s[32:35], s23 offen offset:1024
k2_sel:
    s_cmp_ge_u32 s2, 136
    s_cbranch_scc1 k_end
    """)

def ffn(a):
    AF, BF, PB = 32, 88, L_PB
    a(f"""
    s_and_b32 s22, s20, 0x1ff
    s_and_b32 s23, s21, 0x1ff
    s_mul_i32 s22, s22, {SLOT}
    s_mul_i32 s23, s23, {SLOT}
    v_mov_b32 v16, s22
    v_mov_b32 v17, s23
    v_lshrrev_b32 v6, 2, v1
    v_lshl_add_u32 v6, v2, 3, v6
    v_lshlrev_b32 v6, 5, v6
    v_and_b32 v7, 3, v1
    v_lshl_add_u32 v6, v7, 3, v6
    s_mul_i32 s19, s3, 5120
    s_add_u32 s19, s19, {L_W}
    v_add_u32 v7, s19, v6
    s_and_b32 s17, s2, 7
    s_lshr_b32 s18, s2, 3
    s_mov_b32 s26, {WS_SLOT}
    v_cmp_gt_u32 vcc, 8, v1
    s_cmp_ge_u32 s2, 96
    s_cbranch_scc1 k4
    s_and_b32 s16, s3, 3
    s_mul_i32 s16, s16, 320
    v_cndmask_b32 v5, v17, v16, vcc
    v_lshl_add_u32 v5, v2, 4, v5
    s_add_u32 s26, s26, s16
    s_mul_i32 s17, s17, 12
    """)
    def common(nm, nks, soff):
        for j in range(nks):
            va, o = ("v7", 1024*j) if j < 5 else ("v6", L_W5)
            a(f"ds_read_b64_tr_b16 {vr(BF+4*j,2)}, {va} offset:{o}\nds_read_b64_tr_b16 {vr(BF+4*j+2,2)}, {va} offset:{o+128}")
        a(f"{nm}_p:")
        for j in range(nks): a(f"buffer_load_dwordx4 {vr(AF+4*j,4)}, v5, s[8:11], {soff} offen offset:{(64 if nks == 5 else 128)*j} {SC}")
        a("s_waitcnt vmcnt(0)")
        n = 4*nks
        a(f"v_max3_u32 v8, v{AF}, v{AF+1}, v{AF+2}\nv_max3_u32 v9, v{AF+3}, v{AF+4}, v{AF+5}")
        for k in range(6, n, 4): a(f"v_max3_u32 v8, v8, v{AF+k}, v{AF+k+1}" + (f"\nv_max3_u32 v9, v9, v{AF+k+2}, v{AF+k+3}" if k+2 < n else ""))
        a("v_max_u32 v8, v8, v9\nv_cmp_eq_u32 vcc, -1, v8")
        spin(a, nm + "_p")
        a(f";STAMP 11\ns_lshl_b32 s27, s3, 8\nv_lshl_add_u32 v7, v0, 2, s27\ns_waitcnt lgkmcnt(0)")
        for j in range(nks):
            a(f"v_mfma_f32_16x16x32_bf16 v[84:87], {vr(AF+4*j,4)}, {vr(BF+4*j,4)}, {'v[84:87]' if j else 0}")
        a(f"""
        s_add_u32 s18, s18, s17
        s_lshl_b32 s18, s18, 5
        s_nop 5
        ds_write_b32 v7, v84 offset:{PB}
        s_waitcnt lgkmcnt(0)
        s_barrier
        s_cmp_lg_u32 s3, 0
        s_cbranch_scc1 k_end
        """)
        for w in range(8): a(f"ds_read_b32 v{32+w}, v29 offset:{PB+256*w}")
        a("v_and_b32 v7, " + ("17" if nm == "k3" else "16") + ", v0\nv_cmp_eq_u32 vcc, 0, v7\ns_waitcnt lgkmcnt(0)")
        a("v_add_f32 v32, v32, v33\nv_add_f32 v34, v34, v35\nv_add_f32 v36, v36, v37\nv_add_f32 v38, v38, v39\nv_add_f32 v24, v32, v34\nv_add_f32 v25, v36, v38")
    common("k3", 5, "s26")
    a(f"""
    v_cvt_pk_bf16_f32 v24, v24, v25
    v_lshlrev_b32 v25, 16, v24
    v_and_b32 v24, s25, v24
    v_mul_f32 v26, {fb(-1.4426950408889634)}, v25
    v_exp_f32 v26, v26
    v_lshrrev_b32 v16, 5, v0
    v_add_f32 v26, 1.0, v26
    v_rcp_f32 v26, v26
    v_lshlrev_b32 v16, 5, v16
    v_mul_f32 v25, v25, v26
    v_cvt_pk_bf16_f32 v25, v25, v25
    v_and_b32 v25, s25, v25
    v_mul_f32 v24, v24, v25
    v_lshl_add_u32 v16, v1, 1, v16
    s_lshl_b32 s18, s18, 1
    s_add_u32 s18, s18, {WS_ACT}
    v_mov_b32_dpp v25, v24 quad_perm:[1,1,3,3] {DPPF}
    v_cvt_pk_bf16_f32 v24, v24, v25
    v_min_u32 v24, -2, v24
    s_and_saveexec_b64 s[36:37], vcc
    buffer_store_dword v24, v16, s[8:11], s18 offen {SC}
    s_endpgm
k4:
    s_mul_i32 s16, s3, 768
    s_add_u32 s16, s16, {WS_ACT}
    v_cndmask_b32 v5, 3072, 0, vcc
    """.replace("v_cndmask_b32 v5, 3072, 0, vcc", "v_lshrrev_b32 v5, 3, v1\nv_and_b32 v4, 2, v2\nv_add_u32 v5, v5, v4\nv_lshlrev_b32 v5, 5, v5\nv_and_b32 v4, 1, v2"))
    a(f"""
    v_lshl_add_u32 v5, v4, 4, v5
    s_lshl_b32 s19, s3, 10
    v_add_u32 v6, s19, v6
    s_mul_i32 s17, s17, 5
    s_sub_u32 s18, s18, 12
    s_add_u32 s19, s18, s17
    s_lshl_b32 s19, s19, 5
    v_cmp_gt_u32 vcc, 32, v0
    v_mov_b32 v18, s20
    v_mov_b32 v19, s21
    v_cndmask_b32 v16, v17, v16, vcc
    v_cndmask_b32 v18, v19, v18, vcc
    v_and_b32 v17, 14, v1
    v_lshl_add_u32 v17, v17, 1, v16
    v_add_u32 v17, s19, v17
    """)
    a(f"""
    s_cmp_lg_u32 s3, 0
    s_cbranch_scc1 k4_h_ok
k4_h:
    buffer_load_dword v20, v17, s[8:11], s26 offen {SC}
    buffer_load_dword v21, v17, s[8:11], s26 offen offset:1280 {SC}
    buffer_load_dword v22, v16, s[8:11], s26 offen offset:2560 {SC}
    s_waitcnt vmcnt(0)
    v_max3_u32 v8, v20, v21, v22
    v_cmp_eq_u32 vcc, -1, v8
    """)
    spin(a, "k4_h")
    common("k4", 6, "s16")
    a(f"""
    v_ashrrev_i32 v19, 31, v18
    v_not_b32 v19, v19
    v_or_b32 v19, 0x80000000, v19
    v_xor_b32 v18, v18, v19
    v_and_b32 v18, s25, v18
    v_mul_f32 v18, {fb(-1.4426950408889634)}, v18
    v_exp_f32 v18, v18
    v_add_f32 v24, v24, v25
    v_add_f32 v18, 1.0, v18
    v_rcp_f32 v18, v18
    v_and_b32 v19, 1, v1
    v_lshlrev_b32 v19, 4, v19
    v_cvt_pk_bf16_f32 v24, v24, v18
    v_lshlrev_b32 v25, 16, v24
    v_and_b32 v24, s25, v24
    v_mul_f32 v24, v24, v25
    v_cvt_pk_bf16_f32 v24, v24, v24
    v_and_b32 v24, s25, v24
    v_lshrrev_b32 v20, v19, v20
    v_lshrrev_b32 v21, v19, v21
    v_lshlrev_b32 v20, 16, v20
    v_lshlrev_b32 v21, 16, v21
    v_and_b32 v22, 0x7ff, v22
    v_mul_u32_u24 v22, 1280, v22
    v_add_f32 v24, v24, v20
    v_cvt_pk_bf16_f32 v24, v24, v24
    v_and_b32 v24, s25, v24
    v_add_f32 v24, v24, v21
    v_cvt_pk_bf16_f32 v24, v24, v24
    v_lshl_add_u32 v22, v1, 1, v22
    s_and_saveexec_b64 s[36:37], vcc
    buffer_store_short v24, v22, s[32:35], s18 offen
    """)
```

```python
import sys
from gen2b import k2, ffn, spin
from gen import A, fb, vr, DPPF, NAME, XB, wave_red
WS_G, WS_SLOT, WS_KEY, WS_ACT = 0, 0x300000, 0x280000, 0x284000
WS_SIZE = 0x1000000
SLOT = 3072
L_B, L_A, L_W = 81920, 107520, 121344
LDS = L_W + 40960
YP = 2576
L_KEY, L_TOP, L_PB, L_W5 = 24576, 24576 + 64, 28672, 32768
SPIN = 1 << 15
SC = "sc0 sc1"
def srd(a, d, nbytes): a(f"s_mov_b32 s{d+2}, {nbytes}\ns_mov_b32 s{d+3}, 0x00020000")

def entry(a):
    a(f"""
    s_cmp_ge_u32 s2, 256
    s_cbranch_scc1 k_end
    s_load_dwordx2 s[4:5], s[0:1], 0
    s_load_dwordx4 s[44:47], s[0:1], 88
    s_load_dwordx8 s[52:59], s[0:1], 56
    s_load_dwordx2 s[28:29], s[0:1], 48
    v_lshrrev_b32 v1, 6, v0
    v_and_b32 v0, 63, v0
    s_and_b32 s12, s2, 7
    s_lshr_b32 s13, s2, 6
    v_readfirstlane_b32 s3, v1
    s_lshl_b32 s13, s13, 3
    s_add_u32 s12, s12, s13
    s_bfe_u32 s13, s2, 0x30003
    s_and_b32 s14, s13, 3
    s_add_u32 s14, s14, 1
    s_lshr_b32 s15, s13, 2
    v_and_b32 v1, 15, v0
    v_lshrrev_b32 v2, 4, v0
    """)
    srd(a, 4, XB); srd(a, 8, WS_SIZE)
    a("s_cmp_lt_u32 s3, 4\ns_cbranch_scc1 k_main")
def ptrs(a):
    a("s_mov_b32 s8, s46\ns_mov_b32 s9, s47\ns_mov_b32 s32, s58\ns_mov_b32 s33, s59")
    srd(a, 44, 256); srd(a, 28, 1280); srd(a, 32, XB)

NPRE = 8
def k1main(a):
    a(f"""
k_main:
    v_lshrrev_b32 v3, 2, v0
    s_lshl_b32 s16, s3, 4
    v_add_u32 v3, s16, v3
    s_mov_b32 s17, 40960
    v_mul_lo_u32 v3, v3, s17
    v_lshrrev_b32 v4, 5, v0
    v_mul_u32_u24 v4, 3, v4
    v_and_b32 v5, 3, v0
    v_xor_b32 v4, v4, v5
    v_lshl_add_u32 v3, v4, 4, v3
    s_mul_i32 s18, s12, 1280
    s_mul_i32 s19, s3, 20480
    s_mov_b32 m0, s19
    s_add_u32 s20, s18, {64*NPRE}
    s_lshl_b32 s21, s13, 2
    s_add_u32 s21, s21, s3
    s_mul_i32 s21, s21, {2*40960}
    s_add_u32 s21, s21, s18
    v_lshrrev_b32 v6, 5, v0
    v_mul_u32_u24 v6, 40960, v6
    v_and_b32 v7, 31, v0
    v_med3_u32 v7, v7, {NPRE}, 19
    v_lshl_add_u32 v6, v7, 6, v6
    s_waitcnt lgkmcnt(0)
    buffer_load_dword v239, v6, s[4:7], s21 offen
k1_dma:
    buffer_load_dwordx4 v3, s[4:7], s18 offen lds
    s_addk_i32 s18, 64
    s_addk_i32 m0, 1024
    s_cmp_lt_u32 s18, s20
    s_cbranch_scc1 k1_dma
    """)
    ptrs(a)
    CR, CI, CN = 200, 208, 216
    B, X, P, Q, R, S, SQ, ONE, T = 20, 120, 132, 152, 172, 192, 196, 224, 228
    a(f"""
    v_add_u32 v4, s16, v1
    v_cvt_f32_u32 v4, v4
    v_lshlrev_b32 v5, 8, v2
    v_add_u32 v5, s12, v5
    v_cvt_f32_u32 v5, v5
    s_mul_i32 s21, s14, 3
    v_cvt_f32_u32 v6, s21
    v_mul_f32 v5, v4, v5
    v_mul_f32 v6, {fb(0.25)}, v6
    v_mul_f32 v7, {fb(1/64)}, v4
    v_fmac_f32 v6, {fb(1/2048)}, v5
    v_fract_f32 v6, v6
    s_and_b32 s21, s14, 1
    s_lshl_b32 s22, s21, 31
    s_or_b32 s22, s22, 0x3f800000
    s_and_b32 s23, s14, 2
    s_lshl_b32 s23, s23, 30
    s_or_b32 s23, s23, 0x3f800000
    s_cmp_eq_u32 s21, 1
    s_cselect_b32 s24, s23, 0
    s_cselect_b32 s23, 0, s23
    s_xor_b32 s25, s24, 0x80000000
    v_mov_b32 v12, s24
    v_mov_b32 v13, s25
    v_cmp_gt_u32 vcc, 8, v1
    v_lshrrev_b32 v4, 3, v1
    v_mul_u32_u24 v4, 3, v4
    v_cndmask_b32 v12, v12, v13, vcc
    v_xor_b32 v4, v4, v2
    v_lshlrev_b32 v4, 4, v4
    v_lshl_add_u32 v4, v1, 6, v4
    v_add_u32 v4, s19, v4
    v_lshlrev_b32 v19, 4, v0
    v_add_u32 v19, {L_B}, v19
    v_lshlrev_b32 v13, 2, v2
    v_sub_u32 v13, v1, v13
    v_mov_b32 v18, 1.0
    """)
    for i in range(4): a(f"v_mov_b32 v{ONE+i}, 0x3f803f80\nv_cmp_eq_u32 s[{36+2*i}:{37+2*i}], {i}, v13")
    a("s_mov_b32 s50, 0\n;STAMP 1\ns_barrier\n;STAMP 2")
    xb = lambda i: [120, 124, 128, 172, 176][i] if i < 5 else X + 4 * (i % 3)
    for f in range(25):
        a(f"ds_read_b128 {vr(B+4*f,4)}, v19 offset:{1024*f}")
        if f % 5 == 4: a(f"s_waitcnt vmcnt({NPRE-1-f//5})\nds_read_b128 {vr(xb(f//5),4)}, v4 offset:{1024*(f//5)}")
    fill = {i: [] for i in range(20)}
    for j in range(20):
        fill[6 + j // 5].append(f"v_mul_f32 v{P+j}, s22, v{P+j}")
        fill[11 + j // 5].append(f"v_mul_f32 v{Q+j}, s22, v{Q+j}")
    slots = [0, 1, 2, 3, 4, 5, 10, 15]
    for ks in range(2):
        for jp in range(4):
            f = fill[slots[4*ks+jp]]
            if ks and not jp: f += ["v_fmac_f32 v6, 0x41c00000, v7", "v_fract_f32 v6, v6"]
            f += f"""v_cos_f32 v8, v6
            v_sin_f32 v9, v6
            v_add_f32 v6, v6, v7
            v_cos_f32 v10, v6
            v_sin_f32 v11, v6
            v_add_f32 v6, v6, v7
            v_cvt_pk_bf16_f32 v{CR+4*ks+jp}, v8, v10
            v_cvt_pk_bf16_f32 v{CN+4*ks+jp}, v9, v11
            v_cvt_pk_bf16_f32 v{CI+4*ks+jp}, -v9, -v11""".split("\n")
    rot = []
    for b in range(2):
        for i in range(4):
            re, im = P + 4*b + i, P + 8 + 4*b + i
            rot += [f"v_mul_f32 v{R+4*b+i}, s23, v{re}", f"v_mul_f32 v{R+8+4*b+i}, s23, v{im}",
                    f"v_fmac_f32 v{R+4*b+i}, s25, v{im}", f"v_fmac_f32 v{R+8+4*b+i}, s24, v{re}"]
    for i in range(4): rot += [f"v_mul_f32 v{R+16+i}, s23, v{P+16+i}"]
    for i in range(4): rot += [f"v_fmac_f32_dpp v{R+16+i}, v{P+16+i}, v12 row_ror:8 {DPPF}"]
    for j, t in enumerate(rot): fill[16 + min(j // 14, 2)].append(t)
    for i in range(20):
        q, ks = divmod(i, 5)
        x = xb(i)
        if i + NPRE < 20: a("buffer_load_dwordx4 v3, s[4:7], s18 offen lds\ns_addk_i32 m0, 1024\ns_addk_i32 s18, 64")
        if 3 <= i <= 17: a(f"s_waitcnt vmcnt({min(i+NPRE+1, 20)-i-3})\nds_read_b128 {vr(xb(i+2),4)}, v4 offset:{1024*(i+2)}")
        a(f"s_waitcnt lgkmcnt({[15, 15, 12, 7][i] if i < 4 else min(2, 19-i)})")
        acc = P if q % 2 == 0 else Q
        mf = []
        for b in range(5):
            c = "0" if (q < 2 and ks == 0) else vr(acc+4*b, 4)
            mf.append(f"v_mfma_f32_16x16x32_bf16 {vr(acc+4*b,4)}, {vr(x,4)}, {vr(B+20*ks+4*b,4)}, {c}")
        st = [f"v_mfma_f32_16x16x32_bf16 {vr(SQ,4)}, {vr(x,4)}, {vr(x,4)}, {vr(SQ,4) if i else 0}",
              f"v_mfma_f32_16x16x32_bf16 {vr(S,4)}, {vr(x,4)}, {vr(ONE,4)}, {vr(S,4) if i else 0}"]
        if i < 19:
            mf = mf + st; fl = fill[i]
            per = -(-len(fl) // 7)
            for b in range(7):
                a(mf[b])
                for t in fl[b*per:(b+1)*per]: a(t)
        else:
            a(st[0]); a(st[1]); a(mf[0]); a(mf[1])
            a(f"""
            s_lshl_b32 s27, s3, 5
            s_add_u32 s27, s27, {L_A}
            v_lshl_add_u32 v6, v2, 3, s27
            v_mul_u32_u24 v7, 144, v1
            v_add_u32 v7, v6, v7
            v_and_b32 v8, 7, v1
            v_cndmask_b32 v14, 0, v{SQ}, s[36:37]
            v_cndmask_b32 v14, v14, v{SQ+1}, s[38:39]
            v_cndmask_b32 v14, v14, v{SQ+2}, s[40:41]
            v_cndmask_b32 v14, v14, v{SQ+3}, s[42:43]
            v_mul_u32_u24 v8, 144, v8
            v_lshrrev_b32 v9, 3, v1
            v_mfma_f32_16x16x4_f32 {vr(SQ,4)}, v14, v18, 0
            v_mul_u32_u24 v9, 6912, v9
            v_add3_u32 v6, v6, v8, v9""")
            a(mf[2]); [a(f"v_mul_f32 v{S+k}, {fb(1/640)}, v{S+k}") for k in range(4)]
            a(mf[3]); a(mf[4])
    a(";STAMP 3\ns_nop 3")
    for i in range(4): a(f"v_mul_f32 v{SQ+i}, {fb(1/640)}, v{SQ+i}")
    for i in range(4): a(f"v_fma_f32 v{S+i}, -v{S+i}, v{S+i}, v{SQ+i}")
    for i in range(4): a(f"v_max_f32 v{S+i}, 0, v{S+i}")
    def rnd4():
        a(f"""v_cvt_pk_bf16_f32 v{T}, v{S}, v{S+1}
        v_cvt_pk_bf16_f32 v{T+1}, v{S+2}, v{S+3}
        v_lshlrev_b32 v{S}, 16, v{T}
        v_and_b32 v{S+1}, 0xffff0000, v{T}
        v_lshlrev_b32 v{S+2}, 16, v{T+1}
        v_and_b32 v{S+3}, 0xffff0000, v{T+1}""")
    rnd4()
    for i in range(4): a(f"v_add_f32 v{S+i}, {fb(1e-5)}, v{S+i}")
    rnd4()
    for i in range(4): a(f"v_sqrt_f32 v{S+i}, v{S+i}")
    for i in range(4): a(f"v_add_f32 v{Q+i}, v{Q+i}, v{R+i}")
    rnd4()
    for i in range(4): a(f"v_rcp_f32 v{S+i}, v{S+i}")
    for i in range(4, 20): a(f"v_add_f32 v{Q+i}, v{Q+i}, v{R+i}")
    for b in range(5):
        for i in range(4): a(f"v_mul_f32 v{Q+4*b+i}, v{Q+4*b+i}, v{S+i}")
        a(f"v_cvt_pk_bf16_f32 v{R+4*b}, v{Q+4*b}, v{Q+4*b+1}\nv_cvt_pk_bf16_f32 v{R+4*b+1}, v{Q+4*b+2}, v{Q+4*b+3}")
        if b < 4: a(f"ds_write_b64 v7, {vr(R+4*b,2)} offset:{(b&1)*16*144 + (b>>1)*6912}")
        else: a(f"ds_write_b64 v6, {vr(R+4*b,2)} offset:{32*144}")
    a(f"""
    v_mul_u32_u24 v7, 144, v1
    v_lshl_add_u32 v7, v2, 4, v7
    v_add_u32 v7, {L_A}, v7
    v_lshl_add_u32 v8, v2, 2, s16
    v_mul_lo_u32 v8, v8, s17
    s_mul_i32 s18, s12, 1280
    s_mul_i32 s19, s13, 160
    s_add_u32 s18, s18, s19
    v_lshl_add_u32 v8, v1, 2, v8
    v_add_u32 v8, s18, v8
    v_bfrev_b32 v9, 1
    v_cndmask_b32 v9, v9, v8, vcc
    s_mov_b32 s18, {2*40960}
    s_mov_b32 s19, {3*40960}
    s_waitcnt lgkmcnt(0)
    s_barrier
    ;STAMP 4
    """)
    D = 20
    for mb in range(3):
        for p in range(2):
            for ks in range(2):
                a(f"ds_read_b128 {vr(D+16*mb+8*p+4*ks,4)}, v7 offset:{mb*16*144 + p*6912 + 64*ks}")
    O = 70
    def outs(m):
        dr, di = O + 8*m, O + 8*m + 4
        for i in range(4):
            a(f"v_cvt_pk_bf16_f32 v{100+4*m+i}, v{dr+i}, v{di+i}")
            so = ["0", "s17", "s18", "s19"][i]
            a(f"buffer_store_dword v{100+4*m+i}, v{9 if m == 2 else 8}, s[8:11], {so} offen offset:{64*m} sc1")
    for mb in range(3):
        d = D + 16*mb; dr, di = O + 8*mb, O + 8*mb + 4
        a(f"""s_waitcnt lgkmcnt({10-4*mb})
        v_mfma_f32_16x16x32_bf16 {vr(dr,4)}, {vr(CR,4)}, {vr(d,4)}, 0
        v_mfma_f32_16x16x32_bf16 {vr(di,4)}, {vr(CI,4)}, {vr(d,4)}, 0
        v_mfma_f32_16x16x32_bf16 {vr(dr,4)}, {vr(CR+4,4)}, {vr(d+4,4)}, {vr(dr,4)}
        v_mfma_f32_16x16x32_bf16 {vr(di,4)}, {vr(CI+4,4)}, {vr(d+4,4)}, {vr(di,4)}
        s_waitcnt lgkmcnt({8-4*mb})
        v_mfma_f32_16x16x32_bf16 {vr(dr,4)}, {vr(CN,4)}, {vr(d+8,4)}, {vr(dr,4)}
        v_mfma_f32_16x16x32_bf16 {vr(di,4)}, {vr(CR,4)}, {vr(d+8,4)}, {vr(di,4)}
        v_mfma_f32_16x16x32_bf16 {vr(dr,4)}, {vr(CN+4,4)}, {vr(d+12,4)}, {vr(dr,4)}
        v_mfma_f32_16x16x32_bf16 {vr(di,4)}, {vr(CR+4,4)}, {vr(d+12,4)}, {vr(di,4)}""")
        if mb: outs(mb - 1)
    a("s_nop 7")
    outs(2)
    a(";STAMP 5")

def helper(a):
    a(f"""
k_helper:
    s_getpc_b64 s[20:21]
k_pc:
    s_sub_u32 s20, s20, k_pc-{NAME}_kernel
    s_subb_u32 s21, s21, 0
    s_lshl_b32 s16, s3, 12
    s_sub_u32 s16, s16, 16384
    v_lshl_add_u32 v40, v0, 6, s16
    v_min_u32 v40, k_end-{NAME}_kernel, v40
    global_load_dword v41, v40, s[20:21]
    s_mul_i32 s16, s15, 160
    s_add_u32 s16, s16, s14
    v_and_b32 v3, 3, v1
    v_mul_u32_u24 v3, 40, v3
    v_add_u32 v3, s16, v3
    v_and_b32 v4, 12, v1
    v_add_u32 v4, v3, v4
    v_add_u32 v5, 16, v4
    v_and_b32 v6, 4, v1
    v_add3_u32 v6, v3, v6, 32
    v_cvt_f32_u32 v4, v4
    v_cvt_f32_u32 v5, v5
    v_cvt_f32_u32 v6, v6
    v_lshrrev_b32 v7, 3, v1
    v_cvt_f32_u32 v7, v7
    v_mul_f32 v4, {fb(1/640)}, v4
    v_mul_f32 v5, {fb(1/640)}, v5
    v_mul_f32 v6, {fb(1/640)}, v6
    v_mul_f32 v7, {fb(0.25)}, v7
    v_cos_f32 v24, v4
    v_cos_f32 v25, v5
    v_cos_f32 v26, v6
    s_sub_u32 s18, s3, 4
    s_movk_i32 s19, 31
    v_add_f32 v24, v24, v24
    v_add_f32 v25, v25, v25
    v_add_f32 v26, v26, v26
k1_hloop:
    s_lshl_b32 s16, s18, 5
    v_lshl_add_u32 v8, v2, 3, s16
    v_cvt_f32_u32 v8, v8
    s_mul_i32 s17, s18, 5120
    s_add_u32 s17, s17, {L_B}
    v_lshl_add_u32 v9, v0, 4, s17
    """)
    for j, (st, ph) in enumerate([(0, "0"), (1, "0"), (0, fb(0.25)), (1, fb(0.25)), (2, "v7")]):
        a(f"s_bitcmp1_b32 s19, {j}\ns_cbranch_scc0 k1_hs{j}")
        if ph.startswith("0x"): a(f"v_fmaak_f32 v10, v{4+st}, v8, {ph}")
        else: a(f"v_fma_f32 v10, v{4+st}, v8, {ph}")
        a(f"v_fract_f32 v10, v10\nv_add_f32 v11, v10, v{4+st}\nv_cos_f32 v12, v10\nv_cos_f32 v13, v11\ns_nop 0")
        for k in range(2, 8): a(f"v_fma_f32 v{12+k}, v{24+st}, v{11+k}, -v{10+k}")
        for k in range(4): a(f"v_cvt_pk_bf16_f32 v{20+k}, v{12+2*k}, v{13+2*k}")
        a(f"ds_write_b128 v9, v[20:23] offset:{1024*j}\nk1_hs{j}:")
    a(f"""
    s_cmp_eq_u32 s18, 4
    s_cbranch_scc1 k1_hdone
    s_lshl_b32 s19, 1, s18
    s_cmp_eq_u32 s18, 0
    s_cselect_b32 s19, 17, s19
    s_mov_b32 s18, 4
    s_branch k1_hloop
k1_hdone:
    v_mov_b32 v36, -1
    v_mov_b32 v37, -1
    v_mov_b32 v38, -1
    v_mov_b32 v39, -1
    v_lshlrev_b32 v3, 4, v0
    s_waitcnt lgkmcnt(0)
    ;STAMP 1
    s_barrier
    """)
    ptrs(a)
    a(f"""
    s_lshl_b32 s51, s2, 3
    s_add_u32 s51, s51, s3
    s_cmp_lg_u32 s51, 4
    s_cbranch_scc1 k1_hd2
    s_mov_b32 s20, {WS_KEY}
k_clr0:
    buffer_store_dwordx4 v[36:39], v3, s[8:11], s20 offen sc1
    s_addk_i32 s20, 1024
    s_cmp_lt_u32 s20, {WS_KEY + 16384}
    s_cbranch_scc1 k_clr0
    v_lshlrev_b32 v4, 2, v0
    s_waitcnt vmcnt(0)
    buffer_store_dword v36, v4, s[44:47], 0 offen sc1
k1_hd2:
    s_sub_u32 s18, s3, 4
    s_and_b32 s20, s2, 7
    s_lshr_b32 s21, s2, 3
    v_mul_u32_u24 v40, 86, v0
    v_lshrrev_b32 v40, 8, v40
    v_mul_u32_u24 v42, 3, v40
    v_sub_u32 v42, v0, v42
    v_mul_u32_u24 v40, 3072, v40
    v_lshl_add_u32 v40, v42, 7, v40
    s_mul_i32 s22, s21, {20*3072}
    s_mul_i32 s23, s20, 384
    s_mov_b32 s42, 1966080
    s_mov_b32 s43, 0x00020000
    s_cmp_lt_u32 s18, 2
    s_cbranch_scc1 k_pf
    v_lshrrev_b32 v40, 1, v0
    v_mul_u32_u24 v40, 1280, v40
    v_and_b32 v42, 1, v0
    v_lshl_add_u32 v40, v42, 7, v40
    s_lshl_b32 s21, s21, 1
    s_add_u32 s21, s21, s18
    s_sub_u32 s21, s21, 2
    s_mul_i32 s22, s21, {24*1280}
    s_mul_i32 s23, s20, 160
k_pf:
    s_add_u32 s22, s22, s23
    s_cmp_eq_u32 s18, 0
    s_cselect_b32 s40, s52, s54
    s_cselect_b32 s41, s53, s55
    s_cmp_ge_u32 s18, 2
    s_cselect_b32 s40, s56, s40
    s_cselect_b32 s41, s57, s41
    buffer_load_dword v41, v40, s[40:43], s22 offen
    buffer_load_dword v41, v40, s[40:43], s22 offen offset:64
    s_mov_b32 s50, 0
    s_cmp_ge_u32 s3, 6
    s_cbranch_scc1 k_wdma
    s_mul_i32 s16, s2, {2*SLOT}
    s_add_u32 s16, s16, {WS_SLOT}
    s_cmp_eq_u32 s3, 5
    s_cbranch_scc1 k_clr
    s_cmp_lg_u32 s2, 0
    s_cbranch_scc1 k_hb2
    s_mov_b32 s16, {WS_ACT}
k_clr:
    s_add_u32 s17, s16, 4096
    buffer_store_dwordx4 v[36:39], v3, s[8:11], s16 offen sc1
    buffer_store_dwordx4 v[36:39], v3, s[8:11], s16 offen offset:1024 sc1
    buffer_store_dwordx4 v[36:39], v3, s[8:11], s16 offen offset:2048 sc1
    buffer_store_dwordx4 v[36:39], v3, s[8:11], s16 offen offset:3072 sc1
    buffer_store_dwordx4 v[36:39], v3, s[8:11], s17 offen sc1
    buffer_store_dwordx4 v[36:39], v3, s[8:11], s17 offen offset:1024 sc1
k_hb2:
    s_barrier
    s_branch k2_pre
k_wdma:
    s_cmp_ge_u32 s2, 136
    s_cbranch_scc1 k_hb2
    s_sub_u32 s16, s3, 6
    s_cmp_eq_u32 s16, 0
    s_cselect_b32 s40, s52, s54
    s_cselect_b32 s41, s53, s55
    s_and_b32 s17, s2, 7
    s_lshr_b32 s18, s2, 3
    s_mul_i32 s19, s17, 12
    s_add_u32 s48, s19, s18
    s_movk_i32 s49, 3072
    s_mov_b32 s20, 0
    s_mov_b32 s21, 0
    s_cmp_lt_u32 s2, 96
    s_cbranch_scc1 k_wd1
    s_mov_b32 s40, s56
    s_mov_b32 s41, s57
    s_mul_i32 s19, s17, 5
    s_add_u32 s48, s19, s18
    s_sub_u32 s48, s48, 12
    s_movk_i32 s49, 1280
    s_mul_i32 s20, s16, {768*1280}
    s_mov_b32 s21, {32*1280}
k_wd1:
    s_lshl_b32 s48, s48, 5
    s_add_u32 s20, s20, s48
    s_mov_b32 s23, s20
    s_lshl_b32 s22, s49, 5
    v_lshrrev_b32 v3, 1, v0
    v_mul_lo_u32 v3, v3, s49
    v_and_b32 v4, 1, v0
    v_lshl_add_u32 v3, v4, 4, v3
    s_mul_i32 s24, s16, 20480
    s_add_u32 m0, s24, {L_W}
    """)
    srd(a, 40, 1966080)
    a("s_mov_b32 s25, 0\ns_waitcnt vmcnt(0)\n;STAMP 2\nk_wd2:")
    for j in range(5): a("buffer_load_dwordx4 v3, s[40:43], s20 offen lds\ns_addk_i32 m0, 1024\ns_add_u32 s20, s20, s22")
    a(f"""
    s_add_u32 s20, s20, s21
    s_add_u32 s25, s25, 1
    s_cmp_lt_u32 s25, 4
    s_cbranch_scc1 k_wd2
    s_barrier
    s_cmp_lt_u32 s2, 96
    s_cbranch_scc1 k2_pre
    s_lshl_b32 s24, s16, 12
    s_add_u32 m0, s24, {L_W5}
    s_add_u32 s20, s23, {160*1280}
    """)
    for j in range(4): a(f"buffer_load_dwordx4 v3, s[40:43], s20 offen lds\ns_addk_i32 m0, 1024\ns_add_u32 s20, s20, {192*1280}")
    a("s_branch k2_pre")

def body(a):
    entry(a); helper(a); k1main(a); k2(a); ffn(a); a("k_end:\ns_endpgm")
def main(out):
    import gen
    hdr = f"; FNet (2-D DFT as 3 MFMA stages) + LN + top-2 routed SwiGLU, one persistent launch; generated by my own script\n; @launch grid=(256,1,1) block=(512,1,1) lds={LDS}\n"
    hdr += '.amdgcn_target "amdgcn-amd-amdhsa--gfx950"\n'
    c, d = gen.kernel(NAME + "_kernel", body, 240)
    open(out, "w").write(hdr + c + '.section .rodata,"a"\n.p2align 6\n' + d)
if __name__ == "__main__":
    main(sys.argv[1] if len(sys.argv) > 1 else f"cdna_kernels/{NAME}.s")
```

```python
from gen import A, fb, vr, DPPF, XB, wave_red
WS_G, WS_SLOT, WS_KEY, WS_ACT = 0, 0x300000, 0x280000, 0x284000
SLOT = 3072
L_W = 32768
YP = 2576
L_KEY, L_TOP, L_PB, L_W5 = 24576, 24576 + 64, 28672, 32768
SPIN = 1 << 15
SC = "sc1"
def spin(a, lab, cnt="s50"):
    a(f"s_cbranch_vccz {lab}_ok\ns_add_u32 {cnt}, {cnt}, 1\ns_cmp_lt_u32 {cnt}, {SPIN}\ns_cbranch_scc1 {lab}\n{lab}_ok:")
def k2(a):
    a(f"""
k2_pre:
    s_lshr_b32 s14, s3, 2
    s_and_b32 s15, s3, 3
    s_sub_u32 s16, 64, s12
    s_cmp_eq_u32 s12, 0
    s_cselect_b32 s16, 32, s16
    s_cmp_eq_u32 s14, 0
    s_cselect_b32 s16, s12, s16
    s_mul_i32 s17, s16, 40960
    v_mul_u32_u24 v3, 1280, v2
    v_lshl_add_u32 v3, v1, 4, v3
    s_lshl_b32 s18, s15, 8
    s_add_u32 s18, s18, s17
    s_cmp_eq_u32 s3, 0
    s_cselect_b32 s19, 1, 0
    s_cmp_eq_u32 s3, 5
    s_cselect_b32 s19, 1, s19
    v_lshrrev_b32 v6, 2, v1
    s_lshl_b32 s20, s14, 2
    s_cmp_eq_u32 s12, 0
    s_cbranch_scc1 k2_u0
    s_lshl_b32 s21, s13, 2
    v_add_u32 v4, s21, v6
    s_mul_i32 s21, s14, 31
    v_xor_b32 v4, s21, v4
    s_xor_b32 s21, s20, 4
    v_add_u32 v5, s21, v2
    s_branch k2_t2done
k2_u0:
    v_lshrrev_b32 v4, 1, v6
    s_lshl_b32 s21, s13, 1
    v_add_u32 v4, s21, v4
    s_sub_u32 s21, 32, s14
    v_sub_u32 v7, s21, v4
    v_and_b32 v6, 1, v6
    v_cmp_eq_u32 vcc, 1, v6
    v_xor_b32 v5, 1, v2
    s_or_b32 s21, s13, s14
    v_cndmask_b32 v4, v4, v7, vcc
    v_cmp_eq_u32 vcc, 32, v4
    s_cmp_eq_u32 s21, 0
    s_cselect_b32 s21, 2, 0
    v_cndmask_b32 v4, v4, 16, vcc
    v_cmp_gt_u32 vcc, s21, v2
    s_nop 1
    v_cndmask_b32 v5, v5, v2, vcc
    v_add_u32 v5, s20, v5
k2_t2done:
    s_lshl_b32 s21, s15, 2
    s_nop 0
    v_readlane_b32 s22, v4, s21
    v_cvt_f32_u32 v6, v4
    v_cvt_f32_u32 v7, v2
    s_lshl_b32 s22, s22, 6
    s_add_u32 s22, s22, s16
    s_mul_i32 s23, s22, 1280
    v_lshlrev_b32 v28, 4, v0
    v_lshlrev_b32 v29, 2, v0
    v_mul_f32 v6, {fb(1/32)}, v6
    v_mul_f32 v7, v6, v7
    v_mul_f32 v6, 4.0, v6
    v_and_b32 v10, 3, v1
    """)
    for j in range(4): a(f"v_cmp_eq_u32 s[{36+2*(j&1)}:{37+2*(j&1)}], {j}, v10" + (f"\nv_cndmask_b32 v{11+j}, 0, -1, s[{36+2*((j-1)&1)}:{37+2*((j-1)&1)}]" if False else "") + f"\ns_nop 1\nv_cndmask_b32 v{12+j}, 0, -1, s[{36+2*(j&1)}:{37+2*(j&1)}]")
    GD, AC = 32, 128
    for ks in range(8):
        a(f"""v_cos_f32 v10, v7
        v_sin_f32 v11, v7
        v_add_f32 v7, v7, v6
        v_cvt_pk_bf16_f32 v10, v10, v11""")
        for j in range(4): a(f"v_and_b32 v{AC+4*ks+j}, v{12+j}, v10")
    def addrs(cbexpr, vd, vm):
        a(f"""
        v_add_u32 v10, {cbexpr}, v1
        v_mul_u32_u24 v11, 205, v10
        v_lshrrev_b32 v11, 11, v11
        v_mul_u32_u24 v16, 10, v11
        v_sub_u32 v16, v10, v16
        v_lshrrev_b32 v17, 2, v11
        v_mul_u32_u24 v17, 160, v17
        v_and_b32 v11, 3, v11
        v_add3_u32 v11, v11, v17, 1
        v_lshl_add_u32 v11, v16, 2, v11
        v_lshlrev_b32 v11, 2, v11
        v_add_u32 v{vd}, v18, v11
        v_sub_u32 v{vm}, v19, v11
        """)
    a(f"""
    v_add_u32 v18, s20, v2
    v_mul_u32_u24 v18, {YP}, v18
    v_mul_u32_u24 v19, {YP}, v5
    v_add_u32 v19, {4*520}, v19
    s_lshl_b32 s21, s15, 4
    s_mul_i32 s24, s3, {YP}
    v_mov_b32 v26, s24
    v_mov_b32 v27, 0
    ds_write_b32 v26, v27
    """)
    addrs("s21", 20, 21)
    addrs("64", 22, 23)
    a(f"""v_cmp_eq_u32 vcc, 15, v1
    v_add_u32 v24, {4*(640-520)}, v19
    s_nop 0
    v_cndmask_b32 v24, v23, v24, vcc
    s_mov_b32 s25, 0xffff0000
    s_mov_b32 s26, 0x3f803f80
    buffer_load_dwordx4 v[100:103], v28, s[4:7], s23 offen
    buffer_load_dword v104, v29, s[4:7], s23 offen offset:1024
    buffer_load_dwordx4 v[108:111], v28, s[28:31], 0 offen
    buffer_load_dword v112, v29, s[28:31], 0 offen offset:1024
    s_cmp_lt_u32 s3, 4
    s_cselect_b32 s40, s52, s54
    s_cselect_b32 s41, s53, s55
    s_and_b32 s36, s2, 7
    s_lshr_b32 s37, s2, 3
    s_mul_i32 s48, s36, 12
    s_movk_i32 s49, 3072
    s_mul_i32 s38, s15, {160*3072}
    s_cmp_lt_u32 s2, 96
    s_cbranch_scc1 k2_wg
    s_mov_b32 s40, s56
    s_mov_b32 s41, s57
    s_mul_i32 s48, s36, 5
    s_sub_u32 s48, s48, 12
    s_movk_i32 s49, 1280
    s_mul_i32 s38, s3, {192*1280}
k2_wg:
    s_add_u32 s48, s48, s37
    s_lshl_b32 s48, s48, 5
    s_add_u32 s38, s38, s48
    v_lshrrev_b32 v6, 1, v0
    v_mul_lo_u32 v6, v6, s49
    v_and_b32 v7, 1, v0
    v_lshl_add_u32 v6, v7, 4, v6
    s_lshl_b32 s49, s49, 5
    s_mul_i32 s36, s3, 6144
    s_add_u32 m0, s36, {L_W}
    s_mov_b32 s42, 1966080
    s_mov_b32 s43, 0x00020000
    s_lshl_b32 s37, s2, 6
    s_add_u32 s37, s37, {WS_KEY}
    s_lshl_b32 s36, s3, 12
    s_add_u32 s36, s36, {WS_KEY - 16384}
    v_lshlrev_b32 v30, 6, v0
    s_cmp_lg_u32 s3, 4
    s_cbranch_scc1 k2_go_ok
k2_go:
    buffer_load_dword v31, v29, s[44:47], 0 offen {SC}
    s_waitcnt vmcnt(0)
    v_cmp_eq_u32 vcc, 0, v31
    """)
    spin(a, "k2_go")
    a(f"""
    s_waitcnt vmcnt(0)
    ;STAMP 6
    s_barrier
    s_cmp_lg_u32 s3, 0
    s_cbranch_scc1 k2_nf
    s_mov_b64 exec, 1
    buffer_store_dword v27, v27, s[8:11], s37 offen {SC}
    s_mov_b64 exec, -1
k2_nf:
    s_barrier
    s_cmp_lt_u32 s3, 4
    s_cbranch_scc1 k2_s1_ok
k2_s1:
    buffer_load_dword v31, v30, s[8:11], s36 offen {SC}
    s_waitcnt vmcnt(0)
    v_cmp_ne_u32 vcc, 0, v31
    """)
    spin(a, "k2_s1")
    a("s_barrier\n;STAMP 7")
    def loads(gd):
        for ks in range(8):
            a(f"buffer_load_dwordx4 {vr(gd+4*ks,4)}, v3, s[8:11], s18 offen" + ("\ns_addk_i32 s18, 5120" if ks < 7 else ""))
    def item(gd, acc, vd, vm, vm3, vmbase):
        for ks in range(8):
            a(f"s_waitcnt vmcnt({vmbase-ks})")
            a(f"v_mfma_f32_16x16x32_bf16 {vr(acc,4)}, {vr(AC+4*ks,4)}, {vr(gd+4*ks,4)}, {vr(acc,4) if ks else 0}")
        return [f"ds_write_b32 v{vd}, v{acc+i} offset:{160*i}" for i in range(4)] + \
               [f"ds_write_b32 v{vm3 if i == 3 else vm}, v{acc+i} offset:{160*(3-i)}" for i in range(4)]
    a("s_cmp_eq_u32 s19, 0\ns_cbranch_scc1 k2_one\ns_mov_b32 s21, s18\ns_add_u32 s18, s17, 1024")
    loads(GD + 32)
    a("s_mov_b32 s18, s21")
    loads(GD)
    w2 = item(GD + 32, 164, 22, 23, 24, 15)
    a("s_nop 7")
    for t in w2: a(t)
    a("s_branch k2_two\nk2_one:")
    loads(GD)
    a("k2_two:")
    w1 = item(GD, 160, 20, 21, 21, 7)
    Y, H = 32, 48
    a(f"""
    v_lshl_add_u32 v10, v0, 5, s24
    v_lshl_add_u32 v11, v0, 3, s24
    v_mov_b32 v12, 0
    v_mov_b32 v13, 0""")
    for j in range(2): a(f"v_lshlrev_b32 v{H+2*j}, 16, v{100+j}\nv_and_b32 v{H+2*j+1}, s25, v{100+j}")
    for t in w1: a(t)
    a("s_cmp_ge_u32 s2, 136\ns_cbranch_scc1 k2_nw")
    for j in range(6):
        if j == 5: a("s_cmp_lt_u32 s2, 96\ns_cbranch_scc1 k2_nw")
        a("buffer_load_dwordx4 v6, s[40:43], s38 offen lds" + ("\ns_addk_i32 m0, 1024\ns_add_u32 s38, s38, s49" if j < 5 else ""))
    a("k2_nw:")
    for j in range(2, 5): a(f"v_lshlrev_b32 v{H+2*j}, 16, v{100+j}\nv_and_b32 v{H+2*j+1}, s25, v{100+j}")
    a(f"""
    s_waitcnt lgkmcnt(0)
    ;STAMP 8
    s_barrier
    ds_read_b128 v[32:35], v10
    ds_read_b128 v[36:39], v10 offset:16
    ds_read_b64 v[40:41], v11 offset:2048
    s_waitcnt lgkmcnt(0)
    """)
    for j in range(10): a(f"v_add_f32 v{Y+j}, v{Y+j}, v{H+j}")
    for j in range(5): a(f"v_cvt_pk_bf16_f32 v{60+j}, v{Y+2*j}, v{Y+2*j+1}")
    for j in range(5): a(f"v_dot2c_f32_bf16 v12, s26, v{60+j}\nv_dot2c_f32_bf16 v13, v{60+j}, v{60+j}")
    for j in range(5):
        a(f"v_lshlrev_b32 v{H+2*j}, 16, v{60+j}\nv_and_b32 v{H+2*j+1}, s25, v{60+j}")
    wave_red(a, [12, 13])
    a(f"""
    s_nop 0
    v_readlane_b32 s36, v12, 63
    v_readlane_b32 s37, v13, 63
    v_mov_b32 v14, {fb(1/640)}
    v_mul_f32 v12, s36, v14
    v_mul_f32 v13, s37, v14
    v_fma_f32 v13, -v12, v12, v13
    v_max_f32 v13, 0, v13
    v_cvt_pk_bf16_f32 v13, v12, v13
    v_lshlrev_b32 v12, 16, v13
    v_and_b32 v13, s25, v13
    v_add_f32 v13, {fb(1e-5)}, v13
    v_cvt_pk_bf16_f32 v13, v13, v13
    v_and_b32 v13, s25, v13
    v_sqrt_f32 v13, v13
    s_nop 0
    v_cvt_pk_bf16_f32 v13, v13, v13
    v_and_b32 v13, s25, v13
    v_rcp_f32 v13, v13
    s_nop 0
    v_mul_f32 v12, v12, v13
    v_mov_b32 v14, 0
    """)
    for j in range(10): a(f"v_fma_f32 v{Y+j}, v{H+j}, v13, -v12")
    for j in range(5): a(f"v_cvt_pk_bf16_f32 v{68+j}, v{Y+2*j}, v{Y+2*j+1}")
    for j in range(5): a(f"v_dot2c_f32_bf16 v14, v{68+j}, v{108+j}")
    for j in range(5):
        a(f"v_lshlrev_b32 v{Y+2*j}, 16, v{68+j}\nv_and_b32 v{Y+2*j+1}, s25, v{68+j}")
    b = A(); wave_red(b, [14]); red = [t for t in b.l if "dpp" in t]
    steps = [f"v_add_f32 v{Y+j}, v{Y+j}, v{H+j}" for j in range(10)] + ["v_min_u32 v60, -2, v60", "v_min_u32 v61, -2, v61"]
    for k in range(6):
        a(red[k]); a(steps[2*k]); a(steps[2*k+1])
    a(f"""
    v_readlane_b32 s36, v14, 63
    s_lshl_b32 s37, s3, 2
    v_mov_b32 v15, s37
    v_cvt_pk_bf16_f32 v14, s36, s36
    v_ashrrev_i32 v16, 31, v14
    v_or_b32 v16, 0x80000000, v16
    v_xor_b32 v14, v14, v16
    v_and_b32 v14, s25, v14
    v_or_b32 v16, s3, v14
    ds_write_b32 v15, v16 offset:{L_KEY}
    v_and_b32 v15, 28, v29
    """)
    for j in range(5): a(f"v_cvt_pk_bf16_f32 v{76+j}, v{Y+2*j}, v{Y+2*j+1}")
    for j in (62, 63, 64, 68, 69, 70, 71, 72): a(f"v_min_u32 v{j}, -2, v{j}")
    a(f"""
    s_waitcnt lgkmcnt(0)
    s_barrier
    ds_read_b32 v15, v15 offset:{L_KEY}
    v_mov_b32 v17, s22
    s_waitcnt lgkmcnt(0)
    v_cmp_gt_u32 vcc, v15, v16
    s_bcnt1_i32_b32 s36, vcc_lo
    s_lshr_b32 s36, s36, 2
    s_cmp_ge_u32 s36, 2
    s_cbranch_scc1 k2_plain
    s_lshl_b32 s37, s2, 1
    s_add_u32 s37, s36, s37
    v_or_b32 v14, s37, v14
    s_mul_i32 s37, s37, {SLOT}
    s_add_u32 s37, s37, {WS_SLOT}
    s_lshl_b32 s38, s2, 4
    s_add_u32 s36, s36, s38
    s_lshl_b32 s36, s36, 2
    s_add_u32 s36, s36, {WS_KEY + 8}
    buffer_store_dwordx4 v[68:71], v28, s[8:11], s37 offen sc1
    buffer_store_dword v72, v29, s[8:11], s37 offen offset:1024 sc1
    s_mov_b64 exec, 1
    buffer_store_dword v14, v27, s[8:11], s36 offen {SC}
    buffer_store_dword v17, v27, s[8:11], s37 offen offset:2560 sc1
    s_mov_b64 exec, -1
    buffer_store_dwordx4 v[60:63], v28, s[8:11], s37 offen offset:1280 sc1
    buffer_store_dword v64, v29, s[8:11], s37 offen offset:2304 sc1
    v_readfirstlane_b32 s51, v14
    s_barrier
    s_branch k2_s2
k2_plain:
    ;STAMP 9
    s_mov_b32 s51, -1
    s_barrier
    buffer_store_dwordx4 v[76:79], v28, s[32:35], s23 offen
    buffer_store_dword v80, v29, s[32:35], s23 offen offset:1024
    s_cmp_ge_u32 s36, 6
    s_cbranch_scc1 k2_s2
    v_lshlrev_b32 v4, 6, v0
    s_lshl_b32 s24, s36, 12
    s_add_u32 s24, s24, {WS_KEY - 8192}
    s_lshl_b32 s36, s36, 3
    v_mov_b32 v5, s36
k2_s2p:
    buffer_load_dwordx2 v[8:9], v4, s[8:11], s24 offen offset:8 {SC}
    s_waitcnt vmcnt(0)
    v_max_u32 v16, v8, v9
    v_cmp_eq_u32 vcc, -1, v16
    """)
    spin(a, "k2_s2p")
    a("v_mov_b32 v19, v16\nv_min_u32 v17, v8, v9")
    wave_red(a, [19], "v_max_u32")
    a("s_nop 0\nv_readlane_b32 s20, v19, 63\ns_nop 1\nv_cmp_eq_u32 vcc, s20, v16\ns_nop 1\nv_cndmask_b32 v18, v16, v17, vcc")
    wave_red(a, [18], "v_max_u32")
    a(f"""
    v_mov_b32 v16, s20
    v_readlane_b32 s21, v18, 63
    s_nop 1
    v_mov_b32 v17, s21
    ds_write_b64 v5, v[16:17] offset:{L_TOP - 16}
k2_s2:
    s_waitcnt vmcnt(0) lgkmcnt(0)
    s_barrier
    ds_read_b128 v[8:11], v27 offset:{L_TOP}
    ds_read_b128 v[12:15], v27 offset:{L_TOP + 16}
    s_waitcnt lgkmcnt(0)
    ;STAMP 10
    v_min_u32 v16, v8, v10
    v_min_u32 v17, v12, v14
    v_max3_u32 v9, v9, v11, v16
    v_max3_u32 v13, v13, v15, v17
    v_max_u32 v8, v8, v10
    v_max_u32 v12, v12, v14
    v_min_u32 v16, v8, v12
    v_max3_u32 v17, v9, v13, v16
    v_max_u32 v16, v8, v12
    s_nop 0
    v_readfirstlane_b32 s21, v17
    v_readfirstlane_b32 s20, v16
    s_cmp_ge_u32 s51, s21
    s_cbranch_scc1 k2_sel
    buffer_store_dwordx4 v[76:79], v28, s[32:35], s23 offen
    buffer_store_dword v80, v29, s[32:35], s23 offen offset:1024
k2_sel:
    s_cmp_ge_u32 s2, 136
    s_cbranch_scc1 k_end
    """)

def ffn(a):
    AF, BF, PB = 32, 88, L_PB
    a(f"""
    s_and_b32 s22, s20, 0x1ff
    s_and_b32 s23, s21, 0x1ff
    s_mul_i32 s22, s22, {SLOT}
    s_mul_i32 s23, s23, {SLOT}
    v_mov_b32 v16, s22
    v_mov_b32 v17, s23
    v_lshrrev_b32 v6, 2, v1
    v_lshl_add_u32 v6, v2, 3, v6
    v_lshlrev_b32 v6, 5, v6
    v_and_b32 v7, 3, v1
    v_lshl_add_u32 v6, v7, 3, v6
    s_mul_i32 s19, s3, 6144
    s_add_u32 s19, s19, {L_W}
    v_add_u32 v7, s19, v6
    s_and_b32 s17, s2, 7
    s_lshr_b32 s18, s2, 3
    s_mov_b32 s26, {WS_SLOT}
    v_cmp_gt_u32 vcc, 8, v1
    s_cmp_ge_u32 s2, 96
    s_cbranch_scc1 k4
    s_and_b32 s16, s3, 3
    s_mul_i32 s16, s16, 320
    v_cndmask_b32 v5, v17, v16, vcc
    v_lshl_add_u32 v5, v2, 4, v5
    s_add_u32 s26, s26, s16
    s_mul_i32 s17, s17, 12
    """)
    def common(nm, nks, soff):
        for j in range(nks):
            va, o = "v7", 1024*j
            a(f"ds_read_b64_tr_b16 {vr(BF+4*j,2)}, {va} offset:{o}\nds_read_b64_tr_b16 {vr(BF+4*j+2,2)}, {va} offset:{o+128}")
        a(f"{nm}_p:")
        for j in range(nks): a(f"buffer_load_dwordx4 {vr(AF+4*j,4)}, v5, s[8:11], {soff} offen offset:{(64 if nks == 5 else 128)*j} {SC}")
        a("s_waitcnt vmcnt(0)")
        n = 4*nks
        a(f"v_max3_u32 v8, v{AF}, v{AF+1}, v{AF+2}\nv_max3_u32 v9, v{AF+3}, v{AF+4}, v{AF+5}")
        for k in range(6, n, 4): a(f"v_max3_u32 v8, v8, v{AF+k}, v{AF+k+1}" + (f"\nv_max3_u32 v9, v9, v{AF+k+2}, v{AF+k+3}" if k+2 < n else ""))
        a("v_max_u32 v8, v8, v9\nv_cmp_eq_u32 vcc, -1, v8")
        spin(a, nm + "_p")
        a(f";STAMP 11\ns_lshl_b32 s27, s3, 8\nv_lshl_add_u32 v7, v0, 2, s27\ns_waitcnt lgkmcnt(0)")
        for j in range(nks):
            a(f"v_mfma_f32_16x16x32_bf16 v[84:87], {vr(AF+4*j,4)}, {vr(BF+4*j,4)}, {'v[84:87]' if j else 0}")
        a(f"""
        s_add_u32 s18, s18, s17
        s_lshl_b32 s18, s18, 5
        s_nop 5
        ds_write_b32 v7, v84 offset:{PB}
        s_waitcnt lgkmcnt(0)
        s_barrier
        s_cmp_lg_u32 s3, 0
        s_cbranch_scc1 k_end
        """)
        for w in range(8): a(f"ds_read_b32 v{32+w}, v29 offset:{PB+256*w}")
        a("v_and_b32 v7, " + ("17" if nm == "k3" else "16") + ", v0\nv_cmp_eq_u32 vcc, 0, v7\ns_waitcnt lgkmcnt(0)")
        a("v_add_f32 v32, v32, v33\nv_add_f32 v34, v34, v35\nv_add_f32 v36, v36, v37\nv_add_f32 v38, v38, v39\nv_add_f32 v24, v32, v34\nv_add_f32 v25, v36, v38")
    common("k3", 5, "s26")
    a(f"""
    v_cvt_pk_bf16_f32 v24, v24, v25
    v_lshlrev_b32 v25, 16, v24
    v_and_b32 v24, s25, v24
    v_mul_f32 v26, {fb(-1.4426950408889634)}, v25
    v_exp_f32 v26, v26
    v_lshrrev_b32 v16, 5, v0
    v_add_f32 v26, 1.0, v26
    v_rcp_f32 v26, v26
    v_lshlrev_b32 v16, 5, v16
    v_mul_f32 v25, v25, v26
    v_cvt_pk_bf16_f32 v25, v25, v25
    v_and_b32 v25, s25, v25
    v_mul_f32 v24, v24, v25
    v_lshl_add_u32 v16, v1, 1, v16
    s_lshl_b32 s18, s18, 1
    s_add_u32 s18, s18, {WS_ACT}
    v_mov_b32_dpp v25, v24 quad_perm:[1,1,3,3] {DPPF}
    v_cvt_pk_bf16_f32 v24, v24, v25
    v_min_u32 v24, -2, v24
    s_and_saveexec_b64 s[36:37], vcc
    buffer_store_dword v24, v16, s[8:11], s18 offen {SC}
    s_endpgm
k4:
    s_mul_i32 s16, s3, 768
    s_add_u32 s16, s16, {WS_ACT}
    v_cndmask_b32 v5, 3072, 0, vcc
    """.replace("v_cndmask_b32 v5, 3072, 0, vcc", "v_lshrrev_b32 v5, 3, v1\nv_and_b32 v4, 2, v2\nv_add_u32 v5, v5, v4\nv_lshlrev_b32 v5, 5, v5\nv_and_b32 v4, 1, v2"))
    a(f"""
    v_lshl_add_u32 v5, v4, 4, v5
    s_mul_i32 s17, s17, 5
    s_sub_u32 s18, s18, 12
    s_add_u32 s19, s18, s17
    s_lshl_b32 s19, s19, 5
    v_cmp_gt_u32 vcc, 32, v0
    v_mov_b32 v18, s20
    v_mov_b32 v19, s21
    v_cndmask_b32 v16, v17, v16, vcc
    v_cndmask_b32 v18, v19, v18, vcc
    v_and_b32 v17, 14, v1
    v_lshl_add_u32 v17, v17, 1, v16
    v_add_u32 v17, s19, v17
    """)
    a(f"""
    s_cmp_lg_u32 s3, 0
    s_cbranch_scc1 k4_h_ok
k4_h:
    buffer_load_dword v20, v17, s[8:11], s26 offen {SC}
    buffer_load_dword v21, v17, s[8:11], s26 offen offset:1280 {SC}
    buffer_load_dword v22, v16, s[8:11], s26 offen offset:2560 {SC}
    s_waitcnt vmcnt(0)
    v_max3_u32 v8, v20, v21, v22
    v_cmp_eq_u32 vcc, -1, v8
    """)
    spin(a, "k4_h")
    common("k4", 6, "s16")
    a(f"""
    v_ashrrev_i32 v19, 31, v18
    v_not_b32 v19, v19
    v_or_b32 v19, 0x80000000, v19
    v_xor_b32 v18, v18, v19
    v_and_b32 v18, s25, v18
    v_mul_f32 v18, {fb(-1.4426950408889634)}, v18
    v_exp_f32 v18, v18
    v_add_f32 v24, v24, v25
    v_add_f32 v18, 1.0, v18
    v_rcp_f32 v18, v18
    v_and_b32 v19, 1, v1
    v_lshlrev_b32 v19, 4, v19
    v_cvt_pk_bf16_f32 v24, v24, v18
    v_lshlrev_b32 v25, 16, v24
    v_and_b32 v24, s25, v24
    v_mul_f32 v24, v24, v25
    v_cvt_pk_bf16_f32 v24, v24, v24
    v_and_b32 v24, s25, v24
    v_lshrrev_b32 v20, v19, v20
    v_lshrrev_b32 v21, v19, v21
    v_lshlrev_b32 v20, 16, v20
    v_lshlrev_b32 v21, 16, v21
    v_and_b32 v22, 0x7ff, v22
    v_mul_u32_u24 v22, 1280, v22
    v_add_f32 v24, v24, v20
    v_cvt_pk_bf16_f32 v24, v24, v24
    v_and_b32 v24, s25, v24
    v_add_f32 v24, v24, v21
    v_cvt_pk_bf16_f32 v24, v24, v24
    v_lshl_add_u32 v22, v1, 1, v22
    s_and_saveexec_b64 s[36:37], vcc
    buffer_store_short v24, v22, s[32:35], s18 offen
    """)
```

```python
import sys
from gen2b import k2, ffn, spin
from gen import A, fb, vr, DPPF, NAME, XB, wave_red
WS_G, WS_SLOT, WS_KEY, WS_ACT = 0, 0x300000, 0x280000, 0x284000
WS_SIZE = 0x1000000
SLOT = 3072
L_B, L_A, L_W = 81920, 107520, 121344
LDS = L_W
YP = 2576
L_KEY, L_TOP, L_PB, L_W5 = 24576, 24576 + 64, 28672, 32768
SPIN = 1 << 15
SC = "sc0 sc1"
def srd(a, d, nbytes): a(f"s_mov_b32 s{d+2}, {nbytes}\ns_mov_b32 s{d+3}, 0x00020000")

def entry(a):
    a(f"""
    s_cmp_ge_u32 s2, 256
    s_cbranch_scc1 k_end
    s_load_dwordx2 s[4:5], s[0:1], 0
    s_load_dwordx4 s[44:47], s[0:1], 88
    s_load_dwordx8 s[52:59], s[0:1], 56
    s_load_dwordx2 s[28:29], s[0:1], 48
    v_lshrrev_b32 v1, 6, v0
    v_and_b32 v0, 63, v0
    s_and_b32 s12, s2, 7
    s_lshr_b32 s13, s2, 6
    v_readfirstlane_b32 s3, v1
    s_lshl_b32 s13, s13, 3
    s_add_u32 s12, s12, s13
    s_bfe_u32 s13, s2, 0x30003
    s_and_b32 s14, s13, 3
    s_add_u32 s14, s14, 1
    s_lshr_b32 s15, s13, 2
    v_and_b32 v1, 15, v0
    v_lshrrev_b32 v2, 4, v0
    """)
    srd(a, 4, XB); srd(a, 8, WS_SIZE)
    a("s_cmp_lt_u32 s3, 4\ns_cbranch_scc1 k_main")
def ptrs(a):
    a("s_mov_b32 s8, s46\ns_mov_b32 s9, s47\ns_mov_b32 s32, s58\ns_mov_b32 s33, s59")
    srd(a, 44, 256); srd(a, 28, 1280); srd(a, 32, XB)

NPRE = 8
def k1main(a):
    a(f"""
k_main:
    v_lshrrev_b32 v3, 2, v0
    s_lshl_b32 s16, s3, 4
    v_add_u32 v3, s16, v3
    s_mov_b32 s17, 40960
    v_mul_lo_u32 v3, v3, s17
    v_lshrrev_b32 v4, 5, v0
    v_mul_u32_u24 v4, 3, v4
    v_and_b32 v5, 3, v0
    v_xor_b32 v4, v4, v5
    v_lshl_add_u32 v3, v4, 4, v3
    s_mul_i32 s18, s12, 1280
    s_mul_i32 s19, s3, 20480
    s_mov_b32 m0, s19
    s_add_u32 s20, s18, {64*NPRE}
    s_lshl_b32 s21, s13, 2
    s_add_u32 s21, s21, s3
    s_mul_i32 s21, s21, {2*40960}
    s_add_u32 s21, s21, s18
    v_lshrrev_b32 v6, 5, v0
    v_mul_u32_u24 v6, 40960, v6
    v_and_b32 v7, 31, v0
    v_med3_u32 v7, v7, {NPRE}, 19
    v_lshl_add_u32 v6, v7, 6, v6
    s_waitcnt lgkmcnt(0)
    buffer_load_dword v239, v6, s[4:7], s21 offen
k1_dma:
    buffer_load_dwordx4 v3, s[4:7], s18 offen lds
    s_addk_i32 s18, 64
    s_addk_i32 m0, 1024
    s_cmp_lt_u32 s18, s20
    s_cbranch_scc1 k1_dma
    """)
    ptrs(a)
    CR, CI, CN = 200, 208, 216
    B, X, P, Q, R, S, SQ, ONE, T = 20, 120, 132, 152, 172, 192, 196, 224, 228
    a(f"""
    v_add_u32 v4, s16, v1
    v_cvt_f32_u32 v4, v4
    v_lshlrev_b32 v5, 8, v2
    v_add_u32 v5, s12, v5
    v_cvt_f32_u32 v5, v5
    s_mul_i32 s21, s14, 3
    v_cvt_f32_u32 v6, s21
    v_mul_f32 v5, v4, v5
    v_mul_f32 v6, {fb(0.25)}, v6
    v_mul_f32 v7, {fb(1/64)}, v4
    v_fmac_f32 v6, {fb(1/2048)}, v5
    v_fract_f32 v6, v6
    s_and_b32 s21, s14, 1
    s_lshl_b32 s22, s21, 31
    s_or_b32 s22, s22, 0x3f800000
    s_and_b32 s23, s14, 2
    s_lshl_b32 s23, s23, 30
    s_or_b32 s23, s23, 0x3f800000
    s_cmp_eq_u32 s21, 1
    s_cselect_b32 s24, s23, 0
    s_cselect_b32 s23, 0, s23
    s_xor_b32 s25, s24, 0x80000000
    v_mov_b32 v12, s24
    v_mov_b32 v13, s25
    v_cmp_gt_u32 vcc, 8, v1
    v_lshrrev_b32 v4, 3, v1
    v_mul_u32_u24 v4, 3, v4
    v_cndmask_b32 v12, v12, v13, vcc
    v_xor_b32 v4, v4, v2
    v_lshlrev_b32 v4, 4, v4
    v_lshl_add_u32 v4, v1, 6, v4
    v_add_u32 v4, s19, v4
    v_lshlrev_b32 v19, 4, v0
    v_add_u32 v19, {L_B}, v19
    v_lshlrev_b32 v13, 2, v2
    v_sub_u32 v13, v1, v13
    v_mov_b32 v18, 1.0
    """)
    for i in range(4): a(f"v_mov_b32 v{ONE+i}, 0x3f803f80\nv_cmp_eq_u32 s[{36+2*i}:{37+2*i}], {i}, v13")
    a("s_mov_b32 s50, 0\n;STAMP 1\ns_barrier\n;STAMP 2")
    xb = lambda i: [120, 124, 128, 172, 176][i] if i < 5 else X + 4 * (i % 3)
    for f in range(25):
        a(f"ds_read_b128 {vr(B+4*f,4)}, v19 offset:{1024*f}")
        if f % 5 == 4: a(f"s_waitcnt vmcnt({NPRE-1-f//5})\nds_read_b128 {vr(xb(f//5),4)}, v4 offset:{1024*(f//5)}")
    fill = {i: [] for i in range(20)}
    for j in range(20):
        fill[6 + j // 5].append(f"v_mul_f32 v{P+j}, s22, v{P+j}")
        fill[11 + j // 5].append(f"v_mul_f32 v{Q+j}, s22, v{Q+j}")
    slots = [0, 1, 2, 3, 4, 5, 10, 15]
    for ks in range(2):
        for jp in range(4):
            f = fill[slots[4*ks+jp]]
            if ks and not jp: f += ["v_fmac_f32 v6, 0x41c00000, v7", "v_fract_f32 v6, v6"]
            f += f"""v_cos_f32 v8, v6
            v_sin_f32 v9, v6
            v_add_f32 v6, v6, v7
            v_cos_f32 v10, v6
            v_sin_f32 v11, v6
            v_add_f32 v6, v6, v7
            v_cvt_pk_bf16_f32 v{CR+4*ks+jp}, v8, v10
            v_cvt_pk_bf16_f32 v{CN+4*ks+jp}, v9, v11
            v_cvt_pk_bf16_f32 v{CI+4*ks+jp}, -v9, -v11""".split("\n")
    rot = []
    for b in range(2):
        for i in range(4):
            re, im = P + 4*b + i, P + 8 + 4*b + i
            rot += [f"v_mul_f32 v{R+4*b+i}, s23, v{re}", f"v_mul_f32 v{R+8+4*b+i}, s23, v{im}",
                    f"v_fmac_f32 v{R+4*b+i}, s25, v{im}", f"v_fmac_f32 v{R+8+4*b+i}, s24, v{re}"]
    for i in range(4): rot += [f"v_mul_f32 v{R+16+i}, s23, v{P+16+i}"]
    for i in range(4): rot += [f"v_fmac_f32_dpp v{R+16+i}, v{P+16+i}, v12 row_ror:8 {DPPF}"]
    for j, t in enumerate(rot): fill[16 + min(j // 14, 2)].append(t)
    for i in range(20):
        q, ks = divmod(i, 5)
        x = xb(i)
        if i + NPRE < 20: a("buffer_load_dwordx4 v3, s[4:7], s18 offen lds\ns_addk_i32 m0, 1024\ns_addk_i32 s18, 64")
        if i + NPRE == 20: a("s_barrier")
        if 3 <= i <= 17: a(f"s_waitcnt vmcnt({min(i+NPRE+1, 20)-i-3})\nds_read_b128 {vr(xb(i+2),4)}, v4 offset:{1024*(i+2)}")
        a(f"s_waitcnt lgkmcnt({[15, 15, 12, 7][i] if i < 4 else min(2, 19-i)})")
        acc = P if q % 2 == 0 else Q
        mf = []
        for b in range(5):
            c = "0" if (q < 2 and ks == 0) else vr(acc+4*b, 4)
            mf.append(f"v_mfma_f32_16x16x32_bf16 {vr(acc+4*b,4)}, {vr(x,4)}, {vr(B+20*ks+4*b,4)}, {c}")
        st = [f"v_mfma_f32_16x16x32_bf16 {vr(SQ,4)}, {vr(x,4)}, {vr(x,4)}, {vr(SQ,4) if i else 0}",
              f"v_mfma_f32_16x16x32_bf16 {vr(S,4)}, {vr(x,4)}, {vr(ONE,4)}, {vr(S,4) if i else 0}"]
        if i < 19:
            mf = mf + st; fl = fill[i]
            per = -(-len(fl) // 7)
            for b in range(7):
                a(mf[b])
                for t in fl[b*per:(b+1)*per]: a(t)
        else:
            a(st[0]); a(st[1]); a(mf[0]); a(mf[1])
            a(f"""
            s_lshl_b32 s27, s3, 5
            s_add_u32 s27, s27, {L_A}
            v_lshl_add_u32 v6, v2, 3, s27
            v_mul_u32_u24 v7, 144, v1
            v_add_u32 v7, v6, v7
            v_and_b32 v8, 7, v1
            v_cndmask_b32 v14, 0, v{SQ}, s[36:37]
            v_cndmask_b32 v14, v14, v{SQ+1}, s[38:39]
            v_cndmask_b32 v14, v14, v{SQ+2}, s[40:41]
            v_cndmask_b32 v14, v14, v{SQ+3}, s[42:43]
            v_mul_u32_u24 v8, 144, v8
            v_lshrrev_b32 v9, 3, v1
            v_mfma_f32_16x16x4_f32 {vr(SQ,4)}, v14, v18, 0
            v_mul_u32_u24 v9, 6912, v9
            v_add3_u32 v6, v6, v8, v9""")
            a(mf[2]); [a(f"v_mul_f32 v{S+k}, {fb(1/640)}, v{S+k}") for k in range(4)]
            a(mf[3]); a(mf[4])
    a(";STAMP 3\ns_nop 3")
    for i in range(4): a(f"v_mul_f32 v{SQ+i}, {fb(1/640)}, v{SQ+i}")
    for i in range(4): a(f"v_fma_f32 v{S+i}, -v{S+i}, v{S+i}, v{SQ+i}")
    for i in range(4): a(f"v_max_f32 v{S+i}, 0, v{S+i}")
    def rnd4():
        a(f"""v_cvt_pk_bf16_f32 v{T}, v{S}, v{S+1}
        v_cvt_pk_bf16_f32 v{T+1}, v{S+2}, v{S+3}
        v_lshlrev_b32 v{S}, 16, v{T}
        v_and_b32 v{S+1}, 0xffff0000, v{T}
        v_lshlrev_b32 v{S+2}, 16, v{T+1}
        v_and_b32 v{S+3}, 0xffff0000, v{T+1}""")
    rnd4()
    for i in range(4): a(f"v_add_f32 v{S+i}, {fb(1e-5)}, v{S+i}")
    rnd4()
    for i in range(4): a(f"v_sqrt_f32 v{S+i}, v{S+i}")
    for i in range(4): a(f"v_add_f32 v{Q+i}, v{Q+i}, v{R+i}")
    rnd4()
    for i in range(4): a(f"v_rcp_f32 v{S+i}, v{S+i}")
    for i in range(4, 20): a(f"v_add_f32 v{Q+i}, v{Q+i}, v{R+i}")
    for b in range(5):
        for i in range(4): a(f"v_mul_f32 v{Q+4*b+i}, v{Q+4*b+i}, v{S+i}")
        a(f"v_cvt_pk_bf16_f32 v{R+4*b}, v{Q+4*b}, v{Q+4*b+1}\nv_cvt_pk_bf16_f32 v{R+4*b+1}, v{Q+4*b+2}, v{Q+4*b+3}")
        if b < 4: a(f"ds_write_b64 v7, {vr(R+4*b,2)} offset:{(b&1)*16*144 + (b>>1)*6912}")
        else: a(f"ds_write_b64 v6, {vr(R+4*b,2)} offset:{32*144}")
    a(f"""
    v_mul_u32_u24 v7, 144, v1
    v_lshl_add_u32 v7, v2, 4, v7
    v_add_u32 v7, {L_A}, v7
    v_lshl_add_u32 v8, v2, 2, s16
    v_mul_lo_u32 v8, v8, s17
    s_mul_i32 s18, s12, 1280
    s_mul_i32 s19, s13, 160
    s_add_u32 s18, s18, s19
    v_lshl_add_u32 v8, v1, 2, v8
    v_add_u32 v8, s18, v8
    v_bfrev_b32 v9, 1
    v_cndmask_b32 v9, v9, v8, vcc
    s_mov_b32 s18, {2*40960}
    s_mov_b32 s19, {3*40960}
    s_waitcnt lgkmcnt(0)
    s_barrier
    ;STAMP 4
    """)
    D = 20
    for mb in range(3):
        for p in range(2):
            for ks in range(2):
                a(f"ds_read_b128 {vr(D+16*mb+8*p+4*ks,4)}, v7 offset:{mb*16*144 + p*6912 + 64*ks}")
    O = 70
    def outs(m):
        dr, di = O + 8*m, O + 8*m + 4
        for i in range(4):
            a(f"v_cvt_pk_bf16_f32 v{100+4*m+i}, v{dr+i}, v{di+i}")
            so = ["0", "s17", "s18", "s19"][i]
            a(f"buffer_store_dword v{100+4*m+i}, v{9 if m == 2 else 8}, s[8:11], {so} offen offset:{64*m} sc1")
    for mb in range(3):
        d = D + 16*mb; dr, di = O + 8*mb, O + 8*mb + 4
        a(f"""s_waitcnt lgkmcnt({10-4*mb})
        v_mfma_f32_16x16x32_bf16 {vr(dr,4)}, {vr(CR,4)}, {vr(d,4)}, 0
        v_mfma_f32_16x16x32_bf16 {vr(di,4)}, {vr(CI,4)}, {vr(d,4)}, 0
        v_mfma_f32_16x16x32_bf16 {vr(dr,4)}, {vr(CR+4,4)}, {vr(d+4,4)}, {vr(dr,4)}
        v_mfma_f32_16x16x32_bf16 {vr(di,4)}, {vr(CI+4,4)}, {vr(d+4,4)}, {vr(di,4)}
        s_waitcnt lgkmcnt({8-4*mb})
        v_mfma_f32_16x16x32_bf16 {vr(dr,4)}, {vr(CN,4)}, {vr(d+8,4)}, {vr(dr,4)}
        v_mfma_f32_16x16x32_bf16 {vr(di,4)}, {vr(CR,4)}, {vr(d+8,4)}, {vr(di,4)}
        v_mfma_f32_16x16x32_bf16 {vr(dr,4)}, {vr(CN+4,4)}, {vr(d+12,4)}, {vr(dr,4)}
        v_mfma_f32_16x16x32_bf16 {vr(di,4)}, {vr(CR+4,4)}, {vr(d+12,4)}, {vr(di,4)}""")
        if mb: outs(mb - 1)
    a("s_nop 7")
    outs(2)
    a(";STAMP 5")

def helper(a):
    a(f"""
k_helper:
    s_getpc_b64 s[20:21]
k_pc:
    s_sub_u32 s20, s20, k_pc-{NAME}_kernel
    s_subb_u32 s21, s21, 0
    s_lshl_b32 s16, s3, 12
    s_sub_u32 s16, s16, 16384
    v_lshl_add_u32 v40, v0, 6, s16
    v_min_u32 v40, k_end-{NAME}_kernel, v40
    global_load_dword v41, v40, s[20:21]
    s_mul_i32 s16, s15, 160
    s_add_u32 s16, s16, s14
    v_and_b32 v3, 3, v1
    v_mul_u32_u24 v3, 40, v3
    v_add_u32 v3, s16, v3
    v_and_b32 v4, 12, v1
    v_add_u32 v4, v3, v4
    v_add_u32 v5, 16, v4
    v_and_b32 v6, 4, v1
    v_add3_u32 v6, v3, v6, 32
    v_cvt_f32_u32 v4, v4
    v_cvt_f32_u32 v5, v5
    v_cvt_f32_u32 v6, v6
    v_lshrrev_b32 v7, 3, v1
    v_cvt_f32_u32 v7, v7
    v_mul_f32 v4, {fb(1/640)}, v4
    v_mul_f32 v5, {fb(1/640)}, v5
    v_mul_f32 v6, {fb(1/640)}, v6
    v_mul_f32 v7, {fb(0.25)}, v7
    v_cos_f32 v24, v4
    v_cos_f32 v25, v5
    v_cos_f32 v26, v6
    s_sub_u32 s18, s3, 4
    s_movk_i32 s19, 31
    v_add_f32 v24, v24, v24
    v_add_f32 v25, v25, v25
    v_add_f32 v26, v26, v26
k1_hloop:
    s_lshl_b32 s16, s18, 5
    v_lshl_add_u32 v8, v2, 3, s16
    v_cvt_f32_u32 v8, v8
    s_mul_i32 s17, s18, 5120
    s_add_u32 s17, s17, {L_B}
    v_lshl_add_u32 v9, v0, 4, s17
    """)
    for j, (st, ph) in enumerate([(0, "0"), (1, "0"), (0, fb(0.25)), (1, fb(0.25)), (2, "v7")]):
        a(f"s_bitcmp1_b32 s19, {j}\ns_cbranch_scc0 k1_hs{j}")
        if ph.startswith("0x"): a(f"v_fmaak_f32 v10, v{4+st}, v8, {ph}")
        else: a(f"v_fma_f32 v10, v{4+st}, v8, {ph}")
        a(f"v_fract_f32 v10, v10\nv_add_f32 v11, v10, v{4+st}\nv_cos_f32 v12, v10\nv_cos_f32 v13, v11\ns_nop 0")
        for k in range(2, 8): a(f"v_fma_f32 v{12+k}, v{24+st}, v{11+k}, -v{10+k}")
        for k in range(4): a(f"v_cvt_pk_bf16_f32 v{20+k}, v{12+2*k}, v{13+2*k}")
        a(f"ds_write_b128 v9, v[20:23] offset:{1024*j}\nk1_hs{j}:")
    a(f"""
    s_cmp_eq_u32 s18, 4
    s_cbranch_scc1 k1_hdone
    s_lshl_b32 s19, 1, s18
    s_cmp_eq_u32 s18, 0
    s_cselect_b32 s19, 17, s19
    s_mov_b32 s18, 4
    s_branch k1_hloop
k1_hdone:
    v_mov_b32 v36, -1
    v_mov_b32 v37, -1
    v_mov_b32 v38, -1
    v_mov_b32 v39, -1
    v_lshlrev_b32 v3, 4, v0
    s_waitcnt lgkmcnt(0)
    ;STAMP 1
    s_barrier
    """)
    ptrs(a)
    a(f"""
    s_lshl_b32 s51, s2, 3
    s_add_u32 s51, s51, s3
    s_cmp_lg_u32 s51, 4
    s_cbranch_scc1 k1_hd2
    s_mov_b32 s20, {WS_KEY}
k_clr0:
    buffer_store_dwordx4 v[36:39], v3, s[8:11], s20 offen sc1
    s_addk_i32 s20, 1024
    s_cmp_lt_u32 s20, {WS_KEY + 16384}
    s_cbranch_scc1 k_clr0
    v_lshlrev_b32 v4, 2, v0
    s_waitcnt vmcnt(0)
    buffer_store_dword v36, v4, s[44:47], 0 offen sc1
k1_hd2:
    s_cmp_lg_u32 s3, 7
    s_cbranch_scc1 k1_hd3
    s_load_dword s20, s[52:53], 0
    s_load_dword s20, s[54:55], 0
    s_load_dword s20, s[56:57], 0
    s_load_dword s20, s[58:59], 0
    s_load_dword s20, s[28:29], 0
    s_load_dword s20, s[52:53], 0xff000
    s_load_dword s20, s[54:55], 0xff000
    s_load_dword s20, s[56:57], 0xff000
    s_waitcnt lgkmcnt(0)
k1_hd3:
    s_sub_u32 s18, s3, 4
    s_and_b32 s20, s2, 7
    s_lshr_b32 s21, s2, 3
    v_mul_u32_u24 v40, 86, v0
    v_lshrrev_b32 v40, 8, v40
    v_mul_u32_u24 v42, 3, v40
    v_sub_u32 v42, v0, v42
    v_mul_u32_u24 v40, 3072, v40
    v_lshl_add_u32 v40, v42, 7, v40
    s_mul_i32 s22, s21, {20*3072}
    s_mul_i32 s23, s20, 384
    s_mov_b32 s42, 1966080
    s_mov_b32 s43, 0x00020000
    s_cmp_lt_u32 s18, 2
    s_cbranch_scc1 k_pf
    v_lshrrev_b32 v40, 1, v0
    v_mul_u32_u24 v40, 1280, v40
    v_and_b32 v42, 1, v0
    v_lshl_add_u32 v40, v42, 7, v40
    s_lshl_b32 s21, s21, 1
    s_add_u32 s21, s21, s18
    s_sub_u32 s21, s21, 2
    s_mul_i32 s22, s21, {24*1280}
    s_mul_i32 s23, s20, 160
k_pf:
    s_add_u32 s22, s22, s23
    s_cmp_eq_u32 s18, 0
    s_cselect_b32 s40, s52, s54
    s_cselect_b32 s41, s53, s55
    s_cmp_ge_u32 s18, 2
    s_cselect_b32 s40, s56, s40
    s_cselect_b32 s41, s57, s41
    s_barrier
    buffer_load_dword v41, v40, s[40:43], s22 offen
    buffer_load_dword v41, v40, s[40:43], s22 offen offset:64
    s_mov_b32 s50, 0
    s_cmp_ge_u32 s3, 6
    s_cbranch_scc1 k_hw
    s_mul_i32 s16, s2, {2*SLOT}
    s_add_u32 s16, s16, {WS_SLOT}
    s_cmp_eq_u32 s3, 5
    s_cbranch_scc1 k_clr
    s_cmp_lg_u32 s2, 0
    s_cbranch_scc1 k_hb2
    s_mov_b32 s16, {WS_ACT}
k_clr:
    s_add_u32 s17, s16, 4096
    buffer_store_dwordx4 v[36:39], v3, s[8:11], s16 offen sc1
    buffer_store_dwordx4 v[36:39], v3, s[8:11], s16 offen offset:1024 sc1
    buffer_store_dwordx4 v[36:39], v3, s[8:11], s16 offen offset:2048 sc1
    buffer_store_dwordx4 v[36:39], v3, s[8:11], s16 offen offset:3072 sc1
    buffer_store_dwordx4 v[36:39], v3, s[8:11], s17 offen sc1
    buffer_store_dwordx4 v[36:39], v3, s[8:11], s17 offen offset:1024 sc1
k_hb2:
    s_barrier
    s_branch k2_pre
k_hw:
    s_waitcnt vmcnt(0)
    ;STAMP 2
    s_branch k_hb2
    """)

def body(a):
    entry(a); helper(a); k1main(a); k2(a); ffn(a); a("k_end:\ns_endpgm")
def main(out):
    import gen
    hdr = f"; FNet (2-D DFT as 3 MFMA stages) + LN + top-2 routed SwiGLU, one persistent launch; generated by my own script\n; @launch grid=(256,1,1) block=(512,1,1) lds={LDS}\n"
    hdr += '.amdgcn_target "amdgcn-amd-amdhsa--gfx950"\n'
    c, d = gen.kernel(NAME + "_kernel", body, 240)
    open(out, "w").write(hdr + c + '.section .rodata,"a"\n.p2align 6\n' + d)
if __name__ == "__main__":
    main(sys.argv[1] if len(sys.argv) > 1 else f"cdna_kernels/{NAME}.s")
```

```python
from gen import A, fb, vr, DPPF, XB, wave_red
WS_G, WS_SLOT, WS_KEY, WS_ACT = 0, 0x300000, 0x280000, 0x284000
SLOT = 3072
L_W = 32768
YP = 2576
L_KEY, L_TOP, L_PB, L_W5 = 24576, 24576 + 64, 28672, 32768
SPIN = 1 << 15
SC = "sc1"
def spin(a, lab, cnt="s50"):
    a(f"s_cbranch_vccz {lab}_ok\ns_add_u32 {cnt}, {cnt}, 1\ns_cmp_lt_u32 {cnt}, {SPIN}\ns_cbranch_scc1 {lab}\n{lab}_ok:")
def k2(a):
    a(f"""
k2_pre:
    s_lshr_b32 s14, s3, 2
    s_and_b32 s15, s3, 3
    s_sub_u32 s16, 64, s12
    s_cmp_eq_u32 s12, 0
    s_cselect_b32 s16, 32, s16
    s_cmp_eq_u32 s14, 0
    s_cselect_b32 s16, s12, s16
    s_mul_i32 s17, s16, 40960
    v_mul_u32_u24 v3, 1280, v2
    v_lshl_add_u32 v3, v1, 4, v3
    s_lshl_b32 s18, s15, 8
    s_add_u32 s18, s18, s17
    s_cmp_eq_u32 s3, 0
    s_cselect_b32 s19, 1, 0
    s_cmp_eq_u32 s3, 5
    s_cselect_b32 s19, 1, s19
    v_lshrrev_b32 v6, 2, v1
    s_lshl_b32 s20, s14, 2
    s_cmp_eq_u32 s12, 0
    s_cbranch_scc1 k2_u0
    s_lshl_b32 s21, s13, 2
    v_add_u32 v4, s21, v6
    s_mul_i32 s21, s14, 31
    v_xor_b32 v4, s21, v4
    s_xor_b32 s21, s20, 4
    v_add_u32 v5, s21, v2
    s_branch k2_t2done
k2_u0:
    v_lshrrev_b32 v4, 1, v6
    s_lshl_b32 s21, s13, 1
    v_add_u32 v4, s21, v4
    s_sub_u32 s21, 32, s14
    v_sub_u32 v7, s21, v4
    v_and_b32 v6, 1, v6
    v_cmp_eq_u32 vcc, 1, v6
    v_xor_b32 v5, 1, v2
    s_or_b32 s21, s13, s14
    v_cndmask_b32 v4, v4, v7, vcc
    v_cmp_eq_u32 vcc, 32, v4
    s_cmp_eq_u32 s21, 0
    s_cselect_b32 s21, 2, 0
    v_cndmask_b32 v4, v4, 16, vcc
    v_cmp_gt_u32 vcc, s21, v2
    s_nop 1
    v_cndmask_b32 v5, v5, v2, vcc
    v_add_u32 v5, s20, v5
k2_t2done:
    s_lshl_b32 s21, s15, 2
    s_nop 0
    v_readlane_b32 s22, v4, s21
    v_cvt_f32_u32 v6, v4
    v_cvt_f32_u32 v7, v2
    s_lshl_b32 s22, s22, 6
    s_add_u32 s22, s22, s16
    s_mul_i32 s23, s22, 1280
    v_lshlrev_b32 v28, 4, v0
    v_lshlrev_b32 v29, 2, v0
    v_mul_f32 v6, {fb(1/32)}, v6
    v_mul_f32 v7, v6, v7
    v_mul_f32 v6, 4.0, v6
    v_and_b32 v10, 3, v1
    """)
    for j in range(4): a(f"v_cmp_eq_u32 s[{36+2*(j&1)}:{37+2*(j&1)}], {j}, v10" + (f"\nv_cndmask_b32 v{11+j}, 0, -1, s[{36+2*((j-1)&1)}:{37+2*((j-1)&1)}]" if False else "") + f"\ns_nop 1\nv_cndmask_b32 v{12+j}, 0, -1, s[{36+2*(j&1)}:{37+2*(j&1)}]")
    GD, AC = 32, 128
    for ks in range(8):
        a(f"""v_cos_f32 v10, v7
        v_sin_f32 v11, v7
        v_add_f32 v7, v7, v6
        v_cvt_pk_bf16_f32 v10, v10, v11""")
        for j in range(4): a(f"v_and_b32 v{AC+4*ks+j}, v{12+j}, v10")
    def addrs(cbexpr, vd, vm):
        a(f"""
        v_add_u32 v10, {cbexpr}, v1
        v_mul_u32_u24 v11, 205, v10
        v_lshrrev_b32 v11, 11, v11
        v_mul_u32_u24 v16, 10, v11
        v_sub_u32 v16, v10, v16
        v_lshrrev_b32 v17, 2, v11
        v_mul_u32_u24 v17, 160, v17
        v_and_b32 v11, 3, v11
        v_add3_u32 v11, v11, v17, 1
        v_lshl_add_u32 v11, v16, 2, v11
        v_lshlrev_b32 v11, 2, v11
        v_add_u32 v{vd}, v18, v11
        v_sub_u32 v{vm}, v19, v11
        """)
    a(f"""
    v_add_u32 v18, s20, v2
    v_mul_u32_u24 v18, {YP}, v18
    v_mul_u32_u24 v19, {YP}, v5
    v_add_u32 v19, {4*520}, v19
    s_lshl_b32 s21, s15, 4
    s_mul_i32 s24, s3, {YP}
    v_mov_b32 v26, s24
    v_mov_b32 v27, 0
    ds_write_b32 v26, v27
    """)
    addrs("s21", 20, 21)
    addrs("64", 22, 23)
    a(f"""v_cmp_eq_u32 vcc, 15, v1
    v_add_u32 v24, {4*(640-520)}, v19
    s_nop 0
    v_cndmask_b32 v24, v23, v24, vcc
    s_mov_b32 s25, 0xffff0000
    s_mov_b32 s26, 0x3f803f80
    buffer_load_dwordx4 v[100:103], v28, s[4:7], s23 offen
    buffer_load_dword v104, v29, s[4:7], s23 offen offset:1024
    buffer_load_dwordx4 v[108:111], v28, s[28:31], 0 offen
    buffer_load_dword v112, v29, s[28:31], 0 offen offset:1024
    s_cmp_lt_u32 s3, 4
    s_cselect_b32 s40, s52, s54
    s_cselect_b32 s41, s53, s55
    s_and_b32 s36, s2, 7
    s_lshr_b32 s37, s2, 3
    s_mul_i32 s48, s36, 12
    s_movk_i32 s49, 3072
    s_mul_i32 s38, s15, {160*3072}
    s_cmp_lt_u32 s2, 96
    s_cbranch_scc1 k2_wg
    s_mov_b32 s40, s56
    s_mov_b32 s41, s57
    s_mul_i32 s48, s36, 5
    s_sub_u32 s48, s48, 12
    s_movk_i32 s49, 1280
    s_mul_i32 s38, s3, {192*1280}
k2_wg:
    s_add_u32 s48, s48, s37
    s_lshl_b32 s48, s48, 5
    s_add_u32 s38, s38, s48
    v_lshrrev_b32 v6, 1, v0
    v_mul_lo_u32 v6, v6, s49
    v_and_b32 v7, 1, v0
    v_lshl_add_u32 v6, v7, 4, v6
    s_lshl_b32 s49, s49, 5
    s_mul_i32 s36, s3, 6144
    s_add_u32 m0, s36, {L_W}
    s_cmp_lt_u32 s2, 136
    s_cselect_b32 s42, 1966080, 0
    s_mov_b32 s43, 0x00020000
    s_lshl_b32 s37, s2, 6
    s_add_u32 s37, s37, {WS_KEY}
    s_lshl_b32 s36, s3, 13
    s_add_u32 s36, s36, {WS_KEY - 32768}
    s_add_u32 s39, s36, 4096
    v_lshlrev_b32 v30, 6, v0
    s_cmp_ge_u32 s3, 6
    s_cbranch_scc1 k2_nowait
    s_cmp_lg_u32 s3, 4
    s_cbranch_scc1 k2_go_ok
k2_go:
    buffer_load_dword v31, v29, s[44:47], 0 offen {SC}
    s_waitcnt vmcnt(0)
    v_cmp_eq_u32 vcc, 0, v31
    """)
    spin(a, "k2_go")
    a(f"""
    s_waitcnt vmcnt(0)
k2_nowait:
    ;STAMP 6
    s_barrier
    s_cmp_lg_u32 s3, 0
    s_cbranch_scc1 k2_nf
    s_mov_b64 exec, 1
    buffer_store_dword v27, v27, s[8:11], s37 offen {SC}
    s_mov_b64 exec, -1
k2_nf:
    s_barrier
    s_and_b32 s21, s3, 6
    s_cmp_lg_u32 s21, 4
    s_cbranch_scc1 k2_s1_ok
    buffer_load_dword v32, v30, s[8:11], s36 offen {SC}
    buffer_load_dword v33, v30, s[8:11], s39 offen {SC}
k2_s1:
    buffer_load_dword v34, v30, s[8:11], s36 offen {SC}
    buffer_load_dword v35, v30, s[8:11], s39 offen {SC}
    s_waitcnt vmcnt(2)
    v_or_b32 v31, v32, v33
    v_cmp_ne_u32 vcc, 0, v31
    s_cbranch_vccz k2_s1_ok
    buffer_load_dword v32, v30, s[8:11], s36 offen {SC}
    buffer_load_dword v33, v30, s[8:11], s39 offen {SC}
    s_waitcnt vmcnt(2)
    v_or_b32 v31, v34, v35
    v_cmp_ne_u32 vcc, 0, v31
    """)
    spin(a, "k2_s1")
    a("s_barrier\n;STAMP 7")
    def loads(gd):
        for ks in range(8):
            a(f"buffer_load_dwordx4 {vr(gd+4*ks,4)}, v3, s[8:11], s18 offen" + ("\ns_addk_i32 s18, 5120" if ks < 7 else ""))
    def item(gd, acc, vd, vm, vm3, vmbase):
        for ks in range(8):
            a(f"s_waitcnt vmcnt({vmbase-ks})")
            a(f"v_mfma_f32_16x16x32_bf16 {vr(acc,4)}, {vr(AC+4*ks,4)}, {vr(gd+4*ks,4)}, {vr(acc,4) if ks else 0}")
        return [f"ds_write_b32 v{vd}, v{acc+i} offset:{160*i}" for i in range(4)] + \
               [f"ds_write_b32 v{vm3 if i == 3 else vm}, v{acc+i} offset:{160*(3-i)}" for i in range(4)]
    a("s_cmp_eq_u32 s19, 0\ns_cbranch_scc1 k2_one\ns_mov_b32 s21, s18\ns_add_u32 s18, s17, 1024")
    loads(GD + 32)
    a("s_mov_b32 s18, s21")
    loads(GD)
    w2 = item(GD + 32, 164, 22, 23, 24, 15)
    a("s_nop 7")
    for t in w2: a(t)
    a("s_branch k2_two\nk2_one:")
    loads(GD)
    a("k2_two:")
    w1 = item(GD, 160, 20, 21, 21, 7)
    Y, H = 32, 48
    a(f"""
    v_lshl_add_u32 v10, v0, 5, s24
    v_lshl_add_u32 v11, v0, 3, s24
    v_mov_b32 v12, 0
    v_mov_b32 v13, 0""")
    for j in range(2): a(f"v_lshlrev_b32 v{H+2*j}, 16, v{100+j}\nv_and_b32 v{H+2*j+1}, s25, v{100+j}")
    for t in w1: a(t)
    for j in range(2, 5): a(f"v_lshlrev_b32 v{H+2*j}, 16, v{100+j}\nv_and_b32 v{H+2*j+1}, s25, v{100+j}")
    a(f"""
    s_waitcnt lgkmcnt(0)
    ;STAMP 8
    s_barrier
    ;EPI0
    ds_read_b128 v[32:35], v10
    ds_read_b128 v[36:39], v10 offset:16
    ds_read_b64 v[40:41], v11 offset:2048
    s_waitcnt lgkmcnt(0)
    """)
    for j in range(10): a(f"v_add_f32 v{Y+j}, v{Y+j}, v{H+j}")
    for j in range(5): a(f"v_cvt_pk_bf16_f32 v{60+j}, v{Y+2*j}, v{Y+2*j+1}")
    for j in range(5): a(f"v_dot2c_f32_bf16 v12, s26, v{60+j}\nv_dot2c_f32_bf16 v13, v{60+j}, v{60+j}")
    for j in range(5):
        a(f"v_lshlrev_b32 v{H+2*j}, 16, v{60+j}\nv_and_b32 v{H+2*j+1}, s25, v{60+j}")
    wave_red(a, [12, 13])
    a(f"""
    s_nop 0
    v_readlane_b32 s36, v12, 63
    v_readlane_b32 s37, v13, 63
    v_mov_b32 v14, {fb(1/640)}
    v_mul_f32 v12, s36, v14
    v_mul_f32 v13, s37, v14
    v_fma_f32 v13, -v12, v12, v13
    v_max_f32 v13, 0, v13
    v_cvt_pk_bf16_f32 v13, v12, v13
    v_lshlrev_b32 v12, 16, v13
    v_and_b32 v13, s25, v13
    v_add_f32 v13, {fb(1e-5)}, v13
    v_cvt_pk_bf16_f32 v13, v13, v13
    v_and_b32 v13, s25, v13
    v_sqrt_f32 v13, v13
    s_nop 0
    v_cvt_pk_bf16_f32 v13, v13, v13
    v_and_b32 v13, s25, v13
    v_rcp_f32 v13, v13
    s_nop 0
    v_mul_f32 v12, v12, v13
    v_mov_b32 v14, 0
    """)
    for j in range(10): a(f"v_fma_f32 v{Y+j}, v{H+j}, v13, -v12")
    for j in range(5): a(f"v_cvt_pk_bf16_f32 v{68+j}, v{Y+2*j}, v{Y+2*j+1}")
    for j in range(5): a(f"v_dot2c_f32_bf16 v14, v{68+j}, v{108+j}")
    for j in range(5):
        a(f"v_lshlrev_b32 v{Y+2*j}, 16, v{68+j}\nv_and_b32 v{Y+2*j+1}, s25, v{68+j}")
    b = A(); wave_red(b, [14]); red = [t for t in b.l if "dpp" in t]
    steps = [f"v_add_f32 v{Y+j}, v{Y+j}, v{H+j}" for j in range(10)] + ["v_min_u32 v60, -2, v60", "v_min_u32 v61, -2, v61"]
    for k in range(6):
        a(red[k]); a(steps[2*k]); a(steps[2*k+1])
    a(f"""
    v_readlane_b32 s36, v14, 63
    s_lshl_b32 s37, s3, 2
    v_mov_b32 v15, s37
    v_cvt_pk_bf16_f32 v14, s36, s36
    v_ashrrev_i32 v16, 31, v14
    v_or_b32 v16, 0x80000000, v16
    v_xor_b32 v14, v14, v16
    v_and_b32 v14, s25, v14
    v_or_b32 v16, s3, v14
    ;EPI1
    ds_write_b32 v15, v16 offset:{L_KEY}
    v_and_b32 v15, 28, v29
    """)
    for j in range(5): a(f"v_cvt_pk_bf16_f32 v{76+j}, v{Y+2*j}, v{Y+2*j+1}")
    for j in (62, 63, 64, 68, 69, 70, 71, 72): a(f"v_min_u32 v{j}, -2, v{j}")
    a(f"""
    s_waitcnt lgkmcnt(0)
    s_barrier
    ds_read_b32 v15, v15 offset:{L_KEY}
    v_mov_b32 v17, s22
    s_waitcnt lgkmcnt(0)
    v_cmp_gt_u32 vcc, v15, v16
    s_bcnt1_i32_b32 s36, vcc_lo
    s_lshr_b32 s36, s36, 2
    s_cmp_ge_u32 s36, 2
    s_cbranch_scc1 k2_plain
    s_lshl_b32 s37, s2, 1
    s_add_u32 s37, s36, s37
    v_or_b32 v14, s37, v14
    s_mul_i32 s37, s37, {SLOT}
    s_add_u32 s37, s37, {WS_SLOT}
    s_lshl_b32 s38, s2, 4
    s_add_u32 s36, s36, s38
    s_lshl_b32 s36, s36, 2
    s_add_u32 s36, s36, {WS_KEY + 8}
    buffer_store_dwordx4 v[68:71], v28, s[8:11], s37 offen sc1
    buffer_store_dword v72, v29, s[8:11], s37 offen offset:1024 sc1
    s_mov_b64 exec, 1
    buffer_store_dword v14, v27, s[8:11], s36 offen {SC}
    buffer_store_dword v17, v27, s[8:11], s37 offen offset:2560 sc1
    s_mov_b64 exec, -1
    buffer_store_dwordx4 v[60:63], v28, s[8:11], s37 offen offset:1280 sc1
    buffer_store_dword v64, v29, s[8:11], s37 offen offset:2304 sc1
    v_readfirstlane_b32 s51, v14
    s_barrier
    s_branch k2_s2
k2_plain:
    ;STAMP 9
    s_mov_b32 s51, -1
    s_barrier
    buffer_store_dwordx4 v[76:79], v28, s[32:35], s23 offen
    buffer_store_dword v80, v29, s[32:35], s23 offen offset:1024
    s_cmp_ge_u32 s36, 6
    s_cbranch_scc1 k2_s2
    v_lshlrev_b32 v4, 6, v0
    s_lshl_b32 s24, s36, 12
    s_add_u32 s24, s24, {WS_KEY - 8192}
    s_lshl_b32 s36, s36, 3
    v_mov_b32 v5, s36
k2_s2p:
    buffer_load_dwordx2 v[8:9], v4, s[8:11], s24 offen offset:8 {SC}
    s_waitcnt vmcnt(0)
    v_max_u32 v16, v8, v9
    v_cmp_eq_u32 vcc, -1, v16
    """)
    spin(a, "k2_s2p")
    a("v_mov_b32 v19, v16\nv_min_u32 v17, v8, v9")
    wave_red(a, [19], "v_max_u32")
    a("s_nop 0\nv_readlane_b32 s20, v19, 63\ns_nop 1\nv_cmp_eq_u32 vcc, s20, v16\ns_nop 1\nv_cndmask_b32 v18, v16, v17, vcc")
    wave_red(a, [18], "v_max_u32")
    a(f"""
    v_mov_b32 v16, s20
    v_readlane_b32 s21, v18, 63
    s_nop 1
    v_mov_b32 v17, s21
    ds_write_b64 v5, v[16:17] offset:{L_TOP - 16}
k2_s2:
    s_waitcnt vmcnt(0) lgkmcnt(0)
    s_barrier
    ds_read_b128 v[8:11], v27 offset:{L_TOP}
    ds_read_b128 v[12:15], v27 offset:{L_TOP + 16}
    s_waitcnt lgkmcnt(0)
    ;STAMP 10
    v_min_u32 v16, v8, v10
    v_min_u32 v17, v12, v14
    v_max3_u32 v9, v9, v11, v16
    v_max3_u32 v13, v13, v15, v17
    v_max_u32 v8, v8, v10
    v_max_u32 v12, v12, v14
    v_min_u32 v16, v8, v12
    v_max3_u32 v17, v9, v13, v16
    v_max_u32 v16, v8, v12
    s_nop 0
    v_readfirstlane_b32 s21, v17
    v_readfirstlane_b32 s20, v16
    s_cmp_ge_u32 s51, s21
    s_cbranch_scc1 k2_sel
    buffer_store_dwordx4 v[76:79], v28, s[32:35], s23 offen
    buffer_store_dword v80, v29, s[32:35], s23 offen offset:1024
k2_sel:
    s_cmp_ge_u32 s2, 136
    s_cbranch_scc1 k_end
    """)

    i0, i1 = a.l.index("    ;EPI0"), a.l.index("    ;EPI1")
    dma = "buffer_load_dwordx4 v6, s[40:43], s38 offen lds"
    for j, at in reversed(list(enumerate([4, 20, 36, 60, 80, 100]))):
        ins = [dma, "s_addk_i32 m0, 1024", "s_add_u32 s38, s38, s49"] if j < 5 else ["s_cmp_lt_u32 s2, 96", "s_cbranch_scc1 k2_nw", dma, "k2_nw:"]
        a.l[i0+at:i0+at] = [t if t.endswith(":") else "    " + t for t in ins]

def ffn(a):
    AF, BF, PB = 32, 88, L_PB
    a(f"""
    s_and_b32 s22, s20, 0x1ff
    s_and_b32 s23, s21, 0x1ff
    s_mul_i32 s22, s22, {SLOT}
    s_mul_i32 s23, s23, {SLOT}
    v_mov_b32 v16, s22
    v_mov_b32 v17, s23
    v_lshrrev_b32 v6, 2, v1
    v_lshl_add_u32 v6, v2, 3, v6
    v_lshlrev_b32 v6, 5, v6
    v_and_b32 v7, 3, v1
    v_lshl_add_u32 v6, v7, 3, v6
    s_mul_i32 s19, s3, 6144
    s_add_u32 s19, s19, {L_W}
    v_add_u32 v7, s19, v6
    s_and_b32 s17, s2, 7
    s_lshr_b32 s18, s2, 3
    s_mov_b32 s26, {WS_SLOT}
    v_cmp_gt_u32 vcc, 8, v1
    s_cmp_ge_u32 s2, 96
    s_cbranch_scc1 k4
    s_and_b32 s16, s3, 3
    s_mul_i32 s16, s16, 320
    v_cndmask_b32 v5, v17, v16, vcc
    v_lshl_add_u32 v5, v2, 4, v5
    s_add_u32 s26, s26, s16
    s_mul_i32 s17, s17, 12
    """)
    def common(nm, nks, soff):
        for j in range(nks):
            va, o = "v7", 1024*j
            a(f"ds_read_b64_tr_b16 {vr(BF+4*j,2)}, {va} offset:{o}\nds_read_b64_tr_b16 {vr(BF+4*j+2,2)}, {va} offset:{o+128}")
        a(f"{nm}_p:")
        for j in range(nks): a(f"buffer_load_dwordx4 {vr(AF+4*j,4)}, v5, s[8:11], {soff} offen offset:{(64 if nks == 5 else 128)*j} {SC}")
        a("s_waitcnt vmcnt(0)")
        n = 4*nks
        a(f"v_max3_u32 v8, v{AF}, v{AF+1}, v{AF+2}\nv_max3_u32 v9, v{AF+3}, v{AF+4}, v{AF+5}")
        for k in range(6, n, 4): a(f"v_max3_u32 v8, v8, v{AF+k}, v{AF+k+1}" + (f"\nv_max3_u32 v9, v9, v{AF+k+2}, v{AF+k+3}" if k+2 < n else ""))
        a("v_max_u32 v8, v8, v9\nv_cmp_eq_u32 vcc, -1, v8")
        spin(a, nm + "_p")
        a(f";STAMP 11\ns_lshl_b32 s27, s3, 8\nv_lshl_add_u32 v7, v0, 2, s27\ns_waitcnt lgkmcnt(0)")
        for j in range(nks):
            a(f"v_mfma_f32_16x16x32_bf16 v[84:87], {vr(AF+4*j,4)}, {vr(BF+4*j,4)}, {'v[84:87]' if j else 0}")
        a(f"""
        s_add_u32 s18, s18, s17
        s_lshl_b32 s18, s18, 5
        s_nop 5
        ds_write_b32 v7, v84 offset:{PB}
        s_waitcnt lgkmcnt(0)
        s_barrier
        s_cmp_lg_u32 s3, 0
        s_cbranch_scc1 k_end
        """)
        for w in range(8): a(f"ds_read_b32 v{32+w}, v29 offset:{PB+256*w}")
        a("v_and_b32 v7, " + ("17" if nm == "k3" else "16") + ", v0\nv_cmp_eq_u32 vcc, 0, v7\ns_waitcnt lgkmcnt(0)")
        a("v_add_f32 v32, v32, v33\nv_add_f32 v34, v34, v35\nv_add_f32 v36, v36, v37\nv_add_f32 v38, v38, v39\nv_add_f32 v24, v32, v34\nv_add_f32 v25, v36, v38")
    common("k3", 5, "s26")
    a(f"""
    v_cvt_pk_bf16_f32 v24, v24, v25
    v_lshlrev_b32 v25, 16, v24
    v_and_b32 v24, s25, v24
    v_mul_f32 v26, {fb(-1.4426950408889634)}, v25
    v_exp_f32 v26, v26
    v_lshrrev_b32 v16, 5, v0
    v_add_f32 v26, 1.0, v26
    v_rcp_f32 v26, v26
    v_lshlrev_b32 v16, 5, v16
    v_mul_f32 v25, v25, v26
    v_cvt_pk_bf16_f32 v25, v25, v25
    v_and_b32 v25, s25, v25
    v_mul_f32 v24, v24, v25
    v_lshl_add_u32 v16, v1, 1, v16
    s_lshl_b32 s18, s18, 1
    s_add_u32 s18, s18, {WS_ACT}
    v_mov_b32_dpp v25, v24 quad_perm:[1,1,3,3] {DPPF}
    v_cvt_pk_bf16_f32 v24, v24, v25
    v_min_u32 v24, -2, v24
    s_and_saveexec_b64 s[36:37], vcc
    buffer_store_dword v24, v16, s[8:11], s18 offen {SC}
    s_endpgm
k4:
    s_mul_i32 s16, s3, 768
    s_add_u32 s16, s16, {WS_ACT}
    v_cndmask_b32 v5, 3072, 0, vcc
    """.replace("v_cndmask_b32 v5, 3072, 0, vcc", "v_lshrrev_b32 v5, 3, v1\nv_and_b32 v4, 2, v2\nv_add_u32 v5, v5, v4\nv_lshlrev_b32 v5, 5, v5\nv_and_b32 v4, 1, v2"))
    a(f"""
    v_lshl_add_u32 v5, v4, 4, v5
    s_mul_i32 s17, s17, 5
    s_sub_u32 s18, s18, 12
    s_add_u32 s19, s18, s17
    s_lshl_b32 s19, s19, 5
    v_cmp_gt_u32 vcc, 32, v0
    v_mov_b32 v18, s20
    v_mov_b32 v19, s21
    v_cndmask_b32 v16, v17, v16, vcc
    v_cndmask_b32 v18, v19, v18, vcc
    v_and_b32 v17, 14, v1
    v_lshl_add_u32 v17, v17, 1, v16
    v_add_u32 v17, s19, v17
    """)
    a(f"""
    s_cmp_lg_u32 s3, 0
    s_cbranch_scc1 k4_h_ok
k4_h:
    buffer_load_dword v20, v17, s[8:11], s26 offen {SC}
    buffer_load_dword v21, v17, s[8:11], s26 offen offset:1280 {SC}
    buffer_load_dword v22, v16, s[8:11], s26 offen offset:2560 {SC}
    s_waitcnt vmcnt(0)
    v_max3_u32 v8, v20, v21, v22
    v_cmp_eq_u32 vcc, -1, v8
    """)
    spin(a, "k4_h")
    common("k4", 6, "s16")
    a(f"""
    v_ashrrev_i32 v19, 31, v18
    v_not_b32 v19, v19
    v_or_b32 v19, 0x80000000, v19
    v_xor_b32 v18, v18, v19
    v_and_b32 v18, s25, v18
    v_mul_f32 v18, {fb(-1.4426950408889634)}, v18
    v_exp_f32 v18, v18
    v_add_f32 v24, v24, v25
    v_add_f32 v18, 1.0, v18
    v_rcp_f32 v18, v18
    v_and_b32 v19, 1, v1
    v_lshlrev_b32 v19, 4, v19
    v_cvt_pk_bf16_f32 v24, v24, v18
    v_lshlrev_b32 v25, 16, v24
    v_and_b32 v24, s25, v24
    v_mul_f32 v24, v24, v25
    v_cvt_pk_bf16_f32 v24, v24, v24
    v_and_b32 v24, s25, v24
    v_lshrrev_b32 v20, v19, v20
    v_lshrrev_b32 v21, v19, v21
    v_lshlrev_b32 v20, 16, v20
    v_lshlrev_b32 v21, 16, v21
    v_and_b32 v22, 0x7ff, v22
    v_mul_u32_u24 v22, 1280, v22
    v_add_f32 v24, v24, v20
    v_cvt_pk_bf16_f32 v24, v24, v24
    v_and_b32 v24, s25, v24
    v_add_f32 v24, v24, v21
    v_cvt_pk_bf16_f32 v24, v24, v24
    v_lshl_add_u32 v22, v1, 1, v22
    s_and_saveexec_b64 s[36:37], vcc
    buffer_store_short v24, v22, s[32:35], s18 offen
    """)
```

```python
import sys
from gen2b import k2, ffn, spin
from gen import A, fb, vr, DPPF, NAME, XB, wave_red
WS_G, WS_SLOT, WS_KEY, WS_ACT = 0, 0x300000, 0x280000, 0x284000
WS_SIZE = 0x1000000
SLOT = 3072
L_B, L_A, L_W = 81920, 107520, 121344
LDS = L_W
YP = 2576
L_KEY, L_TOP, L_PB, L_W5 = 24576, 24576 + 64, 28672, 32768
SPIN = 1 << 15
SC = "sc0 sc1"
def srd(a, d, nbytes): a(f"s_mov_b32 s{d+2}, {nbytes}\ns_mov_b32 s{d+3}, 0x00020000")

def entry(a):
    a(f"""
    s_cmp_ge_u32 s2, 256
    s_cbranch_scc1 k_end
    s_load_dwordx2 s[4:5], s[0:1], 0
    s_load_dwordx4 s[44:47], s[0:1], 88
    s_load_dwordx8 s[52:59], s[0:1], 56
    s_load_dwordx2 s[28:29], s[0:1], 48
    v_lshrrev_b32 v1, 6, v0
    v_and_b32 v0, 63, v0
    s_and_b32 s12, s2, 7
    s_lshr_b32 s13, s2, 6
    v_readfirstlane_b32 s3, v1
    s_lshl_b32 s13, s13, 3
    s_add_u32 s12, s12, s13
    s_bfe_u32 s13, s2, 0x30003
    s_and_b32 s14, s13, 3
    s_add_u32 s14, s14, 1
    s_lshr_b32 s15, s13, 2
    v_and_b32 v1, 15, v0
    v_lshrrev_b32 v2, 4, v0
    """)
    srd(a, 4, XB); srd(a, 8, WS_SIZE)
    a("s_cmp_lt_u32 s3, 4\ns_cbranch_scc1 k_main")
def ptrs(a):
    a("s_mov_b32 s8, s46\ns_mov_b32 s9, s47\ns_mov_b32 s32, s58\ns_mov_b32 s33, s59")
    srd(a, 44, 256); srd(a, 28, 1280); srd(a, 32, XB)

NPRE = 8
DG = len(sys.argv) > 2
def k1main(a):
    a(f"""
k_main:
    v_lshrrev_b32 v3, 2, v0
    s_lshl_b32 s16, s3, 4
    v_add_u32 v3, s16, v3
    s_mov_b32 s17, 40960
    v_mul_lo_u32 v3, v3, s17
    v_lshrrev_b32 v4, 5, v0
    v_mul_u32_u24 v4, 3, v4
    v_and_b32 v5, 3, v0
    v_xor_b32 v4, v4, v5
    v_lshl_add_u32 v3, v4, 4, v3
    s_mul_i32 s18, s12, 1280
    s_mul_i32 s19, s3, 20480
    s_mov_b32 m0, s19
    s_add_u32 s20, s18, {64*NPRE}
    s_lshl_b32 s21, s13, 2
    s_add_u32 s21, s21, s3
    s_mul_i32 s21, s21, {2*40960}
    s_add_u32 s21, s21, s18
    v_lshrrev_b32 v6, 5, v0
    v_mul_u32_u24 v6, 40960, v6
    v_and_b32 v7, 31, v0
    v_med3_u32 v7, v7, {NPRE}, 19
    v_lshl_add_u32 v6, v7, 6, v6
    s_waitcnt lgkmcnt(0)
    buffer_load_dword v239, v6, s[4:7], s21 offen
k1_dma:
    buffer_load_dwordx4 v3, s[4:7], s18 offen lds
    s_addk_i32 s18, 64
    s_addk_i32 m0, 1024
    s_cmp_lt_u32 s18, s20
    s_cbranch_scc1 k1_dma
    """)
    ptrs(a)
    CR, CI, CN = 200, 208, 216
    B, X, P, Q, R, S, SQ, ONE, T = 20, 120, 132, 152, 172, 192, 196, 224, 228
    a(f"""
    v_add_u32 v4, s16, v1
    v_cvt_f32_u32 v4, v4
    v_lshlrev_b32 v5, 8, v2
    v_add_u32 v5, s12, v5
    v_cvt_f32_u32 v5, v5
    s_mul_i32 s21, s14, 3
    v_cvt_f32_u32 v6, s21
    v_mul_f32 v5, v4, v5
    v_mul_f32 v6, {fb(0.25)}, v6
    v_mul_f32 v7, {fb(1/64)}, v4
    v_fmac_f32 v6, {fb(1/2048)}, v5
    v_fract_f32 v6, v6
    s_and_b32 s21, s14, 1
    s_lshl_b32 s22, s21, 31
    s_or_b32 s22, s22, 0x3f800000
    s_and_b32 s23, s14, 2
    s_lshl_b32 s23, s23, 30
    s_or_b32 s23, s23, 0x3f800000
    s_cmp_eq_u32 s21, 1
    s_cselect_b32 s24, s23, 0
    s_cselect_b32 s23, 0, s23
    s_xor_b32 s25, s24, 0x80000000
    v_mov_b32 v12, s24
    v_mov_b32 v13, s25
    v_cmp_gt_u32 vcc, 8, v1
    v_lshrrev_b32 v4, 3, v1
    v_mul_u32_u24 v4, 3, v4
    v_cndmask_b32 v12, v12, v13, vcc
    v_xor_b32 v4, v4, v2
    v_lshlrev_b32 v4, 4, v4
    v_lshl_add_u32 v4, v1, 6, v4
    v_add_u32 v4, s19, v4
    v_lshlrev_b32 v19, 4, v0
    v_add_u32 v19, {L_B}, v19
    v_lshlrev_b32 v13, 2, v2
    v_sub_u32 v13, v1, v13
    v_mov_b32 v18, 1.0
    """)
    for i in range(4): a(f"v_mov_b32 v{ONE+i}, 0x3f803f80\nv_cmp_eq_u32 s[{36+2*i}:{37+2*i}], {i}, v13")
    a("s_mov_b32 s50, 0\n;STAMP 1\ns_barrier\n;STAMP 2")
    xb = lambda i: [120, 124, 128, 172, 176][i] if i < 5 else X + 4 * (i % 3)
    for f in range(25):
        a(f"ds_read_b128 {vr(B+4*f,4)}, v19 offset:{1024*f}")
        if f % 5 == 4: a(f"s_waitcnt vmcnt({NPRE-1-f//5})\nds_read_b128 {vr(xb(f//5),4)}, v4 offset:{1024*(f//5)}")
    fill = {i: [] for i in range(20)}
    for j in range(20):
        fill[6 + j // 5].append(f"v_mul_f32 v{P+j}, s22, v{P+j}")
        fill[11 + j // 5].append(f"v_mul_f32 v{Q+j}, s22, v{Q+j}")
    slots = [0, 1, 2, 3, 4, 5, 10, 15]
    for ks in range(2):
        for jp in range(4):
            f = fill[slots[4*ks+jp]]
            if ks and not jp: f += ["v_fmac_f32 v6, 0x41c00000, v7", "v_fract_f32 v6, v6"]
            f += f"""v_cos_f32 v8, v6
            v_sin_f32 v9, v6
            v_add_f32 v6, v6, v7
            v_cos_f32 v10, v6
            v_sin_f32 v11, v6
            v_add_f32 v6, v6, v7
            v_cvt_pk_bf16_f32 v{CR+4*ks+jp}, v8, v10
            v_cvt_pk_bf16_f32 v{CN+4*ks+jp}, v9, v11
            v_cvt_pk_bf16_f32 v{CI+4*ks+jp}, -v9, -v11""".split("\n")
    rot = []
    for b in range(2):
        for i in range(4):
            re, im = P + 4*b + i, P + 8 + 4*b + i
            rot += [f"v_mul_f32 v{R+4*b+i}, s23, v{re}", f"v_mul_f32 v{R+8+4*b+i}, s23, v{im}",
                    f"v_fmac_f32 v{R+4*b+i}, s25, v{im}", f"v_fmac_f32 v{R+8+4*b+i}, s24, v{re}"]
    for i in range(4): rot += [f"v_mul_f32 v{R+16+i}, s23, v{P+16+i}"]
    for i in range(4): rot += [f"v_fmac_f32_dpp v{R+16+i}, v{P+16+i}, v12 row_ror:8 {DPPF}"]
    for j, t in enumerate(rot): fill[16 + min(j // 14, 2)].append(t)
    for i in range(20):
        q, ks = divmod(i, 5)
        x = xb(i)
        if i + NPRE < 20: a("buffer_load_dwordx4 v3, s[4:7], s18 offen lds\ns_addk_i32 m0, 1024\ns_addk_i32 s18, 64")
        if i + NPRE == 20: a("s_barrier")
        if 3 <= i <= 17: a(f"s_waitcnt vmcnt({min(i+NPRE+1, 20)-i-3})\nds_read_b128 {vr(xb(i+2),4)}, v4 offset:{1024*(i+2)}")
        a(f"s_waitcnt lgkmcnt({[15, 15, 12, 7][i] if i < 4 else min(2, 19-i)})")
        if DG and i in (5, 12): a(f';STAMP {11 if i == 5 else 12}')
        acc = P if q % 2 == 0 else Q
        mf = []
        for b in range(5):
            c = "0" if (q < 2 and ks == 0) else vr(acc+4*b, 4)
            mf.append(f"v_mfma_f32_16x16x32_bf16 {vr(acc+4*b,4)}, {vr(x,4)}, {vr(B+20*ks+4*b,4)}, {c}")
        st = [f"v_mfma_f32_16x16x32_bf16 {vr(SQ,4)}, {vr(x,4)}, {vr(x,4)}, {vr(SQ,4) if i else 0}",
              f"v_mfma_f32_16x16x32_bf16 {vr(S,4)}, {vr(x,4)}, {vr(ONE,4)}, {vr(S,4) if i else 0}"]
        if i < 19:
            mf = mf + st; fl = fill[i]
            per = -(-len(fl) // 7)
            for b in range(7):
                a(mf[b])
                for t in fl[b*per:(b+1)*per]: a(t)
        else:
            a(st[0]); a(st[1]); a(mf[0]); a(mf[1])
            a(f"""
            s_lshl_b32 s27, s3, 5
            s_add_u32 s27, s27, {L_A}
            v_lshl_add_u32 v6, v2, 3, s27
            v_mul_u32_u24 v7, 144, v1
            v_add_u32 v7, v6, v7
            v_and_b32 v8, 7, v1
            v_cndmask_b32 v14, 0, v{SQ}, s[36:37]
            v_cndmask_b32 v14, v14, v{SQ+1}, s[38:39]
            v_cndmask_b32 v14, v14, v{SQ+2}, s[40:41]
            v_cndmask_b32 v14, v14, v{SQ+3}, s[42:43]
            v_mul_u32_u24 v8, 144, v8
            v_lshrrev_b32 v9, 3, v1
            v_mfma_f32_16x16x4_f32 {vr(SQ,4)}, v14, v18, 0
            v_mul_u32_u24 v9, 6912, v9
            v_add3_u32 v6, v6, v8, v9""")
            a(mf[2]); [a(f"v_mul_f32 v{S+k}, {fb(1/640)}, v{S+k}") for k in range(4)]
            a(mf[3]); a(mf[4])
    a(";STAMP 3\ns_nop 3")
    for i in range(4): a(f"v_mul_f32 v{SQ+i}, {fb(1/640)}, v{SQ+i}")
    for i in range(4): a(f"v_fma_f32 v{S+i}, -v{S+i}, v{S+i}, v{SQ+i}")
    for i in range(4): a(f"v_max_f32 v{S+i}, 0, v{S+i}")
    def rnd4():
        a(f"""v_cvt_pk_bf16_f32 v{T}, v{S}, v{S+1}
        v_cvt_pk_bf16_f32 v{T+1}, v{S+2}, v{S+3}
        v_lshlrev_b32 v{S}, 16, v{T}
        v_and_b32 v{S+1}, 0xffff0000, v{T}
        v_lshlrev_b32 v{S+2}, 16, v{T+1}
        v_and_b32 v{S+3}, 0xffff0000, v{T+1}""")
    rnd4()
    for i in range(4): a(f"v_add_f32 v{S+i}, {fb(1e-5)}, v{S+i}")
    rnd4()
    for i in range(4): a(f"v_sqrt_f32 v{S+i}, v{S+i}")
    for i in range(4): a(f"v_add_f32 v{Q+i}, v{Q+i}, v{R+i}")
    rnd4()
    for i in range(4): a(f"v_rcp_f32 v{S+i}, v{S+i}")
    for i in range(4, 20): a(f"v_add_f32 v{Q+i}, v{Q+i}, v{R+i}")
    for b in range(5):
        for i in range(4): a(f"v_mul_f32 v{Q+4*b+i}, v{Q+4*b+i}, v{S+i}")
        a(f"v_cvt_pk_bf16_f32 v{R+4*b}, v{Q+4*b}, v{Q+4*b+1}\nv_cvt_pk_bf16_f32 v{R+4*b+1}, v{Q+4*b+2}, v{Q+4*b+3}")
        if b < 4: a(f"ds_write_b64 v7, {vr(R+4*b,2)} offset:{(b&1)*16*144 + (b>>1)*6912}")
        else: a(f"ds_write_b64 v6, {vr(R+4*b,2)} offset:{32*144}")
    a(f"""
    v_mul_u32_u24 v7, 144, v1
    v_lshl_add_u32 v7, v2, 4, v7
    v_add_u32 v7, {L_A}, v7
    v_lshl_add_u32 v8, v2, 2, s16
    v_mul_lo_u32 v8, v8, s17
    s_mul_i32 s18, s12, 1280
    s_mul_i32 s19, s13, 160
    s_add_u32 s18, s18, s19
    v_lshl_add_u32 v8, v1, 2, v8
    v_add_u32 v8, s18, v8
    v_bfrev_b32 v9, 1
    v_cndmask_b32 v9, v9, v8, vcc
    s_mov_b32 s18, {2*40960}
    s_mov_b32 s19, {3*40960}
    s_waitcnt lgkmcnt(0)
    s_barrier
    ;STAMP 4
    """)
    D = 20
    for mb in range(3):
        for p in range(2):
            for ks in range(2):
                a(f"ds_read_b128 {vr(D+16*mb+8*p+4*ks,4)}, v7 offset:{mb*16*144 + p*6912 + 64*ks}")
    O = 70
    def outs(m):
        dr, di = O + 8*m, O + 8*m + 4
        for i in range(4):
            a(f"v_cvt_pk_bf16_f32 v{100+4*m+i}, v{dr+i}, v{di+i}")
            so = ["0", "s17", "s18", "s19"][i]
            a(f"buffer_store_dword v{100+4*m+i}, v{9 if m == 2 else 8}, s[8:11], {so} offen offset:{64*m} sc1")
    for mb in range(3):
        d = D + 16*mb; dr, di = O + 8*mb, O + 8*mb + 4
        a(f"""s_waitcnt lgkmcnt({10-4*mb})
        v_mfma_f32_16x16x32_bf16 {vr(dr,4)}, {vr(CR,4)}, {vr(d,4)}, 0
        v_mfma_f32_16x16x32_bf16 {vr(di,4)}, {vr(CI,4)}, {vr(d,4)}, 0
        v_mfma_f32_16x16x32_bf16 {vr(dr,4)}, {vr(CR+4,4)}, {vr(d+4,4)}, {vr(dr,4)}
        v_mfma_f32_16x16x32_bf16 {vr(di,4)}, {vr(CI+4,4)}, {vr(d+4,4)}, {vr(di,4)}
        s_waitcnt lgkmcnt({8-4*mb})
        v_mfma_f32_16x16x32_bf16 {vr(dr,4)}, {vr(CN,4)}, {vr(d+8,4)}, {vr(dr,4)}
        v_mfma_f32_16x16x32_bf16 {vr(di,4)}, {vr(CR,4)}, {vr(d+8,4)}, {vr(di,4)}
        v_mfma_f32_16x16x32_bf16 {vr(dr,4)}, {vr(CN+4,4)}, {vr(d+12,4)}, {vr(dr,4)}
        v_mfma_f32_16x16x32_bf16 {vr(di,4)}, {vr(CR+4,4)}, {vr(d+12,4)}, {vr(di,4)}""")
        if mb: outs(mb - 1)
    a("s_nop 7")
    outs(2)
    a(";STAMP 5")

def helper(a):
    a(f"""
k_helper:
    s_getpc_b64 s[20:21]
k_pc:
    s_sub_u32 s20, s20, k_pc-{NAME}_kernel
    s_subb_u32 s21, s21, 0
    s_lshl_b32 s16, s3, 12
    s_sub_u32 s16, s16, 16384
    v_lshl_add_u32 v40, v0, 6, s16
    v_min_u32 v40, k_end-{NAME}_kernel, v40
    global_load_dword v41, v40, s[20:21]
    s_mul_i32 s16, s15, 160
    s_add_u32 s16, s16, s14
    v_and_b32 v3, 3, v1
    v_mul_u32_u24 v3, 40, v3
    v_add_u32 v3, s16, v3
    v_and_b32 v4, 12, v1
    v_add_u32 v4, v3, v4
    v_add_u32 v5, 16, v4
    v_and_b32 v6, 4, v1
    v_add3_u32 v6, v3, v6, 32
    v_cvt_f32_u32 v4, v4
    v_cvt_f32_u32 v5, v5
    v_cvt_f32_u32 v6, v6
    v_lshrrev_b32 v7, 3, v1
    v_cvt_f32_u32 v7, v7
    v_mul_f32 v4, {fb(1/640)}, v4
    v_mul_f32 v5, {fb(1/640)}, v5
    v_mul_f32 v6, {fb(1/640)}, v6
    v_mul_f32 v7, {fb(0.25)}, v7
    v_cos_f32 v24, v4
    v_cos_f32 v25, v5
    v_cos_f32 v26, v6
    s_sub_u32 s18, s3, 4
    s_movk_i32 s19, 31
    v_add_f32 v24, v24, v24
    v_add_f32 v25, v25, v25
    v_add_f32 v26, v26, v26
k1_hloop:
    s_lshl_b32 s16, s18, 5
    v_lshl_add_u32 v8, v2, 3, s16
    v_cvt_f32_u32 v8, v8
    s_mul_i32 s17, s18, 5120
    s_add_u32 s17, s17, {L_B}
    v_lshl_add_u32 v9, v0, 4, s17
    """)
    for j, (st, ph) in enumerate([(0, "0"), (1, "0"), (0, fb(0.25)), (1, fb(0.25)), (2, "v7")]):
        a(f"s_bitcmp1_b32 s19, {j}\ns_cbranch_scc0 k1_hs{j}")
        if ph.startswith("0x"): a(f"v_fmaak_f32 v10, v{4+st}, v8, {ph}")
        else: a(f"v_fma_f32 v10, v{4+st}, v8, {ph}")
        a(f"v_fract_f32 v10, v10\nv_add_f32 v11, v10, v{4+st}\nv_cos_f32 v12, v10\nv_cos_f32 v13, v11\ns_nop 0")
        for k in range(2, 8): a(f"v_fma_f32 v{12+k}, v{24+st}, v{11+k}, -v{10+k}")
        for k in range(4): a(f"v_cvt_pk_bf16_f32 v{20+k}, v{12+2*k}, v{13+2*k}")
        a(f"ds_write_b128 v9, v[20:23] offset:{1024*j}\nk1_hs{j}:")
    a(f"""
    s_cmp_eq_u32 s18, 4
    s_cbranch_scc1 k1_hdone
    s_lshl_b32 s19, 1, s18
    s_cmp_eq_u32 s18, 0
    s_cselect_b32 s19, 17, s19
    s_mov_b32 s18, 4
    s_branch k1_hloop
k1_hdone:
    v_mov_b32 v36, -1
    v_mov_b32 v37, -1
    v_mov_b32 v38, -1
    v_mov_b32 v39, -1
    v_lshlrev_b32 v3, 4, v0
    s_waitcnt lgkmcnt(0)
    ;STAMP 1
    s_barrier
    """)
    ptrs(a)
    a(f"""
    s_lshl_b32 s51, s2, 3
    s_add_u32 s51, s51, s3
    s_cmp_lg_u32 s51, 4
    s_cbranch_scc1 k1_hd2
    s_mov_b32 s20, {WS_KEY}
k_clr0:
    buffer_store_dwordx4 v[36:39], v3, s[8:11], s20 offen sc1
    s_addk_i32 s20, 1024
    s_cmp_lt_u32 s20, {WS_KEY + 16384}
    s_cbranch_scc1 k_clr0
k1_hd2:
    s_mov_b32 s50, 0
    s_cmp_lt_u32 s3, 6
    s_cbranch_scc1 k_h45
    s_and_b32 s20, s2, 7
    s_lshr_b32 s21, s2, 3
    v_mul_u32_u24 v40, 86, v0
    v_lshrrev_b32 v40, 8, v40
    v_mul_u32_u24 v42, 3, v40
    v_sub_u32 v42, v0, v42
    v_mul_u32_u24 v40, 3072, v40
    v_lshl_add_u32 v40, v42, 7, v40
    s_mul_i32 s22, s21, {20*3072}
    s_mul_i32 s23, s20, 384
    s_add_u32 s22, s22, s23
    v_lshrrev_b32 v43, 1, v0
    v_mul_u32_u24 v43, 1280, v43
    v_and_b32 v42, 1, v0
    v_lshl_add_u32 v43, v42, 7, v43
    s_lshl_b32 s21, s21, 1
    s_add_u32 s21, s21, s3
    s_sub_u32 s21, s21, 6
    s_mul_i32 s21, s21, {24*1280}
    s_mul_i32 s23, s20, 160
    s_add_u32 s21, s21, s23
    s_cmp_eq_u32 s3, 6
    s_cselect_b32 s40, s52, s54
    s_cselect_b32 s41, s53, s55
    s_mov_b32 s42, 1966080
    s_mov_b32 s43, 0x00020000
    s_mov_b32 s58, s42
    s_mov_b32 s59, s43
    s_barrier
    buffer_load_dword v41, v40, s[40:43], s22 offen
    buffer_load_dword v41, v40, s[40:43], s22 offen offset:64
    buffer_load_dword v41, v43, s[56:59], s21 offen
    buffer_load_dword v41, v43, s[56:59], s21 offen offset:64
    s_branch k_hb2
k_h45:
    s_barrier
    s_mul_i32 s16, s2, {2*SLOT}
    s_add_u32 s16, s16, {WS_SLOT}
    s_cmp_eq_u32 s3, 5
    s_cbranch_scc1 k_clr
    s_cmp_lg_u32 s2, 0
    s_cbranch_scc1 k_hb2
    v_lshlrev_b32 v4, 2, v0
    s_waitcnt vmcnt(0)
    buffer_store_dword v36, v4, s[44:47], 0 offen sc1
    s_mov_b32 s16, {WS_ACT}
k_clr:
    s_add_u32 s17, s16, 4096
    buffer_store_dwordx4 v[36:39], v3, s[8:11], s16 offen sc1
    buffer_store_dwordx4 v[36:39], v3, s[8:11], s16 offen offset:1024 sc1
    buffer_store_dwordx4 v[36:39], v3, s[8:11], s16 offen offset:2048 sc1
    buffer_store_dwordx4 v[36:39], v3, s[8:11], s16 offen offset:3072 sc1
    buffer_store_dwordx4 v[36:39], v3, s[8:11], s17 offen sc1
    buffer_store_dwordx4 v[36:39], v3, s[8:11], s17 offen offset:1024 sc1
k_hb2:
    s_barrier
    s_branch k2_pre
    """)

def body(a):
    entry(a); helper(a); k1main(a); k2(a); ffn(a); a("k_end:\ns_endpgm")
def main(out):
    import gen
    hdr = f"; FNet (2-D DFT as 3 MFMA stages) + LN + top-2 routed SwiGLU, one persistent launch; generated by my own script\n; @launch grid=(256,1,1) block=(512,1,1) lds={LDS}\n"
    hdr += '.amdgcn_target "amdgcn-amd-amdhsa--gfx950"\n'
    c, d = gen.kernel(NAME + "_kernel", body, 240)
    open(out, "w").write(hdr + c + '.section .rodata,"a"\n.p2align 6\n' + d)
if __name__ == "__main__":
    main(sys.argv[1] if len(sys.argv) > 1 else f"cdna_kernels/{NAME}.s")
```

```python
from gen import A, fb, vr, DPPF, XB, wave_red
WS_G, WS_SLOT, WS_KEY, WS_ACT = 0, 0x300000, 0x280000, 0x284000
SLOT = 3072
L_W = 32768
YP = 2576
L_KEY, L_TOP, L_PB, L_W5 = 24576, 24576 + 64, 28672, 32768
NG, ND = 48, 40
SPIN = 1 << 15
SC = "sc1"
def spin(a, lab, cnt="s50"):
    a(f"s_cbranch_vccz {lab}_ok\ns_add_u32 {cnt}, {cnt}, 1\ns_cmp_lt_u32 {cnt}, {SPIN}\ns_cbranch_scc1 {lab}\n{lab}_ok:")
def k2(a):
    a(f"""
k2_pre:
    s_lshr_b32 s14, s3, 2
    s_and_b32 s15, s3, 3
    s_sub_u32 s16, 64, s12
    s_cmp_eq_u32 s12, 0
    s_cselect_b32 s16, 32, s16
    s_cmp_eq_u32 s14, 0
    s_cselect_b32 s16, s12, s16
    s_mul_i32 s17, s16, 40960
    v_mul_u32_u24 v3, 1280, v2
    v_lshl_add_u32 v3, v1, 4, v3
    s_lshl_b32 s18, s15, 8
    s_add_u32 s18, s18, s17
    s_cmp_eq_u32 s3, 0
    s_cselect_b32 s19, 1, 0
    s_cmp_eq_u32 s3, 5
    s_cselect_b32 s19, 1, s19
    v_lshrrev_b32 v6, 2, v1
    s_lshl_b32 s20, s14, 2
    s_cmp_eq_u32 s12, 0
    s_cbranch_scc1 k2_u0
    s_lshl_b32 s21, s13, 2
    v_add_u32 v4, s21, v6
    s_mul_i32 s21, s14, 31
    v_xor_b32 v4, s21, v4
    s_xor_b32 s21, s20, 4
    v_add_u32 v5, s21, v2
    s_branch k2_t2done
k2_u0:
    v_lshrrev_b32 v4, 1, v6
    s_lshl_b32 s21, s13, 1
    v_add_u32 v4, s21, v4
    s_sub_u32 s21, 32, s14
    v_sub_u32 v7, s21, v4
    v_and_b32 v6, 1, v6
    v_cmp_eq_u32 vcc, 1, v6
    v_xor_b32 v5, 1, v2
    s_or_b32 s21, s13, s14
    v_cndmask_b32 v4, v4, v7, vcc
    v_cmp_eq_u32 vcc, 32, v4
    s_cmp_eq_u32 s21, 0
    s_cselect_b32 s21, 2, 0
    v_cndmask_b32 v4, v4, 16, vcc
    v_cmp_gt_u32 vcc, s21, v2
    s_nop 1
    v_cndmask_b32 v5, v5, v2, vcc
    v_add_u32 v5, s20, v5
k2_t2done:
    s_lshl_b32 s21, s15, 2
    s_nop 0
    v_readlane_b32 s22, v4, s21
    v_cvt_f32_u32 v6, v4
    v_cvt_f32_u32 v7, v2
    s_lshl_b32 s22, s22, 6
    s_add_u32 s22, s22, s16
    s_mul_i32 s23, s22, 1280
    v_lshlrev_b32 v28, 4, v0
    v_lshlrev_b32 v29, 2, v0
    v_mul_f32 v6, {fb(1/32)}, v6
    v_mul_f32 v7, v6, v7
    v_mul_f32 v6, 4.0, v6
    v_and_b32 v10, 3, v1
    """)
    for j in range(4): a(f"v_cmp_eq_u32 s[{36+2*(j&1)}:{37+2*(j&1)}], {j}, v10" + (f"\nv_cndmask_b32 v{11+j}, 0, -1, s[{36+2*((j-1)&1)}:{37+2*((j-1)&1)}]" if False else "") + f"\ns_nop 1\nv_cndmask_b32 v{12+j}, 0, -1, s[{36+2*(j&1)}:{37+2*(j&1)}]")
    GD, AC = 32, 128
    for ks in range(8):
        a(f"""v_cos_f32 v10, v7
        v_sin_f32 v11, v7
        v_add_f32 v7, v7, v6
        v_cvt_pk_bf16_f32 v10, v10, v11""")
        for j in range(4): a(f"v_and_b32 v{AC+4*ks+j}, v{12+j}, v10")
    def addrs(cbexpr, vd, vm):
        a(f"""
        v_add_u32 v10, {cbexpr}, v1
        v_mul_u32_u24 v11, 205, v10
        v_lshrrev_b32 v11, 11, v11
        v_mul_u32_u24 v16, 10, v11
        v_sub_u32 v16, v10, v16
        v_lshrrev_b32 v17, 2, v11
        v_mul_u32_u24 v17, 160, v17
        v_and_b32 v11, 3, v11
        v_add3_u32 v11, v11, v17, 1
        v_lshl_add_u32 v11, v16, 2, v11
        v_lshlrev_b32 v11, 2, v11
        v_add_u32 v{vd}, v18, v11
        v_sub_u32 v{vm}, v19, v11
        """)
    a(f"""
    v_add_u32 v18, s20, v2
    v_mul_u32_u24 v18, {YP}, v18
    v_mul_u32_u24 v19, {YP}, v5
    v_add_u32 v19, {4*520}, v19
    s_lshl_b32 s21, s15, 4
    s_mul_i32 s24, s3, {YP}
    v_mov_b32 v26, s24
    v_mov_b32 v27, 0
    ds_write_b32 v26, v27
    """)
    addrs("s21", 20, 21)
    addrs("64", 22, 23)
    a(f"""v_cmp_eq_u32 vcc, 15, v1
    v_add_u32 v24, {4*(640-520)}, v19
    s_nop 0
    v_cndmask_b32 v24, v23, v24, vcc
    s_mov_b32 s25, 0xffff0000
    s_mov_b32 s26, 0x3f803f80
    buffer_load_dwordx4 v[100:103], v28, s[4:7], s23 offen
    buffer_load_dword v104, v29, s[4:7], s23 offen offset:1024
    buffer_load_dwordx4 v[108:111], v28, s[28:31], 0 offen
    buffer_load_dword v112, v29, s[28:31], 0 offen offset:1024
    s_cmp_lt_u32 s3, 4
    s_cselect_b32 s40, s52, s54
    s_cselect_b32 s41, s53, s55
    s_and_b32 s36, s2, 7
    s_lshr_b32 s37, s2, 3
    s_mul_i32 s48, s36, 6
    s_add_u32 s48, s48, s37
    s_lshl_b32 s39, s48, 6
    s_movk_i32 s49, 3072
    s_mul_i32 s38, s15, {160*3072}
    s_mul_i32 s27, s3, 10240
    s_movk_i32 s60, 10
    s_cmp_lt_u32 s2, {NG}
    s_cbranch_scc1 k2_wg
    s_mov_b32 s40, s56
    s_mov_b32 s41, s57
    s_mul_i32 s48, s36, 5
    s_add_u32 s48, s48, s37
    s_sub_u32 s48, s48, {NG//8}
    s_lshr_b32 s39, s48, 1
    s_lshl_b32 s39, s39, 6
    s_movk_i32 s49, 1280
    s_mul_i32 s38, s3, {192*1280}
    s_mul_i32 s27, s3, 12288
    s_movk_i32 s60, 12
k2_wg:
    s_add_u32 s61, s38, s39
    v_lshrrev_b32 v6, 2, v0
    v_mul_lo_u32 v6, v6, s49
    v_lshrrev_b32 v7, 4, v0
    v_and_b32 v7, 2, v7
    v_xor_b32 v7, v7, v0
    v_and_b32 v7, 3, v7
    v_lshl_add_u32 v6, v7, 4, v6
    s_lshl_b32 s49, s49, 4
    s_add_u32 m0, s27, {L_W}
    s_mov_b32 s42, 1966080
    s_mov_b32 s43, 0x00020000
    s_lshl_b32 s37, s2, 6
    s_add_u32 s37, s37, {WS_KEY}
    s_lshl_b32 s36, s3, 13
    s_add_u32 s36, s36, {WS_KEY - 32768}
    s_add_u32 s39, s36, 4096
    v_lshlrev_b32 v30, 6, v0
    s_cmp_ge_u32 s3, 6
    s_cbranch_scc1 k2_nowait
    s_cmp_lg_u32 s3, 4
    s_cbranch_scc1 k2_go_ok
k2_go:
    buffer_load_dword v31, v29, s[44:47], 0 offen {SC}
    s_waitcnt vmcnt(0)
    v_cmp_eq_u32 vcc, 0, v31
    """)
    spin(a, "k2_go")
    a(f"""
    s_waitcnt vmcnt(0)
k2_nowait:
    ;STAMP 6
    s_barrier
    s_cmp_lg_u32 s3, 0
    s_cbranch_scc1 k2_nf
    s_mov_b64 exec, 1
    buffer_store_dword v27, v27, s[8:11], s37 offen {SC}
    s_mov_b64 exec, -1
k2_nf:
    s_barrier
    s_and_b32 s21, s3, 6
    s_cmp_lg_u32 s21, 4
    s_cbranch_scc1 k2_s1_ok
    buffer_load_dword v32, v30, s[8:11], s36 offen {SC}
    buffer_load_dword v33, v30, s[8:11], s39 offen {SC}
k2_s1:
    buffer_load_dword v34, v30, s[8:11], s36 offen {SC}
    buffer_load_dword v35, v30, s[8:11], s39 offen {SC}
    s_waitcnt vmcnt(2)
    v_or_b32 v31, v32, v33
    v_cmp_ne_u32 vcc, 0, v31
    s_cbranch_vccz k2_s1_ok
    buffer_load_dword v32, v30, s[8:11], s36 offen {SC}
    buffer_load_dword v33, v30, s[8:11], s39 offen {SC}
    s_waitcnt vmcnt(2)
    v_or_b32 v31, v34, v35
    v_cmp_ne_u32 vcc, 0, v31
    """)
    spin(a, "k2_s1")
    a("s_barrier\n;STAMP 7")
    def loads(gd):
        for ks in range(8):
            a(f"buffer_load_dwordx4 {vr(gd+4*ks,4)}, v3, s[8:11], s18 offen" + ("\ns_addk_i32 s18, 5120" if ks < 7 else ""))
    def item(gd, acc, vd, vm, vm3, vmbase):
        for ks in range(8):
            a(f"s_waitcnt vmcnt({vmbase-ks})")
            a(f"v_mfma_f32_16x16x32_bf16 {vr(acc,4)}, {vr(AC+4*ks,4)}, {vr(gd+4*ks,4)}, {vr(acc,4) if ks else 0}")
        return [f"ds_write_b32 v{vd}, v{acc+i} offset:{160*i}" for i in range(4)] + \
               [f"ds_write_b32 v{vm3 if i == 3 else vm}, v{acc+i} offset:{160*(3-i)}" for i in range(4)]
    a("s_cmp_eq_u32 s19, 0\ns_cbranch_scc1 k2_one\ns_mov_b32 s21, s18\ns_add_u32 s18, s17, 1024")
    loads(GD + 32)
    a("s_mov_b32 s18, s21")
    loads(GD)
    w2 = item(GD + 32, 164, 22, 23, 24, 15)
    a("s_nop 7")
    for t in w2: a(t)
    a("s_branch k2_two\nk2_one:")
    loads(GD)
    a("k2_two:")
    w1 = item(GD, 160, 20, 21, 21, 7)
    Y, H = 32, 48
    a(f"""
    v_lshl_add_u32 v10, v0, 5, s24
    v_lshl_add_u32 v11, v0, 3, s24
    v_mov_b32 v12, 0
    v_mov_b32 v13, 0""")
    for j in range(2): a(f"v_lshlrev_b32 v{H+2*j}, 16, v{100+j}\nv_and_b32 v{H+2*j+1}, s25, v{100+j}")
    for t in w1: a(t)
    for j in range(2, 5): a(f"v_lshlrev_b32 v{H+2*j}, 16, v{100+j}\nv_and_b32 v{H+2*j+1}, s25, v{100+j}")
    a(f"""
    s_waitcnt lgkmcnt(0)
    ;STAMP 8
    s_barrier
    ;EPI0
    ds_read_b128 v[32:35], v10
    ds_read_b128 v[36:39], v10 offset:16
    ds_read_b64 v[40:41], v11 offset:2048
    s_waitcnt lgkmcnt(0)
    """)
    for j in range(10): a(f"v_add_f32 v{Y+j}, v{Y+j}, v{H+j}")
    for j in range(5): a(f"v_cvt_pk_bf16_f32 v{60+j}, v{Y+2*j}, v{Y+2*j+1}")
    for j in range(5): a(f"v_dot2c_f32_bf16 v12, s26, v{60+j}\nv_dot2c_f32_bf16 v13, v{60+j}, v{60+j}")
    for j in range(5):
        a(f"v_lshlrev_b32 v{H+2*j}, 16, v{60+j}\nv_and_b32 v{H+2*j+1}, s25, v{60+j}")
    wave_red(a, [12, 13])
    a(f"""
    s_nop 0
    v_readlane_b32 s36, v12, 63
    v_readlane_b32 s37, v13, 63
    v_mov_b32 v14, {fb(1/640)}
    v_mul_f32 v12, s36, v14
    v_mul_f32 v13, s37, v14
    v_fma_f32 v13, -v12, v12, v13
    v_max_f32 v13, 0, v13
    v_cvt_pk_bf16_f32 v13, v12, v13
    v_lshlrev_b32 v12, 16, v13
    v_and_b32 v13, s25, v13
    v_add_f32 v13, {fb(1e-5)}, v13
    v_cvt_pk_bf16_f32 v13, v13, v13
    v_and_b32 v13, s25, v13
    v_sqrt_f32 v13, v13
    s_nop 0
    v_cvt_pk_bf16_f32 v13, v13, v13
    v_and_b32 v13, s25, v13
    v_rcp_f32 v13, v13
    s_nop 0
    v_mul_f32 v12, v12, v13
    v_mov_b32 v14, 0
    """)
    for j in range(10): a(f"v_fma_f32 v{Y+j}, v{H+j}, v13, -v12")
    for j in range(5): a(f"v_cvt_pk_bf16_f32 v{68+j}, v{Y+2*j}, v{Y+2*j+1}")
    for j in range(5): a(f"v_dot2c_f32_bf16 v14, v{68+j}, v{108+j}")
    for j in range(5):
        a(f"v_lshlrev_b32 v{Y+2*j}, 16, v{68+j}\nv_and_b32 v{Y+2*j+1}, s25, v{68+j}")
    b = A(); wave_red(b, [14]); red = [t for t in b.l if "dpp" in t]
    steps = [f"v_add_f32 v{Y+j}, v{Y+j}, v{H+j}" for j in range(10)] + ["v_min_u32 v60, -2, v60", "v_min_u32 v61, -2, v61"]
    for k in range(6):
        a(red[k]); a(steps[2*k]); a(steps[2*k+1])
    a(f"""
    v_readlane_b32 s36, v14, 63
    s_lshl_b32 s37, s3, 2
    v_mov_b32 v15, s37
    v_cvt_pk_bf16_f32 v14, s36, s36
    v_ashrrev_i32 v16, 31, v14
    v_or_b32 v16, 0x80000000, v16
    v_xor_b32 v14, v14, v16
    v_and_b32 v14, s25, v14
    v_or_b32 v16, s3, v14
    ;EPI1
    ds_write_b32 v15, v16 offset:{L_KEY}
    v_and_b32 v15, 28, v29
    """)
    for j in range(5): a(f"v_cvt_pk_bf16_f32 v{76+j}, v{Y+2*j}, v{Y+2*j+1}")
    for j in (62, 63, 64, 68, 69, 70, 71, 72): a(f"v_min_u32 v{j}, -2, v{j}")
    a(f"""
    s_waitcnt lgkmcnt(0)
    s_barrier
    ds_read_b32 v15, v15 offset:{L_KEY}
    v_mov_b32 v17, s22
    s_waitcnt lgkmcnt(0)
    v_cmp_gt_u32 vcc, v15, v16
    s_bcnt1_i32_b32 s36, vcc_lo
    s_lshr_b32 s36, s36, 2
    s_cmp_ge_u32 s36, 2
    s_cbranch_scc1 k2_plain
    s_lshl_b32 s37, s2, 1
    s_add_u32 s37, s36, s37
    v_or_b32 v14, s37, v14
    s_mul_i32 s37, s37, {SLOT}
    s_add_u32 s37, s37, {WS_SLOT}
    s_lshl_b32 s38, s2, 4
    s_add_u32 s36, s36, s38
    s_lshl_b32 s36, s36, 2
    s_add_u32 s36, s36, {WS_KEY + 8}
    buffer_store_dwordx4 v[68:71], v28, s[8:11], s37 offen sc1
    buffer_store_dword v72, v29, s[8:11], s37 offen offset:1024 sc1
    s_mov_b64 exec, 1
    buffer_store_dword v14, v27, s[8:11], s36 offen {SC}
    buffer_store_dword v17, v27, s[8:11], s37 offen offset:2560 sc1
    s_mov_b64 exec, -1
    buffer_store_dwordx4 v[60:63], v28, s[8:11], s37 offen offset:1280 sc1
    buffer_store_dword v64, v29, s[8:11], s37 offen offset:2304 sc1
    v_readfirstlane_b32 s51, v14
    s_movk_i32 s36, 6
    s_barrier
    s_branch k2_wd
k2_plain:
    ;STAMP 9
    s_mov_b32 s51, -1
    s_barrier
    buffer_store_dwordx4 v[76:79], v28, s[32:35], s23 offen
    buffer_store_dword v80, v29, s[32:35], s23 offen offset:1024
k2_wd:
    s_cmp_ge_u32 s2, {NG+ND}
    s_cbranch_scc1 k2_nw
k2_wd1:
    buffer_load_dwordx4 v6, s[40:43], s61 offen lds
    s_addk_i32 m0, 1024
    s_add_u32 s61, s61, s49
    s_sub_u32 s60, s60, 1
    s_cmp_lg_u32 s60, 0
    s_cbranch_scc1 k2_wd1
k2_nw:
    s_cmp_ge_u32 s36, 6
    s_cbranch_scc1 k2_s2
    v_lshlrev_b32 v4, 6, v0
    s_lshl_b32 s24, s36, 12
    s_add_u32 s24, s24, {WS_KEY - 8192}
    s_lshl_b32 s36, s36, 3
    v_mov_b32 v5, s36
k2_s2p:
    buffer_load_dwordx2 v[8:9], v4, s[8:11], s24 offen offset:8 {SC}
    s_waitcnt vmcnt(0)
    v_max_u32 v16, v8, v9
    v_cmp_eq_u32 vcc, -1, v16
    """)
    spin(a, "k2_s2p")
    a("v_mov_b32 v19, v16\nv_min_u32 v17, v8, v9")
    wave_red(a, [19], "v_max_u32")
    a("s_nop 0\nv_readlane_b32 s20, v19, 63\ns_nop 1\nv_cmp_eq_u32 vcc, s20, v16\ns_nop 1\nv_cndmask_b32 v18, v16, v17, vcc")
    wave_red(a, [18], "v_max_u32")
    a(f"""
    v_mov_b32 v16, s20
    v_readlane_b32 s21, v18, 63
    s_nop 1
    v_mov_b32 v17, s21
    ds_write_b64 v5, v[16:17] offset:{L_TOP - 16}
k2_s2:
    s_waitcnt vmcnt(0) lgkmcnt(0)
    s_barrier
    ds_read_b128 v[8:11], v27 offset:{L_TOP}
    ds_read_b128 v[12:15], v27 offset:{L_TOP + 16}
    s_waitcnt lgkmcnt(0)
    ;STAMP 10
    v_min_u32 v16, v8, v10
    v_min_u32 v17, v12, v14
    v_max3_u32 v9, v9, v11, v16
    v_max3_u32 v13, v13, v15, v17
    v_max_u32 v8, v8, v10
    v_max_u32 v12, v12, v14
    v_min_u32 v16, v8, v12
    v_max3_u32 v17, v9, v13, v16
    v_max_u32 v16, v8, v12
    s_nop 0
    v_readfirstlane_b32 s21, v17
    v_readfirstlane_b32 s20, v16
    s_cmp_ge_u32 s51, s21
    s_cbranch_scc1 k2_sel
    buffer_store_dwordx4 v[76:79], v28, s[32:35], s23 offen
    buffer_store_dword v80, v29, s[32:35], s23 offen offset:1024
k2_sel:
    s_cmp_ge_u32 s2, {NG+ND}
    s_cbranch_scc1 k_end
    """)


def ffn(a):
    AF, BF, PB = 32, 88, L_PB
    a(f"""
    s_and_b32 s22, s20, 0x1ff
    s_and_b32 s23, s21, 0x1ff
    s_mul_i32 s22, s22, {SLOT}
    s_mul_i32 s23, s23, {SLOT}
    v_mov_b32 v16, s22
    v_mov_b32 v17, s23
    v_cmp_gt_u32 vcc, 8, v1
    s_mov_b32 s26, {WS_SLOT}
    v_lshrrev_b32 v6, 2, v1
    v_lshl_add_u32 v6, v2, 3, v6
    v_lshlrev_b32 v6, 6, v6
    v_and_b32 v7, 3, v1
    v_lshl_add_u32 v6, v7, 3, v6
    s_cmp_ge_u32 s2, {NG}
    s_cbranch_scc1 k4
    s_bfe_u32 s16, s3, 0x10001
    s_mul_i32 s16, s16, 640
    v_cndmask_b32 v5, v17, v16, vcc
    v_lshl_add_u32 v5, v2, 4, v5
    s_add_u32 s26, s26, s16
    s_lshr_b32 s19, s3, 1
    s_mul_i32 s19, s19, 20480
    v_xor_b32 v7, s3, v2
    """)
    def common(nm, nks, soff):
        a(f"v_and_b32 v7, 1, v7\nv_lshl_add_u32 v7, v7, 5, v6\ns_add_u32 s19, s19, {L_W}\nv_add_u32 v7, s19, v7")
        a(f"{nm}_p:")
        for j in range(nks): a(f"buffer_load_dwordx4 {vr(AF+4*j,4)}, v5, s[8:11], {soff} offen offset:{(64 if nm == 'k3' else 128)*j} {SC}")
        for j in range(nks):
            a(f"ds_read_b64_tr_b16 {vr(BF+4*j,2)}, v7 offset:{2048*j}\nds_read_b64_tr_b16 {vr(BF+4*j+2,2)}, v7 offset:{2048*j+256}")
        a("s_waitcnt vmcnt(0)")
        n = 4*nks
        a(f"v_max3_u32 v8, v{AF}, v{AF+1}, v{AF+2}\nv_max3_u32 v9, v{AF+3}, v{AF+4}, v{AF+5}")
        for k in range(6, n, 4): a(f"v_max3_u32 v8, v8, v{AF+k}, v{AF+k+1}" + (f"\nv_max3_u32 v9, v9, v{AF+k+2}, v{AF+k+3}" if k+2 < n else ""))
        a("v_max_u32 v8, v8, v9\nv_cmp_eq_u32 vcc, -1, v8\ns_waitcnt lgkmcnt(0)")
        spin(a, nm + "_p")
        a(f";STAMP 11\ns_lshl_b32 s27, s3, 8")
        for j in range(nks):
            a(f"v_mfma_f32_16x16x32_bf16 v[84:87], {vr(AF+4*j,4)}, {vr(BF+4*j,4)}, {'v[84:87]' if j else 0}")
        a(f"""
        v_lshl_add_u32 v7, v0, 2, s27
        v_and_b32 v8, 47, v0
        v_and_b32 v9, 1, v2
        v_lshlrev_b32 v8, 2, v8
        v_lshl_add_u32 v8, v9, 8, v8
        s_nop 2
        ds_write_b32 v7, v84 offset:{PB}
        s_waitcnt lgkmcnt(0)
        s_barrier
        s_cmp_lg_u32 s3, 0
        s_cbranch_scc1 k_end
        """)
    common("k3", 10, "s26")
    for w in range(4): a(f"ds_read_b32 v{32+w}, v8 offset:{PB+512*w}")
    a(f"""
    v_and_b32 v7, 1, v0
    v_cmp_eq_u32 vcc, 0, v7
    v_lshlrev_b32 v16, 1, v0
    s_lshl_b32 s18, s48, 7
    s_add_u32 s18, s18, {WS_ACT}
    s_waitcnt lgkmcnt(0)
    v_add_f32 v24, v32, v33
    v_add_f32 v25, v34, v35
    v_cvt_pk_bf16_f32 v24, v24, v25
    v_lshlrev_b32 v25, 16, v24
    v_and_b32 v24, s25, v24
    v_mul_f32 v26, {fb(-1.4426950408889634)}, v25
    v_exp_f32 v26, v26
    s_nop 0
    v_add_f32 v26, 1.0, v26
    v_rcp_f32 v26, v26
    s_nop 0
    v_mul_f32 v25, v25, v26
    v_cvt_pk_bf16_f32 v25, v25, v25
    v_and_b32 v25, s25, v25
    v_mul_f32 v24, v24, v25
    s_nop 1
    v_mov_b32_dpp v25, v24 quad_perm:[1,1,3,3] {DPPF}
    v_cvt_pk_bf16_f32 v24, v24, v25
    v_min_u32 v24, -2, v24
    s_and_saveexec_b64 s[36:37], vcc
    buffer_store_dword v24, v16, s[8:11], s18 offen {SC}
    s_endpgm
k4:
    s_mul_i32 s16, s3, 768
    s_add_u32 s16, s16, {WS_ACT}
    v_lshrrev_b32 v5, 3, v1
    v_lshlrev_b32 v5, 6, v5
    v_lshl_add_u32 v5, v2, 4, v5
    s_lshl_b32 s18, s48, 5
    s_mul_i32 s19, s3, 12288
    v_xor_b32 v7, s48, v2
    v_cmp_gt_u32 vcc, 32, v0
    v_mov_b32 v18, s20
    v_mov_b32 v19, s21
    v_cndmask_b32 v16, v17, v16, vcc
    v_cndmask_b32 v18, v19, v18, vcc
    v_and_b32 v17, 14, v1
    v_lshl_add_u32 v17, v17, 1, v16
    v_add_u32 v17, s18, v17
    """)
    a(f"""
    s_cmp_lg_u32 s3, 0
    s_cbranch_scc1 k4_h_ok
k4_h:
    buffer_load_dword v20, v17, s[8:11], s26 offen {SC}
    buffer_load_dword v21, v17, s[8:11], s26 offen offset:1280 {SC}
    buffer_load_dword v22, v16, s[8:11], s26 offen offset:2560 {SC}
    s_waitcnt vmcnt(0)
    v_max3_u32 v8, v20, v21, v22
    v_cmp_eq_u32 vcc, -1, v8
    """)
    spin(a, "k4_h")
    common("k4", 6, "s16")
    for w in range(8): a(f"ds_read_b32 v{32+w}, v29 offset:{PB+256*w}")
    a("v_and_b32 v7, 16, v0\nv_cmp_eq_u32 vcc, 0, v7\ns_waitcnt lgkmcnt(0)")
    a("v_add_f32 v32, v32, v33\nv_add_f32 v34, v34, v35\nv_add_f32 v36, v36, v37\nv_add_f32 v38, v38, v39\nv_add_f32 v24, v32, v34\nv_add_f32 v25, v36, v38")
    a(f"""
    v_ashrrev_i32 v19, 31, v18
    v_not_b32 v19, v19
    v_or_b32 v19, 0x80000000, v19
    v_xor_b32 v18, v18, v19
    v_and_b32 v18, s25, v18
    v_mul_f32 v18, {fb(-1.4426950408889634)}, v18
    v_exp_f32 v18, v18
    v_add_f32 v24, v24, v25
    v_add_f32 v18, 1.0, v18
    v_rcp_f32 v18, v18
    v_and_b32 v19, 1, v1
    v_lshlrev_b32 v19, 4, v19
    v_cvt_pk_bf16_f32 v24, v24, v18
    v_lshlrev_b32 v25, 16, v24
    v_and_b32 v24, s25, v24
    v_mul_f32 v24, v24, v25
    v_cvt_pk_bf16_f32 v24, v24, v24
    v_and_b32 v24, s25, v24
    v_lshrrev_b32 v20, v19, v20
    v_lshrrev_b32 v21, v19, v21
    v_lshlrev_b32 v20, 16, v20
    v_lshlrev_b32 v21, 16, v21
    v_and_b32 v22, 0x7ff, v22
    v_mul_u32_u24 v22, 1280, v22
    v_add_f32 v24, v24, v20
    v_cvt_pk_bf16_f32 v24, v24, v24
    v_and_b32 v24, s25, v24
    v_add_f32 v24, v24, v21
    v_cvt_pk_bf16_f32 v24, v24, v24
    v_lshl_add_u32 v22, v1, 1, v22
    s_and_saveexec_b64 s[36:37], vcc
    buffer_store_short v24, v22, s[32:35], s18 offen
    """)
```

```python
import sys, os
from gen2b import k2, ffn, spin
from gen import A, fb, vr, DPPF, NAME, XB, wave_red
WS_G, WS_SLOT, WS_KEY, WS_ACT = 0, 0x300000, 0x280000, 0x284000
WS_SIZE = 0x1000000
SLOT = 3072
L_B, L_A, L_W = 81920, 107520, 121344
LDS = 32768 + 98304
YP = 2576
L_KEY, L_TOP, L_PB, L_W5 = 24576, 24576 + 64, 28672, 32768
SPIN = 1 << 15
SC = "sc0 sc1"
def srd(a, d, nbytes): a(f"s_mov_b32 s{d+2}, {nbytes}\ns_mov_b32 s{d+3}, 0x00020000")

def entry(a):
    a(f"""
    s_cmp_ge_u32 s2, 256
    s_cbranch_scc1 k_end
    s_load_dwordx2 s[4:5], s[0:1], 0
    s_load_dwordx4 s[44:47], s[0:1], 88
    s_load_dwordx8 s[52:59], s[0:1], 56
    s_load_dwordx2 s[28:29], s[0:1], 48
    v_lshrrev_b32 v1, 6, v0
    v_and_b32 v0, 63, v0
    s_and_b32 s12, s2, 7
    s_lshr_b32 s13, s2, 6
    v_readfirstlane_b32 s3, v1
    s_lshl_b32 s13, s13, 3
    s_add_u32 s12, s12, s13
    s_bfe_u32 s13, s2, 0x30003
    s_and_b32 s14, s13, 3
    s_add_u32 s14, s14, 1
    s_lshr_b32 s15, s13, 2
    v_and_b32 v1, 15, v0
    v_lshrrev_b32 v2, 4, v0
    """)
    srd(a, 4, XB); srd(a, 8, WS_SIZE)
    a("s_cmp_lt_u32 s3, 4\ns_cbranch_scc1 k_main")
def ptrs(a):
    a("s_mov_b32 s8, s46\ns_mov_b32 s9, s47\ns_mov_b32 s32, s58\ns_mov_b32 s33, s59")
    srd(a, 44, 256); srd(a, 28, 1280); srd(a, 32, XB)

NPRE = int(os.environ.get('NPRE', '8'))
DG = len(sys.argv) > 2
def k1main(a):
    a(f"""
k_main:
    v_lshrrev_b32 v3, 2, v0
    s_lshl_b32 s16, s3, 4
    v_add_u32 v3, s16, v3
    s_mov_b32 s17, 40960
    v_mul_lo_u32 v3, v3, s17
    v_lshrrev_b32 v4, 5, v0
    v_mul_u32_u24 v4, 3, v4
    v_and_b32 v5, 3, v0
    v_xor_b32 v4, v4, v5
    v_lshl_add_u32 v3, v4, 4, v3
    s_mul_i32 s18, s12, 1280
    s_mul_i32 s19, s3, 20480
    s_mov_b32 m0, s19
    s_add_u32 s20, s18, {64*NPRE}
    s_lshl_b32 s21, s13, 2
    s_add_u32 s21, s21, s3
    s_mul_i32 s21, s21, {2*40960}
    s_add_u32 s21, s21, s18
    v_lshrrev_b32 v6, 5, v0
    v_mul_u32_u24 v6, 40960, v6
    v_and_b32 v7, 31, v0
    v_med3_u32 v7, v7, {NPRE}, 19
    v_lshl_add_u32 v6, v7, 6, v6
    s_waitcnt lgkmcnt(0)
    buffer_load_dword v239, v6, s[4:7], s21 offen
k1_dma:
    buffer_load_dwordx4 v3, s[4:7], s18 offen lds
    s_addk_i32 s18, 64
    s_addk_i32 m0, 1024
    s_cmp_lt_u32 s18, s20
    s_cbranch_scc1 k1_dma
    """)
    ptrs(a)
    CR, CI, CN = 200, 208, 216
    B, X, P, Q, R, S, SQ, ONE, T = 20, 120, 132, 152, 172, 192, 196, 224, 228
    a(f"""
    v_add_u32 v4, s16, v1
    v_cvt_f32_u32 v4, v4
    v_lshlrev_b32 v5, 8, v2
    v_add_u32 v5, s12, v5
    v_cvt_f32_u32 v5, v5
    s_mul_i32 s21, s14, 3
    v_cvt_f32_u32 v6, s21
    v_mul_f32 v5, v4, v5
    v_mul_f32 v6, {fb(0.25)}, v6
    v_mul_f32 v7, {fb(1/64)}, v4
    v_fmac_f32 v6, {fb(1/2048)}, v5
    v_fract_f32 v6, v6
    s_and_b32 s21, s14, 1
    s_lshl_b32 s22, s21, 31
    s_or_b32 s22, s22, 0x3f800000
    s_and_b32 s23, s14, 2
    s_lshl_b32 s23, s23, 30
    s_or_b32 s23, s23, 0x3f800000
    s_cmp_eq_u32 s21, 1
    s_cselect_b32 s24, s23, 0
    s_cselect_b32 s23, 0, s23
    s_xor_b32 s25, s24, 0x80000000
    v_mov_b32 v12, s24
    v_mov_b32 v13, s25
    v_cmp_gt_u32 vcc, 8, v1
    v_lshrrev_b32 v4, 3, v1
    v_mul_u32_u24 v4, 3, v4
    v_cndmask_b32 v12, v12, v13, vcc
    v_xor_b32 v4, v4, v2
    v_lshlrev_b32 v4, 4, v4
    v_lshl_add_u32 v4, v1, 6, v4
    v_add_u32 v4, s19, v4
    v_lshlrev_b32 v19, 4, v0
    v_add_u32 v19, {L_B}, v19
    v_lshlrev_b32 v13, 2, v2
    v_sub_u32 v13, v1, v13
    v_mov_b32 v18, 1.0
    """)
    for i in range(4): a(f"v_mov_b32 v{ONE+i}, 0x3f803f80\nv_cmp_eq_u32 s[{36+2*i}:{37+2*i}], {i}, v13")
    a("s_mov_b32 s50, 0\n;STAMP 1\ns_barrier\n;STAMP 2")
    xb = lambda i: [120, 124, 128, 172, 176][i] if i < 5 else X + 4 * (i % 3)
    for f in range(25):
        a(f"ds_read_b128 {vr(B+4*f,4)}, v19 offset:{1024*f}")
        if f % 5 == 4: a(f"s_waitcnt vmcnt({NPRE-1-f//5})\nds_read_b128 {vr(xb(f//5),4)}, v4 offset:{1024*(f//5)}")
    fill = {i: [] for i in range(20)}
    for j in range(20):
        fill[6 + j // 5].append(f"v_mul_f32 v{P+j}, s22, v{P+j}")
        fill[11 + j // 5].append(f"v_mul_f32 v{Q+j}, s22, v{Q+j}")
    slots = [0, 1, 2, 3, 4, 5, 10, 15]
    for ks in range(2):
        for jp in range(4):
            f = fill[slots[4*ks+jp]]
            if ks and not jp: f += ["v_fmac_f32 v6, 0x41c00000, v7", "v_fract_f32 v6, v6"]
            f += f"""v_cos_f32 v8, v6
            v_sin_f32 v9, v6
            v_add_f32 v6, v6, v7
            v_cos_f32 v10, v6
            v_sin_f32 v11, v6
            v_add_f32 v6, v6, v7
            v_cvt_pk_bf16_f32 v{CR+4*ks+jp}, v8, v10
            v_cvt_pk_bf16_f32 v{CN+4*ks+jp}, v9, v11
            v_cvt_pk_bf16_f32 v{CI+4*ks+jp}, -v9, -v11""".split("\n")
    rot = []
    for b in range(2):
        for i in range(4):
            re, im = P + 4*b + i, P + 8 + 4*b + i
            rot += [f"v_mul_f32 v{R+4*b+i}, s23, v{re}", f"v_mul_f32 v{R+8+4*b+i}, s23, v{im}",
                    f"v_fmac_f32 v{R+4*b+i}, s25, v{im}", f"v_fmac_f32 v{R+8+4*b+i}, s24, v{re}"]
    for i in range(4): rot += [f"v_mul_f32 v{R+16+i}, s23, v{P+16+i}"]
    for i in range(4): rot += [f"v_fmac_f32_dpp v{R+16+i}, v{P+16+i}, v12 row_ror:8 {DPPF}"]
    for j, t in enumerate(rot): fill[16 + min(j // 14, 2)].append(t)
    for i in range(20):
        q, ks = divmod(i, 5)
        x = xb(i)
        if i + NPRE < 20: a("buffer_load_dwordx4 v3, s[4:7], s18 offen lds\ns_addk_i32 m0, 1024\ns_addk_i32 s18, 64")
        if i + NPRE == 20: a("s_barrier")
        if 3 <= i <= 17: a(f"s_waitcnt vmcnt({min(i+NPRE+1, 20)-i-3})\nds_read_b128 {vr(xb(i+2),4)}, v4 offset:{1024*(i+2)}")
        a(f"s_waitcnt lgkmcnt({[15, 15, 12, 7][i] if i < 4 else min(2, 19-i)})")
        if DG and i in (5, 12): a(f';STAMP {11 if i == 5 else 12}')
        acc = P if q % 2 == 0 else Q
        mf = []
        for b in range(5):
            c = "0" if (q < 2 and ks == 0) else vr(acc+4*b, 4)
            mf.append(f"v_mfma_f32_16x16x32_bf16 {vr(acc+4*b,4)}, {vr(x,4)}, {vr(B+20*ks+4*b,4)}, {c}")
        st = [f"v_mfma_f32_16x16x32_bf16 {vr(SQ,4)}, {vr(x,4)}, {vr(x,4)}, {vr(SQ,4) if i else 0}",
              f"v_mfma_f32_16x16x32_bf16 {vr(S,4)}, {vr(x,4)}, {vr(ONE,4)}, {vr(S,4) if i else 0}"]
        if i < 19:
            mf = mf + st; fl = fill[i]
            per = -(-len(fl) // 7)
            for b in range(7):
                a(mf[b])
                for t in fl[b*per:(b+1)*per]: a(t)
        else:
            a(st[0]); a(st[1]); a(mf[0]); a(mf[1])
            a(f"""
            s_lshl_b32 s27, s3, 5
            s_add_u32 s27, s27, {L_A}
            v_lshl_add_u32 v6, v2, 3, s27
            v_mul_u32_u24 v7, 144, v1
            v_add_u32 v7, v6, v7
            v_and_b32 v8, 7, v1
            v_cndmask_b32 v14, 0, v{SQ}, s[36:37]
            v_cndmask_b32 v14, v14, v{SQ+1}, s[38:39]
            v_cndmask_b32 v14, v14, v{SQ+2}, s[40:41]
            v_cndmask_b32 v14, v14, v{SQ+3}, s[42:43]
            v_mul_u32_u24 v8, 144, v8
            v_lshrrev_b32 v9, 3, v1
            v_mfma_f32_16x16x4_f32 {vr(SQ,4)}, v14, v18, 0
            v_mul_u32_u24 v9, 6912, v9
            v_add3_u32 v6, v6, v8, v9""")
            a(mf[2]); [a(f"v_mul_f32 v{S+k}, {fb(1/640)}, v{S+k}") for k in range(4)]
            a(mf[3]); a(mf[4])
    a(";STAMP 3\ns_nop 3")
    for i in range(4): a(f"v_mul_f32 v{SQ+i}, {fb(1/640)}, v{SQ+i}")
    for i in range(4): a(f"v_fma_f32 v{S+i}, -v{S+i}, v{S+i}, v{SQ+i}")
    for i in range(4): a(f"v_max_f32 v{S+i}, 0, v{S+i}")
    def rnd4():
        a(f"""v_cvt_pk_bf16_f32 v{T}, v{S}, v{S+1}
        v_cvt_pk_bf16_f32 v{T+1}, v{S+2}, v{S+3}
        v_lshlrev_b32 v{S}, 16, v{T}
        v_and_b32 v{S+1}, 0xffff0000, v{T}
        v_lshlrev_b32 v{S+2}, 16, v{T+1}
        v_and_b32 v{S+3}, 0xffff0000, v{T+1}""")
    rnd4()
    for i in range(4): a(f"v_add_f32 v{S+i}, {fb(1e-5)}, v{S+i}")
    rnd4()
    for i in range(4): a(f"v_sqrt_f32 v{S+i}, v{S+i}")
    for i in range(4): a(f"v_add_f32 v{Q+i}, v{Q+i}, v{R+i}")
    rnd4()
    for i in range(4): a(f"v_rcp_f32 v{S+i}, v{S+i}")
    for i in range(4, 20): a(f"v_add_f32 v{Q+i}, v{Q+i}, v{R+i}")
    for b in range(5):
        for i in range(4): a(f"v_mul_f32 v{Q+4*b+i}, v{Q+4*b+i}, v{S+i}")
        a(f"v_cvt_pk_bf16_f32 v{R+4*b}, v{Q+4*b}, v{Q+4*b+1}\nv_cvt_pk_bf16_f32 v{R+4*b+1}, v{Q+4*b+2}, v{Q+4*b+3}")
        if b < 4: a(f"ds_write_b64 v7, {vr(R+4*b,2)} offset:{(b&1)*16*144 + (b>>1)*6912}")
        else: a(f"ds_write_b64 v6, {vr(R+4*b,2)} offset:{32*144}")
    a(f"""
    v_mul_u32_u24 v7, 144, v1
    v_lshl_add_u32 v7, v2, 4, v7
    v_add_u32 v7, {L_A}, v7
    v_lshl_add_u32 v8, v2, 2, s16
    v_mul_lo_u32 v8, v8, s17
    s_mul_i32 s18, s12, 1280
    s_mul_i32 s19, s13, 160
    s_add_u32 s18, s18, s19
    v_lshl_add_u32 v8, v1, 2, v8
    v_add_u32 v8, s18, v8
    v_bfrev_b32 v9, 1
    v_cndmask_b32 v9, v9, v8, vcc
    s_mov_b32 s18, {2*40960}
    s_mov_b32 s19, {3*40960}
    s_waitcnt lgkmcnt(0)
    s_barrier
    ;STAMP 4
    """)
    D = 20
    for mb in range(3):
        for p in range(2):
            for ks in range(2):
                a(f"ds_read_b128 {vr(D+16*mb+8*p+4*ks,4)}, v7 offset:{mb*16*144 + p*6912 + 64*ks}")
    O = 70
    def outs(m):
        dr, di = O + 8*m, O + 8*m + 4
        for i in range(4):
            a(f"v_cvt_pk_bf16_f32 v{100+4*m+i}, v{dr+i}, v{di+i}")
            so = ["0", "s17", "s18", "s19"][i]
            a(f"buffer_store_dword v{100+4*m+i}, v{9 if m == 2 else 8}, s[8:11], {so} offen offset:{64*m} sc1")
    for mb in range(3):
        d = D + 16*mb; dr, di = O + 8*mb, O + 8*mb + 4
        a(f"""s_waitcnt lgkmcnt({10-4*mb})
        v_mfma_f32_16x16x32_bf16 {vr(dr,4)}, {vr(CR,4)}, {vr(d,4)}, 0
        v_mfma_f32_16x16x32_bf16 {vr(di,4)}, {vr(CI,4)}, {vr(d,4)}, 0
        v_mfma_f32_16x16x32_bf16 {vr(dr,4)}, {vr(CR+4,4)}, {vr(d+4,4)}, {vr(dr,4)}
        v_mfma_f32_16x16x32_bf16 {vr(di,4)}, {vr(CI+4,4)}, {vr(d+4,4)}, {vr(di,4)}
        s_waitcnt lgkmcnt({8-4*mb})
        v_mfma_f32_16x16x32_bf16 {vr(dr,4)}, {vr(CN,4)}, {vr(d+8,4)}, {vr(dr,4)}
        v_mfma_f32_16x16x32_bf16 {vr(di,4)}, {vr(CR,4)}, {vr(d+8,4)}, {vr(di,4)}
        v_mfma_f32_16x16x32_bf16 {vr(dr,4)}, {vr(CN+4,4)}, {vr(d+12,4)}, {vr(dr,4)}
        v_mfma_f32_16x16x32_bf16 {vr(di,4)}, {vr(CR+4,4)}, {vr(d+12,4)}, {vr(di,4)}""")
        if mb: outs(mb - 1)
    a("s_nop 7")
    outs(2)
    a(";STAMP 5")

def helper(a):
    a(f"""
k_helper:
    s_getpc_b64 s[20:21]
k_pc:
    s_sub_u32 s20, s20, k_pc-{NAME}_kernel
    s_subb_u32 s21, s21, 0
    s_lshl_b32 s16, s3, 12
    s_sub_u32 s16, s16, 16384
    v_lshl_add_u32 v40, v0, 6, s16
    v_min_u32 v40, k_end-{NAME}_kernel, v40
    global_load_dword v41, v40, s[20:21]
    s_mul_i32 s16, s15, 160
    s_add_u32 s16, s16, s14
    v_and_b32 v3, 3, v1
    v_mul_u32_u24 v3, 40, v3
    v_add_u32 v3, s16, v3
    v_and_b32 v4, 12, v1
    v_add_u32 v4, v3, v4
    v_add_u32 v5, 16, v4
    v_and_b32 v6, 4, v1
    v_add3_u32 v6, v3, v6, 32
    v_cvt_f32_u32 v4, v4
    v_cvt_f32_u32 v5, v5
    v_cvt_f32_u32 v6, v6
    v_lshrrev_b32 v7, 3, v1
    v_cvt_f32_u32 v7, v7
    v_mul_f32 v4, {fb(1/640)}, v4
    v_mul_f32 v5, {fb(1/640)}, v5
    v_mul_f32 v6, {fb(1/640)}, v6
    v_mul_f32 v7, {fb(0.25)}, v7
    v_cos_f32 v24, v4
    v_cos_f32 v25, v5
    v_cos_f32 v26, v6
    s_sub_u32 s18, s3, 4
    s_movk_i32 s19, 31
    v_add_f32 v24, v24, v24
    v_add_f32 v25, v25, v25
    v_add_f32 v26, v26, v26
k1_hloop:
    s_lshl_b32 s16, s18, 5
    v_lshl_add_u32 v8, v2, 3, s16
    v_cvt_f32_u32 v8, v8
    s_mul_i32 s17, s18, 5120
    s_add_u32 s17, s17, {L_B}
    v_lshl_add_u32 v9, v0, 4, s17
    """)
    for j, (st, ph) in enumerate([(0, "0"), (1, "0"), (0, fb(0.25)), (1, fb(0.25)), (2, "v7")]):
        a(f"s_bitcmp1_b32 s19, {j}\ns_cbranch_scc0 k1_hs{j}")
        if ph.startswith("0x"): a(f"v_fmaak_f32 v10, v{4+st}, v8, {ph}")
        else: a(f"v_fma_f32 v10, v{4+st}, v8, {ph}")
        a(f"v_fract_f32 v10, v10\nv_add_f32 v11, v10, v{4+st}\nv_cos_f32 v12, v10\nv_cos_f32 v13, v11\ns_nop 0")
        for k in range(2, 8): a(f"v_fma_f32 v{12+k}, v{24+st}, v{11+k}, -v{10+k}")
        for k in range(4): a(f"v_cvt_pk_bf16_f32 v{20+k}, v{12+2*k}, v{13+2*k}")
        a(f"ds_write_b128 v9, v[20:23] offset:{1024*j}\nk1_hs{j}:")
    a(f"""
    s_cmp_eq_u32 s18, 4
    s_cbranch_scc1 k1_hdone
    s_lshl_b32 s19, 1, s18
    s_cmp_eq_u32 s18, 0
    s_cselect_b32 s19, 17, s19
    s_mov_b32 s18, 4
    s_branch k1_hloop
k1_hdone:
    v_mov_b32 v36, -1
    v_mov_b32 v37, -1
    v_mov_b32 v38, -1
    v_mov_b32 v39, -1
    v_lshlrev_b32 v3, 4, v0
    s_waitcnt lgkmcnt(0)
    ;STAMP 1
    s_barrier
    """)
    ptrs(a)
    a(f"""
    s_lshl_b32 s51, s2, 3
    s_add_u32 s51, s51, s3
    s_cmp_lg_u32 s51, 4
    s_cbranch_scc1 k1_hd2
    s_mov_b32 s20, {WS_KEY}
k_clr0:
    buffer_store_dwordx4 v[36:39], v3, s[8:11], s20 offen sc1
    s_addk_i32 s20, 1024
    s_cmp_lt_u32 s20, {WS_KEY + 16384}
    s_cbranch_scc1 k_clr0
k1_hd2:
    s_mov_b32 s50, 0
    s_cmp_lt_u32 s3, 6
    s_cbranch_scc1 k_h45
    """)
    PF = int(os.environ.get("PF", "0"))
    if PF == 1:
        a(f"s_mul_i32 s22, s2, 7680\nv_lshlrev_b32 v40, 7, v0")
    if PF == 2:
        a(f"""s_and_b32 s20, s2, 7
        s_lshr_b32 s21, s2, 3
        v_mul_u32_u24 v40, 86, v0
        v_lshrrev_b32 v40, 8, v40
        v_mul_u32_u24 v42, 3, v40
        v_sub_u32 v42, v0, v42
        v_mul_u32_u24 v40, 3072, v40
        v_lshl_add_u32 v40, v42, 7, v40
        s_mul_i32 s22, s21, {20*3072}
        s_mul_i32 s23, s20, 384
        s_add_u32 s22, s22, s23""")
    a("""s_cmp_eq_u32 s3, 6
    s_cselect_b32 s40, s52, s54
    s_cselect_b32 s41, s53, s55
    s_mov_b32 s42, 1966080
    s_mov_b32 s43, 0x00020000
    s_barrier""")
    if PF: a("buffer_load_dword v41, v40, s[40:43], s22 offen")
    if PF and int(os.environ.get("PF2", "1")): a("buffer_load_dword v41, v40, s[40:43], s22 offen offset:64")
    a(f"""
    s_branch k_hb2
k_h45:
    s_barrier
    s_mul_i32 s16, s2, {2*SLOT}
    s_add_u32 s16, s16, {WS_SLOT}
    s_cmp_eq_u32 s3, 5
    s_cbranch_scc1 k_clr
    s_cmp_lg_u32 s2, 0
    s_cbranch_scc1 k_hb2
    v_lshlrev_b32 v4, 2, v0
    s_waitcnt vmcnt(0)
    buffer_store_dword v36, v4, s[44:47], 0 offen sc1
    s_mov_b32 s16, {WS_ACT}
k_clr:
    s_add_u32 s17, s16, 4096
    buffer_store_dwordx4 v[36:39], v3, s[8:11], s16 offen sc1
    buffer_store_dwordx4 v[36:39], v3, s[8:11], s16 offen offset:1024 sc1
    buffer_store_dwordx4 v[36:39], v3, s[8:11], s16 offen offset:2048 sc1
    buffer_store_dwordx4 v[36:39], v3, s[8:11], s16 offen offset:3072 sc1
    buffer_store_dwordx4 v[36:39], v3, s[8:11], s17 offen sc1
    buffer_store_dwordx4 v[36:39], v3, s[8:11], s17 offen offset:1024 sc1
k_hb2:
    s_barrier
    s_branch k2_pre
    """)

def body(a):
    entry(a); helper(a); k1main(a); k2(a); ffn(a); a("k_end:\ns_endpgm")
def main(out):
    import gen
    hdr = f"; FNet (2-D DFT as 3 MFMA stages) + LN + top-2 routed SwiGLU, one persistent launch; generated by my own script\n; @launch grid=(256,1,1) block=(512,1,1) lds={LDS}\n"
    hdr += '.amdgcn_target "amdgcn-amd-amdhsa--gfx950"\n'
    c, d = gen.kernel(NAME + "_kernel", body, 240)
    open(out, "w").write(hdr + c + '.section .rodata,"a"\n.p2align 6\n' + d)
if __name__ == "__main__":
    main(sys.argv[1] if len(sys.argv) > 1 else f"cdna_kernels/{NAME}.s")
```

```python
from gen import A, fb, vr, DPPF, XB, wave_red
WS_G, WS_SLOT, WS_KEY, WS_ACT = 0, 0x300000, 0x280000, 0x284000
SLOT = 3072
L_W = 32768
YP = 2592
L_KEY, L_TOP, L_PB, L_W5 = 24576, 24576 + 64, 28672, 32768
NG, ND = 48, 40
SPIN = 1 << 15
SC = "sc1"
def spin(a, lab, cnt="s50"):
    a(f"s_cbranch_vccz {lab}_ok\ns_add_u32 {cnt}, {cnt}, 1\ns_cmp_lt_u32 {cnt}, {SPIN}\ns_cbranch_scc1 {lab}\n{lab}_ok:")
def k2(a):
    a(f"""
k2_pre:
    s_lshr_b32 s14, s3, 2
    s_and_b32 s15, s3, 3
    s_sub_u32 s16, 64, s12
    s_cmp_eq_u32 s12, 0
    s_cselect_b32 s16, 32, s16
    s_cmp_eq_u32 s14, 0
    s_cselect_b32 s16, s12, s16
    s_mul_i32 s17, s16, 40960
    v_mul_u32_u24 v3, 1280, v2
    v_lshl_add_u32 v3, v1, 4, v3
    s_lshl_b32 s18, s15, 8
    s_add_u32 s18, s18, s17
    s_cmp_eq_u32 s3, 0
    s_cselect_b32 s19, 1, 0
    s_cmp_eq_u32 s3, 5
    s_cselect_b32 s19, 1, s19
    v_lshrrev_b32 v6, 2, v1
    s_lshl_b32 s20, s14, 2
    s_cmp_eq_u32 s12, 0
    s_cbranch_scc1 k2_u0
    s_lshl_b32 s21, s13, 2
    v_add_u32 v4, s21, v6
    s_mul_i32 s21, s14, 31
    v_xor_b32 v4, s21, v4
    s_xor_b32 s21, s20, 4
    v_add_u32 v5, s21, v2
    s_branch k2_t2done
k2_u0:
    v_lshrrev_b32 v4, 1, v6
    s_lshl_b32 s21, s13, 1
    v_add_u32 v4, s21, v4
    s_sub_u32 s21, 32, s14
    v_sub_u32 v7, s21, v4
    v_and_b32 v6, 1, v6
    v_cmp_eq_u32 vcc, 1, v6
    v_xor_b32 v5, 1, v2
    s_or_b32 s21, s13, s14
    v_cndmask_b32 v4, v4, v7, vcc
    v_cmp_eq_u32 vcc, 32, v4
    s_cmp_eq_u32 s21, 0
    s_cselect_b32 s21, 2, 0
    v_cndmask_b32 v4, v4, 16, vcc
    v_cmp_gt_u32 vcc, s21, v2
    s_nop 1
    v_cndmask_b32 v5, v5, v2, vcc
    v_add_u32 v5, s20, v5
k2_t2done:
    s_lshl_b32 s21, s15, 2
    s_nop 0
    v_readlane_b32 s22, v4, s21
    v_cvt_f32_u32 v6, v4
    v_cvt_f32_u32 v7, v2
    s_lshl_b32 s22, s22, 6
    s_add_u32 s22, s22, s16
    s_mul_i32 s23, s22, 1280
    v_lshlrev_b32 v28, 4, v0
    v_lshlrev_b32 v29, 2, v0
    v_mul_f32 v6, {fb(1/32)}, v6
    v_mul_f32 v7, v6, v7
    v_mul_f32 v6, 4.0, v6
    v_and_b32 v10, 3, v1
    """)
    for j in range(4): a(f"v_cmp_eq_u32 s[{36+2*(j&1)}:{37+2*(j&1)}], {j}, v10" + (f"\nv_cndmask_b32 v{11+j}, 0, -1, s[{36+2*((j-1)&1)}:{37+2*((j-1)&1)}]" if False else "") + f"\ns_nop 1\nv_cndmask_b32 v{12+j}, 0, -1, s[{36+2*(j&1)}:{37+2*(j&1)}]")
    GD, AC = 32, 128
    for ks in range(8):
        a(f"""v_cos_f32 v10, v7
        v_sin_f32 v11, v7
        v_add_f32 v7, v7, v6
        v_cvt_pk_bf16_f32 v10, v10, v11""")
        for j in range(4): a(f"v_and_b32 v{AC+4*ks+j}, v{12+j}, v10")
    def addrs(cbexpr, vd, vm):
        a(f"""
        v_add_u32 v10, {cbexpr}, v1
        v_mul_u32_u24 v11, 205, v10
        v_lshrrev_b32 v11, 11, v11
        v_mul_u32_u24 v16, 10, v11
        v_sub_u32 v16, v10, v16
        v_lshrrev_b32 v17, 2, v11
        v_mul_u32_u24 v17, 160, v17
        v_and_b32 v11, 3, v11
        v_add3_u32 v11, v11, v17, 1
        v_lshl_add_u32 v11, v16, 2, v11
        v_lshlrev_b32 v11, 2, v11
        v_add_u32 v{vd}, v18, v11
        v_sub_u32 v{vm}, v19, v11
        """)
    a(f"""
    v_add_u32 v18, s20, v2
    v_mul_u32_u24 v18, {YP}, v18
    v_mul_u32_u24 v19, {YP}, v5
    v_add_u32 v19, {4*520}, v19
    s_lshl_b32 s21, s15, 4
    s_mul_i32 s24, s3, {YP}
    v_mov_b32 v26, s24
    v_mov_b32 v27, 0
    ds_write_b32 v26, v27
    """)
    addrs("s21", 20, 21)
    addrs("64", 22, 23)
    a(f"""v_cmp_eq_u32 vcc, 15, v1
    v_add_u32 v24, {4*(640-520)}, v19
    s_nop 0
    v_cndmask_b32 v24, v23, v24, vcc
    s_mov_b32 s25, 0xffff0000
    s_mov_b32 s26, 0x3f803f80
    s_cmp_lt_u32 s3, 4
    s_cselect_b32 s40, s52, s54
    s_cselect_b32 s41, s53, s55
    s_and_b32 s36, s2, 7
    s_lshr_b32 s37, s2, 3
    s_mul_i32 s48, s36, 6
    s_add_u32 s48, s48, s37
    s_lshl_b32 s39, s48, 6
    s_movk_i32 s49, 3072
    s_mul_i32 s38, s15, {160*3072}
    s_mul_i32 s27, s3, 10240
    s_movk_i32 s60, 10
    s_cmp_lt_u32 s2, {NG}
    s_cbranch_scc1 k2_wg
    s_mov_b32 s40, s56
    s_mov_b32 s41, s57
    s_mul_i32 s48, s36, 5
    s_add_u32 s48, s48, s37
    s_sub_u32 s48, s48, {NG//8}
    s_lshr_b32 s39, s48, 1
    s_lshl_b32 s39, s39, 6
    s_movk_i32 s49, 1280
    s_mul_i32 s38, s3, {192*1280}
    s_mul_i32 s27, s3, 12288
    s_movk_i32 s60, 12
k2_wg:
    s_add_u32 s61, s38, s39
    v_lshrrev_b32 v6, 2, v0
    v_mul_lo_u32 v6, v6, s49
    v_lshrrev_b32 v7, 4, v0
    v_and_b32 v7, 2, v7
    v_xor_b32 v7, v7, v0
    v_and_b32 v7, 3, v7
    v_lshl_add_u32 v6, v7, 4, v6
    s_lshl_b32 s49, s49, 4
    s_add_u32 m0, s27, {L_W}
    s_mov_b32 s42, 1966080
    s_mov_b32 s43, 0x00020000
    s_lshl_b32 s37, s2, 6
    s_add_u32 s37, s37, {WS_KEY}
    s_lshl_b32 s36, s3, 13
    s_add_u32 s36, s36, {WS_KEY - 32768}
    s_add_u32 s39, s36, 4096
    v_lshlrev_b32 v30, 6, v0
    s_cmp_ge_u32 s3, 6
    s_cbranch_scc1 k2_nowait
    s_cmp_lg_u32 s3, 4
    s_cbranch_scc1 k2_go_ok
k2_go:
    buffer_load_dword v31, v29, s[44:47], 0 offen {SC}
    s_waitcnt vmcnt(0)
    v_cmp_eq_u32 vcc, 0, v31
    """)
    spin(a, "k2_go")
    a(f"""
    s_waitcnt vmcnt(0)
k2_nowait:
    ;STAMP 6
    s_barrier
    s_cmp_lg_u32 s3, 0
    s_cbranch_scc1 k2_nf
    s_mov_b64 exec, 1
    buffer_store_dword v27, v27, s[8:11], s37 offen {SC}
    s_mov_b64 exec, -1
k2_nf:
    s_barrier
    s_and_b32 s21, s3, 6
    s_cmp_lg_u32 s21, 4
    s_cbranch_scc1 k2_s1_ok
    buffer_load_dword v32, v30, s[8:11], s36 offen {SC}
    buffer_load_dword v33, v30, s[8:11], s39 offen {SC}
k2_s1:
    buffer_load_dword v34, v30, s[8:11], s36 offen {SC}
    buffer_load_dword v35, v30, s[8:11], s39 offen {SC}
    s_waitcnt vmcnt(2)
    v_or_b32 v31, v32, v33
    v_cmp_ne_u32 vcc, 0, v31
    s_cbranch_vccz k2_s1_ok
    buffer_load_dword v32, v30, s[8:11], s36 offen {SC}
    buffer_load_dword v33, v30, s[8:11], s39 offen {SC}
    s_waitcnt vmcnt(2)
    v_or_b32 v31, v34, v35
    v_cmp_ne_u32 vcc, 0, v31
    """)
    spin(a, "k2_s1")
    a("s_barrier\n;STAMP 7")
    def loads(gd):
        for ks in range(8):
            a(f"buffer_load_dwordx4 {vr(gd+4*ks,4)}, v3, s[8:11], s18 offen" + ("\ns_addk_i32 s18, 5120" if ks < 7 else ""))
    def item(gd, acc, vd, vm, vm3, vmbase):
        for ks in range(8):
            a(f"s_waitcnt vmcnt({vmbase-ks})")
            a(f"v_mfma_f32_16x16x32_bf16 {vr(acc,4)}, {vr(AC+4*ks,4)}, {vr(gd+4*ks,4)}, {vr(acc,4) if ks else 0}")
        return [f"ds_write_b32 v{vd}, v{acc+i} offset:{160*i}" for i in range(4)] + \
               [f"ds_write_b32 v{vm3 if i == 3 else vm}, v{acc+i} offset:{160*(3-i)}" for i in range(4)]
    a("s_cmp_eq_u32 s19, 0\ns_cbranch_scc1 k2_one\ns_mov_b32 s21, s18\ns_add_u32 s18, s17, 1024")
    loads(GD + 32)
    a("s_mov_b32 s18, s21")
    XL = """    buffer_load_dwordx4 v[100:103], v28, s[4:7], s23 offen
    buffer_load_dword v104, v29, s[4:7], s23 offen offset:1024
    buffer_load_dwordx4 v[108:111], v28, s[28:31], 0 offen
    buffer_load_dword v112, v29, s[28:31], 0 offen offset:1024
"""
    loads(GD); a(XL)
    w2 = item(GD + 32, 164, 22, 23, 24, 19)
    a("s_nop 7")
    for t in w2: a(t)
    a("s_branch k2_two\nk2_one:")
    loads(GD); a(XL)
    a("k2_two:")
    w1 = item(GD, 160, 20, 21, 21, 11)
    Y, H = 32, 48
    a(f"""
    v_lshl_add_u32 v10, v0, 5, s24
    v_lshl_add_u32 v11, v0, 3, s24
    v_mov_b32 v12, 0
    v_mov_b32 v13, 0
    v_mov_b32 v14, 0
    s_lshl_b32 s37, s3, 2
    v_mov_b32 v15, s37
    v_mov_b32 v16, {fb(1/640)}""")
    for t in w1: a(t)
    a("s_waitcnt vmcnt(2)")
    unp = lambda d, r: f"v_lshlrev_b32 v{d}, 16, v{r}\nv_and_b32 v{d+1}, s25, v{r}"
    for j in range(5): a(unp(H+2*j, 100+j))
    a(f"""
    s_waitcnt lgkmcnt(0)
    ;STAMP 8
    s_barrier
    ds_read_b128 v[32:35], v10
    ds_read_b128 v[36:39], v10 offset:16
    ds_read_b64 v[40:41], v11 offset:2048
    """)
    for j in range(5):
        if j in (0, 2, 4): a(f"s_waitcnt lgkmcnt({2-j//2})")
        a(f"v_pk_add_f32 {vr(Y+2*j,2)}, {vr(Y+2*j,2)}, {vr(H+2*j,2)}")
    for j in range(5): a(f"v_cvt_pk_bf16_f32 v{60+j}, v{Y+2*j}, v{Y+2*j+1}")
    for j in range(5): a(f"v_dot2c_f32_bf16 v12, s26, v{60+j}\nv_dot2c_f32_bf16 v13, v{60+j}, v{60+j}")
    b = A(); wave_red(b, [12, 13]); red = [t for t in b.l if "dpp" in t]
    a(unp(H, 60)); a("s_nop 0")
    un = [x for j in range(1, 5) for x in unp(H+2*j, 60+j).split("\n")]
    for k in range(6):
        a(red[2*k]); a(red[2*k+1]); a(un[k])
    a(f"""
    {un[6]}
    v_readlane_b32 s36, v12, 63
    v_readlane_b32 s37, v13, 63
    {un[7]}
    v_mul_f32 v12, s36, v16
    v_mul_f32 v13, s37, v16
    v_fma_f32 v13, -v12, v12, v13
    v_max_f32 v13, 0, v13
    v_cvt_pk_bf16_f32 v13, v12, v13
    v_lshlrev_b32 v12, 16, v13
    v_and_b32 v13, s25, v13
    v_add_f32 v13, {fb(1e-5)}, v13
    v_cvt_pk_bf16_f32 v13, v13, v13
    v_and_b32 v13, s25, v13
    v_sqrt_f32 v13, v13
    s_nop 0
    v_cvt_pk_bf16_f32 v13, v13, v13
    v_and_b32 v13, s25, v13
    v_rcp_f32 v13, v13
    s_nop 0
    v_mul_f32 v12, v12, v13
    """)
    for j in range(5): a(f"v_pk_fma_f32 {vr(Y+2*j,2)}, {vr(H+2*j,2)}, v[12:13], v[12:13] op_sel:[0,1,0] op_sel_hi:[1,1,0] neg_lo:[0,0,1] neg_hi:[0,0,1]")
    for j in range(5): a(f"v_cvt_pk_bf16_f32 v{68+j}, v{Y+2*j}, v{Y+2*j+1}")
    a("s_waitcnt vmcnt(0)")
    for j in range(5): a(f"v_dot2c_f32_bf16 v14, v{68+j}, v{108+j}")
    b = A(); wave_red(b, [14]); red = [t for t in b.l if "dpp" in t]
    un = [x for j in range(5) for x in unp(Y+2*j, 68+j).split("\n")] + [f"v_pk_add_f32 {vr(Y+2*j,2)}, {vr(Y+2*j,2)}, {vr(H+2*j,2)}" for j in range(5)]
    a(un[0]); a(un[1]); a(un[2])
    for k in range(6):
        a(red[k]); a(un[3+2*k]); a(un[4+2*k])
    a(f"""
    v_readlane_b32 s36, v14, 63
    s_nop 1
    v_cvt_pk_bf16_f32 v14, s36, s36
    v_ashrrev_i32 v16, 31, v14
    v_or_b32 v16, 0x80000000, v16
    v_xor_b32 v14, v14, v16
    v_and_b32 v14, s25, v14
    v_or_b32 v16, s3, v14
    ds_write_b32 v15, v16 offset:{L_KEY}
    v_and_b32 v15, 28, v29
    """)
    for j in range(5): a(f"v_cvt_pk_bf16_f32 v{76+j}, v{Y+2*j}, v{Y+2*j+1}")
    for j in (68, 69, 70, 71, 72): a(f"v_min_u32 v{j}, -2, v{j}")
    a(f"""
    s_waitcnt lgkmcnt(0)
    s_barrier
    ds_read_b32 v15, v15 offset:{L_KEY}
    v_mov_b32 v17, s22
    s_waitcnt lgkmcnt(0)
    v_cmp_gt_u32 vcc, v15, v16
    s_bcnt1_i32_b32 s36, vcc_lo
    s_lshr_b32 s36, s36, 2
    s_cmp_ge_u32 s36, 2
    s_cbranch_scc1 k2_plain
    s_lshl_b32 s37, s2, 1
    s_add_u32 s37, s36, s37
    v_or_b32 v14, s37, v14
    s_mul_i32 s37, s37, {SLOT}
    s_add_u32 s37, s37, {WS_SLOT}
    s_lshl_b32 s38, s2, 4
    s_add_u32 s36, s36, s38
    s_lshl_b32 s36, s36, 2
    s_add_u32 s36, s36, {WS_KEY + 8}
    buffer_store_dwordx4 v[68:71], v28, s[8:11], s37 offen sc1
    buffer_store_dword v72, v29, s[8:11], s37 offen offset:1024 sc1
    s_mov_b64 exec, 1
    buffer_store_dword v14, v27, s[8:11], s36 offen {SC}
    buffer_store_dword v17, v27, s[8:11], s37 offen offset:2560 sc1
    s_mov_b64 exec, -1
    v_min_u32 v60, -2, v60
    v_min_u32 v61, -2, v61
    v_min_u32 v62, -2, v62
    v_min_u32 v63, -2, v63
    v_min_u32 v64, -2, v64
    buffer_store_dwordx4 v[60:63], v28, s[8:11], s37 offen offset:1280 sc1
    buffer_store_dword v64, v29, s[8:11], s37 offen offset:2304 sc1
    v_readfirstlane_b32 s51, v14
    s_movk_i32 s36, 6
    s_barrier
    s_branch k2_wd
k2_plain:
    ;STAMP 9
    s_mov_b32 s51, -1
    s_barrier
    buffer_store_dwordx4 v[76:79], v28, s[32:35], s23 offen
    buffer_store_dword v80, v29, s[32:35], s23 offen offset:1024
k2_wd:
    s_cmp_ge_u32 s2, {NG+ND}
    s_cbranch_scc1 k2_nw
k2_wd1:
    buffer_load_dwordx4 v6, s[40:43], s61 offen lds
    s_addk_i32 m0, 1024
    s_add_u32 s61, s61, s49
    s_sub_u32 s60, s60, 1
    s_cmp_lg_u32 s60, 0
    s_cbranch_scc1 k2_wd1
k2_nw:
    s_cmp_ge_u32 s36, 6
    s_cbranch_scc1 k2_s2
    v_lshlrev_b32 v4, 6, v0
    s_lshl_b32 s24, s36, 12
    s_add_u32 s24, s24, {WS_KEY - 8192}
    s_lshl_b32 s36, s36, 3
    v_mov_b32 v5, s36
k2_s2p:
    buffer_load_dwordx2 v[8:9], v4, s[8:11], s24 offen offset:8 {SC}
    s_waitcnt vmcnt(0)
    v_max_u32 v16, v8, v9
    v_cmp_eq_u32 vcc, -1, v16
    """)
    spin(a, "k2_s2p")
    a("v_mov_b32 v19, v16\nv_min_u32 v17, v8, v9")
    wave_red(a, [19], "v_max_u32")
    a("s_nop 0\nv_readlane_b32 s20, v19, 63\ns_nop 1\nv_cmp_eq_u32 vcc, s20, v16\ns_nop 1\nv_cndmask_b32 v18, v16, v17, vcc")
    wave_red(a, [18], "v_max_u32")
    a(f"""
    v_mov_b32 v16, s20
    v_readlane_b32 s21, v18, 63
    s_nop 1
    v_mov_b32 v17, s21
    ds_write_b64 v5, v[16:17] offset:{L_TOP - 16}
k2_s2:
    s_waitcnt vmcnt(0) lgkmcnt(0)
    s_barrier
    ds_read_b128 v[8:11], v27 offset:{L_TOP}
    ds_read_b128 v[12:15], v27 offset:{L_TOP + 16}
    s_waitcnt lgkmcnt(0)
    ;STAMP 10
    v_min_u32 v16, v8, v10
    v_min_u32 v17, v12, v14
    v_max3_u32 v9, v9, v11, v16
    v_max3_u32 v13, v13, v15, v17
    v_max_u32 v8, v8, v10
    v_max_u32 v12, v12, v14
    v_min_u32 v16, v8, v12
    v_max3_u32 v17, v9, v13, v16
    v_max_u32 v16, v8, v12
    s_nop 0
    v_readfirstlane_b32 s21, v17
    v_readfirstlane_b32 s20, v16
    s_cmp_ge_u32 s51, s21
    s_cbranch_scc1 k2_sel
    buffer_store_dwordx4 v[76:79], v28, s[32:35], s23 offen
    buffer_store_dword v80, v29, s[32:35], s23 offen offset:1024
k2_sel:
    s_cmp_ge_u32 s2, {NG+ND}
    s_cbranch_scc1 k_end
    """)


def ffn(a):
    AF, BF, PB = 32, 88, L_PB
    a(f"""
    s_and_b32 s22, s20, 0x1ff
    s_and_b32 s23, s21, 0x1ff
    s_mul_i32 s22, s22, {SLOT}
    s_mul_i32 s23, s23, {SLOT}
    v_mov_b32 v16, s22
    v_mov_b32 v17, s23
    v_cmp_gt_u32 vcc, 8, v1
    s_mov_b32 s26, {WS_SLOT}
    v_lshrrev_b32 v6, 2, v1
    v_lshl_add_u32 v6, v2, 3, v6
    v_lshlrev_b32 v6, 6, v6
    v_and_b32 v7, 3, v1
    v_lshl_add_u32 v6, v7, 3, v6
    s_cmp_ge_u32 s2, {NG}
    s_cbranch_scc1 k4
    s_bfe_u32 s16, s3, 0x10001
    s_mul_i32 s16, s16, 640
    v_cndmask_b32 v5, v17, v16, vcc
    v_lshl_add_u32 v5, v2, 4, v5
    s_add_u32 s26, s26, s16
    s_lshr_b32 s19, s3, 1
    s_mul_i32 s19, s19, 20480
    v_xor_b32 v7, s3, v2
    """)
    def common(nm, nks, soff):
        a(f"v_and_b32 v7, 1, v7\nv_lshl_add_u32 v7, v7, 5, v6\ns_add_u32 s19, s19, {L_W}\nv_add_u32 v7, s19, v7")
        a(f"{nm}_p:")
        for j in range(nks): a(f"buffer_load_dwordx4 {vr(AF+4*j,4)}, v5, s[8:11], {soff} offen offset:{(64 if nm == 'k3' else 128)*j} {SC}")
        for j in range(nks):
            a(f"ds_read_b64_tr_b16 {vr(BF+4*j,2)}, v7 offset:{2048*j}\nds_read_b64_tr_b16 {vr(BF+4*j+2,2)}, v7 offset:{2048*j+256}")
        a("s_waitcnt vmcnt(0)")
        n = 4*nks
        a(f"v_max3_u32 v8, v{AF}, v{AF+1}, v{AF+2}\nv_max3_u32 v9, v{AF+3}, v{AF+4}, v{AF+5}")
        for k in range(6, n, 4): a(f"v_max3_u32 v8, v8, v{AF+k}, v{AF+k+1}" + (f"\nv_max3_u32 v9, v9, v{AF+k+2}, v{AF+k+3}" if k+2 < n else ""))
        a("v_max_u32 v8, v8, v9\nv_cmp_eq_u32 vcc, -1, v8\ns_waitcnt lgkmcnt(0)")
        spin(a, nm + "_p")
        a(f";STAMP 11\ns_lshl_b32 s27, s3, 8")
        for j in range(nks):
            a(f"v_mfma_f32_16x16x32_bf16 v[84:87], {vr(AF+4*j,4)}, {vr(BF+4*j,4)}, {'v[84:87]' if j else 0}")
        a(f"""
        v_lshl_add_u32 v7, v0, 2, s27
        v_and_b32 v8, 47, v0
        v_and_b32 v9, 1, v2
        v_lshlrev_b32 v8, 2, v8
        v_lshl_add_u32 v8, v9, 8, v8
        s_nop 2
        ds_write_b32 v7, v84 offset:{PB}
        s_waitcnt lgkmcnt(0)
        s_barrier
        s_cmp_lg_u32 s3, 0
        s_cbranch_scc1 k_end
        """)
    common("k3", 10, "s26")
    for w in range(4): a(f"ds_read_b32 v{32+w}, v8 offset:{PB+512*w}")
    a(f"""
    v_and_b32 v7, 1, v0
    v_cmp_eq_u32 vcc, 0, v7
    v_lshlrev_b32 v16, 1, v0
    s_lshl_b32 s18, s48, 7
    s_add_u32 s18, s18, {WS_ACT}
    s_waitcnt lgkmcnt(0)
    v_add_f32 v24, v32, v33
    v_add_f32 v25, v34, v35
    v_cvt_pk_bf16_f32 v24, v24, v25
    v_lshlrev_b32 v25, 16, v24
    v_and_b32 v24, s25, v24
    v_mul_f32 v26, {fb(-1.4426950408889634)}, v25
    v_exp_f32 v26, v26
    s_nop 0
    v_add_f32 v26, 1.0, v26
    v_rcp_f32 v26, v26
    s_nop 0
    v_mul_f32 v25, v25, v26
    v_cvt_pk_bf16_f32 v25, v25, v25
    v_and_b32 v25, s25, v25
    v_mul_f32 v24, v24, v25
    s_nop 1
    v_mov_b32_dpp v25, v24 quad_perm:[1,1,3,3] {DPPF}
    v_cvt_pk_bf16_f32 v24, v24, v25
    v_min_u32 v24, -2, v24
    s_and_saveexec_b64 s[36:37], vcc
    buffer_store_dword v24, v16, s[8:11], s18 offen {SC}
    s_endpgm
k4:
    s_mul_i32 s16, s3, 768
    s_add_u32 s16, s16, {WS_ACT}
    v_lshrrev_b32 v5, 3, v1
    v_lshlrev_b32 v5, 6, v5
    v_lshl_add_u32 v5, v2, 4, v5
    s_lshl_b32 s18, s48, 5
    s_mul_i32 s19, s3, 12288
    v_xor_b32 v7, s48, v2
    v_cmp_gt_u32 vcc, 32, v0
    v_mov_b32 v18, s20
    v_mov_b32 v19, s21
    v_cndmask_b32 v16, v17, v16, vcc
    v_cndmask_b32 v18, v19, v18, vcc
    v_and_b32 v17, 14, v1
    v_lshl_add_u32 v17, v17, 1, v16
    v_add_u32 v17, s18, v17
    """)
    a(f"""
    s_cmp_lg_u32 s3, 0
    s_cbranch_scc1 k4_h_ok
k4_h:
    buffer_load_dword v20, v17, s[8:11], s26 offen {SC}
    buffer_load_dword v21, v17, s[8:11], s26 offen offset:1280 {SC}
    buffer_load_dword v22, v16, s[8:11], s26 offen offset:2560 {SC}
    s_waitcnt vmcnt(0)
    v_max3_u32 v8, v20, v21, v22
    v_cmp_eq_u32 vcc, -1, v8
    """)
    spin(a, "k4_h")
    common("k4", 6, "s16")
    for w in range(8): a(f"ds_read_b32 v{32+w}, v29 offset:{PB+256*w}")
    a("v_and_b32 v7, 16, v0\nv_cmp_eq_u32 vcc, 0, v7\ns_waitcnt lgkmcnt(0)")
    a("v_add_f32 v32, v32, v33\nv_add_f32 v34, v34, v35\nv_add_f32 v36, v36, v37\nv_add_f32 v38, v38, v39\nv_add_f32 v24, v32, v34\nv_add_f32 v25, v36, v38")
    a(f"""
    v_ashrrev_i32 v19, 31, v18
    v_not_b32 v19, v19
    v_or_b32 v19, 0x80000000, v19
    v_xor_b32 v18, v18, v19
    v_and_b32 v18, s25, v18
    v_mul_f32 v18, {fb(-1.4426950408889634)}, v18
    v_exp_f32 v18, v18
    v_add_f32 v24, v24, v25
    v_add_f32 v18, 1.0, v18
    v_rcp_f32 v18, v18
    v_and_b32 v19, 1, v1
    v_lshlrev_b32 v19, 4, v19
    v_cvt_pk_bf16_f32 v24, v24, v18
    v_lshlrev_b32 v25, 16, v24
    v_and_b32 v24, s25, v24
    v_mul_f32 v24, v24, v25
    v_cvt_pk_bf16_f32 v24, v24, v24
    v_and_b32 v24, s25, v24
    v_lshrrev_b32 v20, v19, v20
    v_lshrrev_b32 v21, v19, v21
    v_lshlrev_b32 v20, 16, v20
    v_lshlrev_b32 v21, 16, v21
    v_and_b32 v22, 0x7ff, v22
    v_mul_u32_u24 v22, 1280, v22
    v_add_f32 v24, v24, v20
    v_cvt_pk_bf16_f32 v24, v24, v24
    v_and_b32 v24, s25, v24
    v_add_f32 v24, v24, v21
    v_cvt_pk_bf16_f32 v24, v24, v24
    v_lshl_add_u32 v22, v1, 1, v22
    s_and_saveexec_b64 s[36:37], vcc
    buffer_store_short v24, v22, s[32:35], s18 offen
    """)
```

```python
import sys, os
from gen2b import k2, ffn, spin
from gen import A, fb, vr, DPPF, NAME, XB, wave_red
WS_G, WS_SLOT, WS_KEY, WS_ACT = 0, 0x300000, 0x280000, 0x284000
WS_SIZE = 0x1000000
SLOT = 3072
L_B, L_A, L_W = 81920, 107520, 121344
LDS = 32768 + 98304
YP = 2576
L_KEY, L_TOP, L_PB, L_W5 = 24576, 24576 + 64, 28672, 32768
SPIN = 1 << 15
SC = "sc0 sc1"
def srd(a, d, nbytes): a(f"s_mov_b32 s{d+2}, {nbytes}\ns_mov_b32 s{d+3}, 0x00020000")

def entry(a):
    a(f"""
    s_cmp_ge_u32 s2, 256
    s_cbranch_scc1 k_end
    s_load_dwordx2 s[4:5], s[0:1], 0
    s_load_dwordx4 s[44:47], s[0:1], 88
    s_load_dwordx8 s[52:59], s[0:1], 56
    s_load_dwordx2 s[28:29], s[0:1], 48
    v_lshrrev_b32 v1, 6, v0
    v_and_b32 v0, 63, v0
    s_and_b32 s12, s2, 7
    s_lshr_b32 s13, s2, 6
    v_readfirstlane_b32 s3, v1
    s_lshl_b32 s13, s13, 3
    s_add_u32 s12, s12, s13
    s_bfe_u32 s13, s2, 0x30003
    s_and_b32 s14, s13, 3
    s_add_u32 s14, s14, 1
    s_lshr_b32 s15, s13, 2
    v_and_b32 v1, 15, v0
    v_lshrrev_b32 v2, 4, v0
    """)
    srd(a, 4, XB); srd(a, 8, WS_SIZE)
    a("s_cmp_lt_u32 s3, 4\ns_cbranch_scc1 k_main")
def ptrs(a):
    a("s_mov_b32 s8, s46\ns_mov_b32 s9, s47\ns_mov_b32 s32, s58\ns_mov_b32 s33, s59")
    srd(a, 44, 256); srd(a, 28, 1280); srd(a, 32, XB)

NPRE = int(os.environ.get('NPRE', '8'))
DG = len(sys.argv) > 2
def k1main(a):
    a(f"""
k_main:
    v_lshrrev_b32 v3, 2, v0
    s_lshl_b32 s16, s3, 4
    v_add_u32 v3, s16, v3
    s_mov_b32 s17, 40960
    v_mul_lo_u32 v3, v3, s17
    v_lshrrev_b32 v4, 5, v0
    v_mul_u32_u24 v4, 3, v4
    v_and_b32 v5, 3, v0
    v_xor_b32 v4, v4, v5
    v_lshl_add_u32 v3, v4, 4, v3
    s_mul_i32 s18, s12, 1280
    s_mul_i32 s19, s3, 20480
    s_mov_b32 m0, s19
    s_add_u32 s20, s18, {64*NPRE}
    s_lshl_b32 s21, s13, 2
    s_add_u32 s21, s21, s3
    s_mul_i32 s21, s21, {2*40960}
    s_add_u32 s21, s21, s18
    v_lshrrev_b32 v6, 5, v0
    v_mul_u32_u24 v6, 40960, v6
    v_and_b32 v7, 31, v0
    v_med3_u32 v7, v7, {NPRE}, 19
    v_lshl_add_u32 v6, v7, 6, v6
    s_waitcnt lgkmcnt(0)
    buffer_load_dword v239, v6, s[4:7], s21 offen
k1_dma:
    buffer_load_dwordx4 v3, s[4:7], s18 offen lds
    s_addk_i32 s18, 64
    s_addk_i32 m0, 1024
    s_cmp_lt_u32 s18, s20
    s_cbranch_scc1 k1_dma
    """)
    ptrs(a)
    CR, CI, CN = 200, 208, 216
    B, X, P, Q, R, S, SQ, ONE, T = 20, 120, 132, 152, 172, 192, 196, 224, 228
    a(f"""
    v_add_u32 v4, s16, v1
    v_cvt_f32_u32 v4, v4
    v_lshlrev_b32 v5, 8, v2
    v_add_u32 v5, s12, v5
    v_cvt_f32_u32 v5, v5
    s_mul_i32 s21, s14, 3
    v_cvt_f32_u32 v6, s21
    v_mul_f32 v5, v4, v5
    v_mul_f32 v6, {fb(0.25)}, v6
    v_mul_f32 v7, {fb(1/64)}, v4
    v_fmac_f32 v6, {fb(1/2048)}, v5
    v_fract_f32 v6, v6
    s_and_b32 s21, s14, 1
    s_lshl_b32 s22, s21, 31
    s_or_b32 s22, s22, 0x3f800000
    s_and_b32 s23, s14, 2
    s_lshl_b32 s23, s23, 30
    s_or_b32 s23, s23, 0x3f800000
    s_cmp_eq_u32 s21, 1
    s_cselect_b32 s24, s23, 0
    s_cselect_b32 s23, 0, s23
    s_xor_b32 s25, s24, 0x80000000
    v_mov_b32 v12, s24
    v_mov_b32 v13, s25
    v_cmp_gt_u32 vcc, 8, v1
    v_lshrrev_b32 v4, 3, v1
    v_mul_u32_u24 v4, 3, v4
    v_cndmask_b32 v12, v12, v13, vcc
    v_xor_b32 v4, v4, v2
    v_lshlrev_b32 v4, 4, v4
    v_lshl_add_u32 v4, v1, 6, v4
    v_add_u32 v4, s19, v4
    v_lshlrev_b32 v19, 4, v0
    v_add_u32 v19, {L_B}, v19
    v_lshlrev_b32 v13, 2, v2
    v_sub_u32 v13, v1, v13
    v_mov_b32 v18, 1.0
    """)
    for i in range(4): a(f"v_mov_b32 v{ONE+i}, 0x3f803f80\nv_cmp_eq_u32 s[{36+2*i}:{37+2*i}], {i}, v13")
    a("s_mov_b32 s50, 0\n;STAMP 1\ns_barrier\n;STAMP 2")
    xb = lambda i: [120, 124, 128, 172, 176][i] if i < 5 else X + 4 * (i % 3)
    for f in range(25):
        a(f"ds_read_b128 {vr(B+4*f,4)}, v19 offset:{1024*f}")
        if f % 5 == 4: a(f"s_waitcnt vmcnt({NPRE-1-f//5})\nds_read_b128 {vr(xb(f//5),4)}, v4 offset:{1024*(f//5)}")
    fill = {i: [] for i in range(20)}
    for j in range(20):
        fill[6 + j // 5].append(f"v_mul_f32 v{P+j}, s22, v{P+j}")
        fill[11 + j // 5].append(f"v_mul_f32 v{Q+j}, s22, v{Q+j}")
    slots = [0, 0, 1, 1, 2, 3, 4, 5]
    for ks in range(2):
        for jp in range(4):
            f = fill[slots[4*ks+jp]]
            if ks and not jp: f += ["v_fmac_f32 v6, 0x41c00000, v7", "v_fract_f32 v6, v6"]
            f += f"""v_cos_f32 v8, v6
            v_sin_f32 v9, v6
            v_add_f32 v6, v6, v7
            v_cos_f32 v10, v6
            v_sin_f32 v11, v6
            v_add_f32 v6, v6, v7
            v_cvt_pk_bf16_f32 v{CR+4*ks+jp}, v8, v10
            v_cvt_pk_bf16_f32 v{CN+4*ks+jp}, v9, v11
            v_cvt_pk_bf16_f32 v{CI+4*ks+jp}, -v9, -v11""".split("\n")
    rot = []
    for b in range(2):
        for i in range(4):
            re, im = P + 4*b + i, P + 8 + 4*b + i
            rot += [f"v_mul_f32 v{R+4*b+i}, s23, v{re}", f"v_mul_f32 v{R+8+4*b+i}, s23, v{im}",
                    f"v_fmac_f32 v{R+4*b+i}, s25, v{im}", f"v_fmac_f32 v{R+8+4*b+i}, s24, v{re}"]
    for i in range(4): rot += [f"v_mul_f32 v{R+16+i}, s23, v{P+16+i}"]
    for i in range(4): rot += [f"v_fmac_f32_dpp v{R+16+i}, v{P+16+i}, v12 row_ror:8 {DPPF}"]
    fill[15] += ['s_nop 0', 's_nop 0']
    for j, t in enumerate(rot): fill[15 + j // 10].append(t)
    for i in range(20):
        q, ks = divmod(i, 5)
        x = xb(i)
        if i + NPRE < 20: a("buffer_load_dwordx4 v3, s[4:7], s18 offen lds\ns_addk_i32 m0, 1024\ns_addk_i32 s18, 64")
        if i + NPRE == 20: a("s_barrier")
        if 3 <= i <= 17: a(f"s_waitcnt vmcnt({min(i+NPRE+1, 20)-i-3})\nds_read_b128 {vr(xb(i+2),4)}, v4 offset:{1024*(i+2)}")
        a(f"s_waitcnt lgkmcnt({[15, 15, 12, 7][i] if i < 4 else min(2, 19-i)})")
        if DG and i in (5, 12): a(f';STAMP {11 if i == 5 else 12}')
        acc = P if q % 2 == 0 else Q
        mf = []
        for b in range(5):
            c = "0" if (q < 2 and ks == 0) else vr(acc+4*b, 4)
            mf.append(f"v_mfma_f32_16x16x32_bf16 {vr(acc+4*b,4)}, {vr(x,4)}, {vr(B+20*ks+4*b,4)}, {c}")
        st = [f"v_mfma_f32_16x16x32_bf16 {vr(SQ,4)}, {vr(x,4)}, {vr(x,4)}, {vr(SQ,4) if i else 0}",
              f"v_mfma_f32_16x16x32_bf16 {vr(S,4)}, {vr(x,4)}, {vr(ONE,4)}, {vr(S,4) if i else 0}"]
        if i < 19:
            mf = mf + st; fl = fill[i]
            per = -(-len(fl) // 7)
            for b in range(7):
                a(mf[b])
                for t in fl[b*per:(b+1)*per]: a(t)
        else:
            a(st[0]); a(st[1]); a(mf[0]); a(mf[1])
            a(f"""
            s_lshl_b32 s27, s3, 5
            s_add_u32 s27, s27, {L_A}
            v_lshl_add_u32 v6, v2, 3, s27
            v_mul_u32_u24 v7, 144, v1
            v_add_u32 v7, v6, v7
            v_and_b32 v8, 7, v1
            v_cndmask_b32 v14, 0, v{SQ}, s[36:37]
            v_cndmask_b32 v14, v14, v{SQ+1}, s[38:39]
            v_cndmask_b32 v14, v14, v{SQ+2}, s[40:41]
            v_cndmask_b32 v14, v14, v{SQ+3}, s[42:43]
            v_mul_u32_u24 v8, 144, v8
            v_lshrrev_b32 v9, 3, v1
            v_mfma_f32_16x16x4_f32 {vr(SQ,4)}, v14, v18, 0
            v_mul_u32_u24 v9, 6912, v9
            v_add3_u32 v6, v6, v8, v9""")
            a(mf[2]); [a(f"v_mul_f32 v{S+k}, {fb(1/640)}, v{S+k}") for k in range(4)]
            a(mf[3]); a(mf[4])
    a(";STAMP 3\ns_nop 3")
    for i in range(4): a(f"v_mul_f32 v{SQ+i}, {fb(1/640)}, v{SQ+i}")
    for i in range(4): a(f"v_fma_f32 v{S+i}, -v{S+i}, v{S+i}, v{SQ+i}")
    for i in range(4): a(f"v_max_f32 v{S+i}, 0, v{S+i}")
    def rnd4():
        a(f"""v_cvt_pk_bf16_f32 v{T}, v{S}, v{S+1}
        v_cvt_pk_bf16_f32 v{T+1}, v{S+2}, v{S+3}
        v_lshlrev_b32 v{S}, 16, v{T}
        v_and_b32 v{S+1}, 0xffff0000, v{T}
        v_lshlrev_b32 v{S+2}, 16, v{T+1}
        v_and_b32 v{S+3}, 0xffff0000, v{T+1}""")
    rnd4()
    for i in range(4): a(f"v_add_f32 v{S+i}, {fb(1e-5)}, v{S+i}")
    rnd4()
    for i in range(4): a(f"v_sqrt_f32 v{S+i}, v{S+i}")
    for i in range(4): a(f"v_add_f32 v{Q+i}, v{Q+i}, v{R+i}")
    rnd4()
    for i in range(4): a(f"v_rcp_f32 v{S+i}, v{S+i}")
    for i in range(4, 20): a(f"v_add_f32 v{Q+i}, v{Q+i}, v{R+i}")
    for b in range(5):
        for i in range(4): a(f"v_mul_f32 v{Q+4*b+i}, v{Q+4*b+i}, v{S+i}")
        a(f"v_cvt_pk_bf16_f32 v{R+4*b}, v{Q+4*b}, v{Q+4*b+1}\nv_cvt_pk_bf16_f32 v{R+4*b+1}, v{Q+4*b+2}, v{Q+4*b+3}")
        if b < 4: a(f"ds_write_b64 v7, {vr(R+4*b,2)} offset:{(b&1)*16*144 + (b>>1)*6912}")
        else: a(f"ds_write_b64 v6, {vr(R+4*b,2)} offset:{32*144}")
    a(f"""
    v_mul_u32_u24 v7, 144, v1
    v_lshl_add_u32 v7, v2, 4, v7
    v_add_u32 v7, {L_A}, v7
    v_lshl_add_u32 v8, v2, 2, s16
    v_mul_lo_u32 v8, v8, s17
    s_mul_i32 s18, s12, 1280
    s_mul_i32 s19, s13, 160
    s_add_u32 s18, s18, s19
    v_lshl_add_u32 v8, v1, 2, v8
    v_add_u32 v8, s18, v8
    v_bfrev_b32 v9, 1
    v_cndmask_b32 v9, v9, v8, vcc
    s_mov_b32 s18, {2*40960}
    s_mov_b32 s19, {3*40960}
    s_waitcnt lgkmcnt(0)
    s_barrier
    ;STAMP 4
    """)
    D = 20
    for mb in range(3):
        for p in range(2):
            for ks in range(2):
                a(f"ds_read_b128 {vr(D+16*mb+8*p+4*ks,4)}, v7 offset:{mb*16*144 + p*6912 + 64*ks}")
    O = 70
    def outs(m):
        dr, di = O + 8*m, O + 8*m + 4
        for i in range(4):
            a(f"v_cvt_pk_bf16_f32 v{100+4*m+i}, v{dr+i}, v{di+i}")
            so = ["0", "s17", "s18", "s19"][i]
            a(f"buffer_store_dword v{100+4*m+i}, v{9 if m == 2 else 8}, s[8:11], {so} offen offset:{64*m} sc1")
    for mb in range(3):
        d = D + 16*mb; dr, di = O + 8*mb, O + 8*mb + 4
        a(f"""s_waitcnt lgkmcnt({10-4*mb})
        v_mfma_f32_16x16x32_bf16 {vr(dr,4)}, {vr(CR,4)}, {vr(d,4)}, 0
        v_mfma_f32_16x16x32_bf16 {vr(di,4)}, {vr(CI,4)}, {vr(d,4)}, 0
        v_mfma_f32_16x16x32_bf16 {vr(dr,4)}, {vr(CR+4,4)}, {vr(d+4,4)}, {vr(dr,4)}
        v_mfma_f32_16x16x32_bf16 {vr(di,4)}, {vr(CI+4,4)}, {vr(d+4,4)}, {vr(di,4)}
        s_waitcnt lgkmcnt({8-4*mb})
        v_mfma_f32_16x16x32_bf16 {vr(dr,4)}, {vr(CN,4)}, {vr(d+8,4)}, {vr(dr,4)}
        v_mfma_f32_16x16x32_bf16 {vr(di,4)}, {vr(CR,4)}, {vr(d+8,4)}, {vr(di,4)}
        v_mfma_f32_16x16x32_bf16 {vr(dr,4)}, {vr(CN+4,4)}, {vr(d+12,4)}, {vr(dr,4)}
        v_mfma_f32_16x16x32_bf16 {vr(di,4)}, {vr(CR+4,4)}, {vr(d+12,4)}, {vr(di,4)}""")
        if mb: outs(mb - 1)
    a("s_nop 7")
    outs(2)
    a(";STAMP 5")

def helper(a):
    a(f"""
k_helper:
    s_getpc_b64 s[20:21]
k_pc:
    s_sub_u32 s20, s20, k_pc-{NAME}_kernel
    s_subb_u32 s21, s21, 0
    s_lshl_b32 s16, s3, 12
    s_sub_u32 s16, s16, 16384
    v_lshl_add_u32 v40, v0, 6, s16
    v_min_u32 v40, k_end-{NAME}_kernel, v40
    global_load_dword v41, v40, s[20:21]
    s_mul_i32 s16, s15, 160
    s_add_u32 s16, s16, s14
    v_and_b32 v3, 3, v1
    v_mul_u32_u24 v3, 40, v3
    v_add_u32 v3, s16, v3
    v_and_b32 v4, 12, v1
    v_add_u32 v4, v3, v4
    v_add_u32 v5, 16, v4
    v_and_b32 v6, 4, v1
    v_add3_u32 v6, v3, v6, 32
    v_cvt_f32_u32 v4, v4
    v_cvt_f32_u32 v5, v5
    v_cvt_f32_u32 v6, v6
    v_lshrrev_b32 v7, 3, v1
    v_cvt_f32_u32 v7, v7
    v_mul_f32 v4, {fb(1/640)}, v4
    v_mul_f32 v5, {fb(1/640)}, v5
    v_mul_f32 v6, {fb(1/640)}, v6
    v_mul_f32 v7, {fb(0.25)}, v7
    v_cos_f32 v24, v4
    v_cos_f32 v25, v5
    v_cos_f32 v26, v6
    s_sub_u32 s18, s3, 4
    s_movk_i32 s19, 31
    v_add_f32 v24, v24, v24
    v_add_f32 v25, v25, v25
    v_add_f32 v26, v26, v26
k1_hloop:
    s_lshl_b32 s16, s18, 5
    v_lshl_add_u32 v8, v2, 3, s16
    v_cvt_f32_u32 v8, v8
    s_mul_i32 s17, s18, 5120
    s_add_u32 s17, s17, {L_B}
    v_lshl_add_u32 v9, v0, 4, s17
    """)
    for j, (st, ph) in enumerate([(0, "0"), (1, "0"), (0, fb(0.25)), (1, fb(0.25)), (2, "v7")]):
        a(f"s_bitcmp1_b32 s19, {j}\ns_cbranch_scc0 k1_hs{j}")
        if ph.startswith("0x"): a(f"v_fmaak_f32 v10, v{4+st}, v8, {ph}")
        else: a(f"v_fma_f32 v10, v{4+st}, v8, {ph}")
        a(f"v_fract_f32 v10, v10\nv_add_f32 v11, v10, v{4+st}\nv_cos_f32 v12, v10\nv_cos_f32 v13, v11\ns_nop 0")
        for k in range(2, 8): a(f"v_fma_f32 v{12+k}, v{24+st}, v{11+k}, -v{10+k}")
        for k in range(4): a(f"v_cvt_pk_bf16_f32 v{20+k}, v{12+2*k}, v{13+2*k}")
        a(f"ds_write_b128 v9, v[20:23] offset:{1024*j}\nk1_hs{j}:")
    a(f"""
    s_cmp_eq_u32 s18, 4
    s_cbranch_scc1 k1_hdone
    s_lshl_b32 s19, 1, s18
    s_cmp_eq_u32 s18, 0
    s_cselect_b32 s19, 17, s19
    s_mov_b32 s18, 4
    s_branch k1_hloop
k1_hdone:
    v_mov_b32 v36, -1
    v_mov_b32 v37, -1
    v_mov_b32 v38, -1
    v_mov_b32 v39, -1
    v_lshlrev_b32 v3, 4, v0
    s_waitcnt lgkmcnt(0)
    ;STAMP 1
    s_barrier
    """)
    ptrs(a)
    a(f"""
    s_lshl_b32 s51, s2, 3
    s_add_u32 s51, s51, s3
    s_cmp_lg_u32 s51, 4
    s_cbranch_scc1 k1_hd2
    s_mov_b32 s20, {WS_KEY}
k_clr0:
    buffer_store_dwordx4 v[36:39], v3, s[8:11], s20 offen sc1
    s_addk_i32 s20, 1024
    s_cmp_lt_u32 s20, {WS_KEY + 16384}
    s_cbranch_scc1 k_clr0
k1_hd2:
    s_mov_b32 s50, 0
    s_cmp_lt_u32 s3, 6
    s_cbranch_scc1 k_h45
    """)
    PF = int(os.environ.get("PF", "2"))
    if PF == 1:
        a(f"s_mul_i32 s22, s2, 7680\nv_lshlrev_b32 v40, 7, v0")
    if PF == 2:
        a(f"""s_and_b32 s20, s2, 7
        s_lshr_b32 s21, s2, 3
        v_mul_u32_u24 v40, 86, v0
        v_lshrrev_b32 v40, 8, v40
        v_mul_u32_u24 v42, 3, v40
        v_sub_u32 v42, v0, v42
        v_mul_u32_u24 v40, 3072, v40
        v_lshl_add_u32 v40, v42, 7, v40
        s_mul_i32 s22, s21, {20*3072}
        s_mul_i32 s23, s20, 384
        s_add_u32 s22, s22, s23
        v_lshrrev_b32 v43, 1, v0
        v_mul_u32_u24 v43, 1280, v43
        v_and_b32 v42, 1, v0
        v_lshl_add_u32 v43, v42, 7, v43
        s_lshl_b32 s21, s21, 1
        s_add_u32 s21, s21, s3
        s_sub_u32 s21, s21, 6
        s_mul_i32 s21, s21, {24*1280}
        s_mul_i32 s23, s20, 5
        s_lshr_b32 s23, s23, 1
        s_lshl_b32 s23, s23, 6
        s_add_u32 s21, s21, s23
        s_mov_b32 s58, 1966080
        s_mov_b32 s59, 0x00020000""")
    a("""s_cmp_eq_u32 s3, 6
    s_cselect_b32 s40, s52, s54
    s_cselect_b32 s41, s53, s55
    s_mov_b32 s42, 1966080
    s_mov_b32 s43, 0x00020000
    s_barrier""")
    if PF: a("buffer_load_dword v41, v40, s[40:43], s22 offen")
    if PF == 2: a("buffer_load_dword v41, v43, s[56:59], s21 offen")
    if PF and int(os.environ.get("PF2", "0")): a("buffer_load_dword v41, v40, s[40:43], s22 offen offset:64")
    a(f"""
    s_branch k_hb2
k_h45:
    s_barrier
    s_mul_i32 s16, s2, {2*SLOT}
    s_add_u32 s16, s16, {WS_SLOT}
    s_cmp_eq_u32 s3, 5
    s_cbranch_scc1 k_clr
    s_cmp_lg_u32 s2, 0
    s_cbranch_scc1 k_hb2
    v_lshlrev_b32 v4, 2, v0
    s_waitcnt vmcnt(0)
    buffer_store_dword v36, v4, s[44:47], 0 offen sc1
    s_mov_b32 s16, {WS_ACT}
k_clr:
    s_add_u32 s17, s16, 4096
    buffer_store_dwordx4 v[36:39], v3, s[8:11], s16 offen sc1
    buffer_store_dwordx4 v[36:39], v3, s[8:11], s16 offen offset:1024 sc1
    buffer_store_dwordx4 v[36:39], v3, s[8:11], s16 offen offset:2048 sc1
    buffer_store_dwordx4 v[36:39], v3, s[8:11], s16 offen offset:3072 sc1
    buffer_store_dwordx4 v[36:39], v3, s[8:11], s17 offen sc1
    buffer_store_dwordx4 v[36:39], v3, s[8:11], s17 offen offset:1024 sc1
k_hb2:
    s_barrier
    s_branch k2_pre
    """)

def body(a):
    entry(a); helper(a); k1main(a); k2(a); ffn(a); a("k_end:\ns_endpgm")
def main(out):
    import gen
    hdr = f"; FNet (2-D DFT as 3 MFMA stages) + LN + top-2 routed SwiGLU, one persistent launch; generated by my own script\n; @launch grid=(256,1,1) block=(512,1,1) lds={LDS}\n"
    hdr += '.amdgcn_target "amdgcn-amd-amdhsa--gfx950"\n'
    c, d = gen.kernel(NAME + "_kernel", body, 240)
    open(out, "w").write(hdr + c + '.section .rodata,"a"\n.p2align 6\n' + d)
if __name__ == "__main__":
    main(sys.argv[1] if len(sys.argv) > 1 else f"cdna_kernels/{NAME}.s")
```

```python
from gen import A, fb, vr, DPPF, XB, wave_red
WS_G, WS_SLOT, WS_KEY, WS_ACT = 0, 0x300000, 0x280000, 0x284000
SLOT = 3072
L_W = 32768
YP = 2592
L_KEY, L_TOP, L_PB, L_W5 = 24576, 24576 + 64, 28672, 32768
NG, ND = 48, 40
SPIN = 1 << 15
SC = "sc1"
def spin(a, lab, cnt="s50"):
    a(f"s_cbranch_vccz {lab}_ok\ns_add_u32 {cnt}, {cnt}, 1\ns_cmp_lt_u32 {cnt}, {SPIN}\ns_cbranch_scc1 {lab}\n{lab}_ok:")
def k2(a):
    a(f"""
k2_pre:
    s_lshr_b32 s14, s3, 2
    s_and_b32 s15, s3, 3
    s_sub_u32 s16, 64, s12
    s_cmp_eq_u32 s12, 0
    s_cselect_b32 s16, 32, s16
    s_cmp_eq_u32 s14, 0
    s_cselect_b32 s16, s12, s16
    s_mul_i32 s17, s16, 40960
    v_mul_u32_u24 v3, 1280, v2
    v_lshl_add_u32 v3, v1, 4, v3
    s_lshl_b32 s18, s15, 8
    s_add_u32 s18, s18, s17
    s_cmp_eq_u32 s3, 0
    s_cselect_b32 s19, 1, 0
    s_cmp_eq_u32 s3, 5
    s_cselect_b32 s19, 1, s19
    v_lshrrev_b32 v6, 2, v1
    s_lshl_b32 s20, s14, 2
    s_cmp_eq_u32 s12, 0
    s_cbranch_scc1 k2_u0
    s_lshl_b32 s21, s13, 2
    v_add_u32 v4, s21, v6
    s_mul_i32 s21, s14, 31
    v_xor_b32 v4, s21, v4
    s_xor_b32 s21, s20, 4
    v_add_u32 v5, s21, v2
    s_branch k2_t2done
k2_u0:
    v_lshrrev_b32 v4, 1, v6
    s_lshl_b32 s21, s13, 1
    v_add_u32 v4, s21, v4
    s_sub_u32 s21, 32, s14
    v_sub_u32 v7, s21, v4
    v_and_b32 v6, 1, v6
    v_cmp_eq_u32 vcc, 1, v6
    v_xor_b32 v5, 1, v2
    s_or_b32 s21, s13, s14
    v_cndmask_b32 v4, v4, v7, vcc
    v_cmp_eq_u32 vcc, 32, v4
    s_cmp_eq_u32 s21, 0
    s_cselect_b32 s21, 2, 0
    v_cndmask_b32 v4, v4, 16, vcc
    v_cmp_gt_u32 vcc, s21, v2
    s_nop 1
    v_cndmask_b32 v5, v5, v2, vcc
    v_add_u32 v5, s20, v5
k2_t2done:
    s_lshl_b32 s21, s15, 2
    s_nop 0
    v_readlane_b32 s22, v4, s21
    v_cvt_f32_u32 v6, v4
    v_cvt_f32_u32 v7, v2
    s_lshl_b32 s22, s22, 6
    s_add_u32 s22, s22, s16
    s_mul_i32 s23, s22, 1280
    v_lshlrev_b32 v28, 4, v0
    v_lshlrev_b32 v29, 2, v0
    v_mul_f32 v6, {fb(1/32)}, v6
    buffer_load_dwordx4 v[100:103], v28, s[4:7], s23 offen
    buffer_load_dword v104, v29, s[4:7], s23 offen offset:1024
    buffer_load_dwordx4 v[108:111], v28, s[28:31], 0 offen
    buffer_load_dword v112, v29, s[28:31], 0 offen offset:1024

    v_mul_f32 v7, v6, v7
    v_mul_f32 v6, 4.0, v6
    v_and_b32 v10, 3, v1
    """)
    for j in range(4): a(f"v_cmp_eq_u32 s[{36+2*(j&1)}:{37+2*(j&1)}], {j}, v10" + (f"\nv_cndmask_b32 v{11+j}, 0, -1, s[{36+2*((j-1)&1)}:{37+2*((j-1)&1)}]" if False else "") + f"\ns_nop 1\nv_cndmask_b32 v{12+j}, 0, -1, s[{36+2*(j&1)}:{37+2*(j&1)}]")
    GD, AC = 32, 128
    for ks in range(8):
        a(f"""v_cos_f32 v10, v7
        v_sin_f32 v11, v7
        v_add_f32 v7, v7, v6
        v_cvt_pk_bf16_f32 v10, v10, v11""")
        for j in range(4): a(f"v_and_b32 v{AC+4*ks+j}, v{12+j}, v10")
    def addrs(cbexpr, vd, vm):
        a(f"""
        v_add_u32 v10, {cbexpr}, v1
        v_mul_u32_u24 v11, 205, v10
        v_lshrrev_b32 v11, 11, v11
        v_mul_u32_u24 v16, 10, v11
        v_sub_u32 v16, v10, v16
        v_lshrrev_b32 v17, 2, v11
        v_mul_u32_u24 v17, 160, v17
        v_and_b32 v11, 3, v11
        v_add3_u32 v11, v11, v17, 1
        v_lshl_add_u32 v11, v16, 2, v11
        v_lshlrev_b32 v11, 2, v11
        v_add_u32 v{vd}, v18, v11
        v_sub_u32 v{vm}, v19, v11
        """)
    a(f"""
    v_add_u32 v18, s20, v2
    v_mul_u32_u24 v18, {YP}, v18
    v_mul_u32_u24 v19, {YP}, v5
    v_add_u32 v19, {4*520}, v19
    s_lshl_b32 s21, s15, 4
    s_mul_i32 s24, s3, {YP}
    v_mov_b32 v26, s24
    v_mov_b32 v27, 0
    """)
    addrs("s21", 20, 21)
    addrs("64", 22, 23)
    a(f"""v_cmp_eq_u32 vcc, 15, v1
    v_add_u32 v24, {4*(640-520)}, v19
    s_nop 0
    v_cndmask_b32 v24, v23, v24, vcc
    s_mov_b32 s25, 0xffff0000
    s_mov_b32 s26, 0x3f803f80
    s_cmp_lt_u32 s3, 4
    s_cselect_b32 s40, s52, s54
    s_cselect_b32 s41, s53, s55
    s_and_b32 s36, s2, 7
    s_lshr_b32 s37, s2, 3
    s_mul_i32 s48, s36, 6
    s_add_u32 s48, s48, s37
    s_lshl_b32 s39, s48, 6
    s_movk_i32 s49, 3072
    s_mul_i32 s38, s15, {160*3072}
    s_mul_i32 s27, s3, 10240
    s_movk_i32 s60, 10
    s_cmp_lt_u32 s2, {NG}
    s_cbranch_scc1 k2_wg
    s_mov_b32 s40, s56
    s_mov_b32 s41, s57
    s_mul_i32 s48, s36, 5
    s_add_u32 s48, s48, s37
    s_sub_u32 s48, s48, {NG//8}
    s_lshr_b32 s39, s48, 1
    s_lshl_b32 s39, s39, 6
    s_movk_i32 s49, 1280
    s_mul_i32 s38, s3, {192*1280}
    s_mul_i32 s27, s3, 12288
    s_movk_i32 s60, 12
k2_wg:
    s_add_u32 s61, s38, s39
    v_lshrrev_b32 v6, 2, v0
    v_mul_lo_u32 v6, v6, s49
    v_lshrrev_b32 v7, 4, v0
    v_and_b32 v7, 2, v7
    v_xor_b32 v7, v7, v0
    v_and_b32 v7, 3, v7
    v_lshl_add_u32 v114, v7, 4, v6
    s_lshl_b32 s49, s49, 4
    s_add_u32 m0, s27, {L_W}
    s_mov_b32 s42, 1966080
    s_mov_b32 s43, 0x00020000
    s_lshl_b32 s37, s2, 6
    s_add_u32 s37, s37, {WS_KEY}
    s_lshl_b32 s36, s3, 13
    s_add_u32 s36, s36, {WS_KEY - 32768}
    s_add_u32 s39, s36, 4096
    v_lshlrev_b32 v30, 6, v0
    s_cmp_ge_u32 s3, 4
    s_cbranch_scc1 k_h2
k2_join:
    ds_write_b32 v26, v27
    s_cmp_ge_u32 s3, 6
    s_cbranch_scc1 k2_nowait
    s_cmp_lg_u32 s3, 4
    s_cbranch_scc1 k2_go_ok
k2_go:
    buffer_load_dword v31, v29, s[44:47], 0 offen {SC}
    s_waitcnt vmcnt(0)
    v_cmp_eq_u32 vcc, 0, v31
    """)
    spin(a, "k2_go")
    a(f"""
    s_waitcnt vmcnt(0)
k2_nowait:
    ;STAMP 6
    s_barrier
    s_cmp_lg_u32 s3, 0
    s_cbranch_scc1 k2_nf
    s_mov_b64 exec, 1
    buffer_store_dword v27, v27, s[8:11], s37 offen {SC}
    s_mov_b64 exec, -1
k2_nf:
    s_barrier
    s_and_b32 s21, s3, 6
    s_cmp_lg_u32 s21, 4
    s_cbranch_scc1 k2_s1_ok
    buffer_load_dword v32, v30, s[8:11], s36 offen {SC}
    buffer_load_dword v33, v30, s[8:11], s39 offen {SC}
k2_s1:
    buffer_load_dword v34, v30, s[8:11], s36 offen {SC}
    buffer_load_dword v35, v30, s[8:11], s39 offen {SC}
    s_waitcnt vmcnt(2)
    v_or_b32 v31, v32, v33
    v_cmp_ne_u32 vcc, 0, v31
    s_cbranch_vccz k2_s1_ok
    buffer_load_dword v32, v30, s[8:11], s36 offen {SC}
    buffer_load_dword v33, v30, s[8:11], s39 offen {SC}
    s_waitcnt vmcnt(2)
    v_or_b32 v31, v34, v35
    v_cmp_ne_u32 vcc, 0, v31
    """)
    spin(a, "k2_s1")
    a("s_barrier\n;STAMP 7")
    def loads(gd):
        for ks in range(8):
            a(f"buffer_load_dwordx4 {vr(gd+4*ks,4)}, v3, s[8:11], s18 offen" + ("\ns_addk_i32 s18, 5120" if ks < 7 else ""))
    def item(gd, acc, vd, vm, vm3, vmbase):
        for ks in range(8):
            a(f"s_waitcnt vmcnt({vmbase-ks})")
            a(f"v_mfma_f32_16x16x32_bf16 {vr(acc,4)}, {vr(AC+4*ks,4)}, {vr(gd+4*ks,4)}, {vr(acc,4) if ks else 0}")
        return [f"ds_write_b32 v{vd}, v{acc+i} offset:{160*i}" for i in range(4)] + \
               [f"ds_write_b32 v{vm3 if i == 3 else vm}, v{acc+i} offset:{160*(3-i)}" for i in range(4)]
    a("s_cmp_eq_u32 s19, 0\ns_cbranch_scc1 k2_one\ns_mov_b32 s21, s18\ns_add_u32 s18, s17, 1024")
    loads(GD + 32)
    a("s_mov_b32 s18, s21")
    loads(GD)
    w2 = item(GD + 32, 164, 22, 23, 24, 15)
    a("s_nop 7")
    for t in w2: a(t)
    a("s_branch k2_two\nk2_one:")
    loads(GD)
    a("k2_two:")
    w1 = item(GD, 160, 20, 21, 21, 7)
    Y, H = 32, 48
    a(f"""
    v_lshl_add_u32 v10, v0, 5, s24
    v_lshl_add_u32 v11, v0, 3, s24
    v_mov_b32 v12, 0
    v_mov_b32 v13, 0
    v_mov_b32 v14, 0
    s_lshl_b32 s37, s3, 2
    v_mov_b32 v15, s37
    v_mov_b32 v16, {fb(1/640)}""")
    for t in w1: a(t)
    unp = lambda d, r: f"v_lshlrev_b32 v{d}, 16, v{r}\nv_and_b32 v{d+1}, s25, v{r}"
    for j in range(5): a(unp(H+2*j, 100+j))
    a(f"""
    s_waitcnt lgkmcnt(0)
    ;STAMP 8
    s_barrier
    ds_read_b128 v[32:35], v10
    ds_read_b128 v[36:39], v10 offset:16
    ds_read_b64 v[40:41], v11 offset:2048
    """)
    for j in range(5):
        if j in (0, 2, 4): a(f"s_waitcnt lgkmcnt({2-j//2})")
        a(f"v_pk_add_f32 {vr(Y+2*j,2)}, {vr(Y+2*j,2)}, {vr(H+2*j,2)}")
    for j in range(5): a(f"v_cvt_pk_bf16_f32 v{60+j}, v{Y+2*j}, v{Y+2*j+1}")
    for j in range(5): a(f"v_dot2c_f32_bf16 v12, s26, v{60+j}\nv_dot2c_f32_bf16 v13, v{60+j}, v{60+j}")
    b = A(); wave_red(b, [12, 13]); red = [t for t in b.l if "dpp" in t]
    a(unp(H, 60)); a("s_nop 0")
    un = [x for j in range(1, 5) for x in unp(H+2*j, 60+j).split("\n")]
    for k in range(6):
        a(red[2*k]); a(red[2*k+1]); a(un[k])
    a(f"""
    {un[6]}
    v_readlane_b32 s36, v12, 63
    v_readlane_b32 s37, v13, 63
    {un[7]}
    v_mul_f32 v12, s36, v16
    v_mul_f32 v13, s37, v16
    v_fma_f32 v13, -v12, v12, v13
    v_max_f32 v13, 0, v13
    v_cvt_pk_bf16_f32 v13, v12, v13
    v_lshlrev_b32 v12, 16, v13
    v_and_b32 v13, s25, v13
    v_add_f32 v13, {fb(1e-5)}, v13
    v_cvt_pk_bf16_f32 v13, v13, v13
    v_and_b32 v13, s25, v13
    v_sqrt_f32 v13, v13
    s_nop 0
    v_cvt_pk_bf16_f32 v13, v13, v13
    v_and_b32 v13, s25, v13
    v_rcp_f32 v13, v13
    s_nop 0
    v_mul_f32 v12, v12, v13
    """)
    for j in range(5): a(f"v_pk_fma_f32 {vr(Y+2*j,2)}, {vr(H+2*j,2)}, v[12:13], v[12:13] op_sel:[0,1,0] op_sel_hi:[1,1,0] neg_lo:[0,0,1] neg_hi:[0,0,1]")
    for j in range(5): a(f"v_cvt_pk_bf16_f32 v{68+j}, v{Y+2*j}, v{Y+2*j+1}")
    for j in range(5): a(f"v_dot2c_f32_bf16 v14, v{68+j}, v{108+j}")
    b = A(); wave_red(b, [14]); red = [t for t in b.l if "dpp" in t]
    un = [x for j in range(5) for x in unp(Y+2*j, 68+j).split("\n")] + [f"v_pk_add_f32 {vr(Y+2*j,2)}, {vr(Y+2*j,2)}, {vr(H+2*j,2)}" for j in range(5)]
    a(un[0]); a(un[1]); a(un[2])
    for k in range(6):
        a(red[k]); a(un[3+2*k]); a(un[4+2*k])
    a(f"""
    v_readlane_b32 s36, v14, 63
    s_nop 1
    v_cvt_pk_bf16_f32 v14, s36, s36
    v_ashrrev_i32 v16, 31, v14
    v_or_b32 v16, 0x80000000, v16
    v_xor_b32 v14, v14, v16
    v_and_b32 v14, s25, v14
    v_or_b32 v16, s3, v14
    ds_write_b32 v15, v16 offset:{L_KEY}
    v_and_b32 v15, 28, v29
    """)
    for j in range(5): a(f"v_cvt_pk_bf16_f32 v{76+j}, v{Y+2*j}, v{Y+2*j+1}")
    for j in (68, 69, 70, 71, 72): a(f"v_min_u32 v{j}, -2, v{j}")
    a(f"""
    s_waitcnt lgkmcnt(0)
    s_barrier
    ds_read_b32 v15, v15 offset:{L_KEY}
    v_mov_b32 v17, s22
    s_waitcnt lgkmcnt(0)
    v_cmp_gt_u32 vcc, v15, v16
    s_bcnt1_i32_b32 s36, vcc_lo
    s_lshr_b32 s36, s36, 2
    s_cmp_ge_u32 s36, 2
    s_cbranch_scc1 k2_plain
    s_lshl_b32 s37, s2, 1
    s_add_u32 s37, s36, s37
    v_or_b32 v14, s37, v14
    s_mul_i32 s37, s37, {SLOT}
    s_add_u32 s37, s37, {WS_SLOT}
    s_lshl_b32 s38, s2, 4
    s_add_u32 s36, s36, s38
    s_lshl_b32 s36, s36, 2
    s_add_u32 s36, s36, {WS_KEY + 8}
    buffer_store_dwordx4 v[68:71], v28, s[8:11], s37 offen sc1
    buffer_store_dword v72, v29, s[8:11], s37 offen offset:1024 sc1
    s_mov_b64 exec, 1
    buffer_store_dword v14, v27, s[8:11], s36 offen {SC}
    buffer_store_dword v17, v27, s[8:11], s37 offen offset:2560 sc1
    s_mov_b64 exec, -1
    v_min_u32 v60, -2, v60
    v_min_u32 v61, -2, v61
    v_min_u32 v62, -2, v62
    v_min_u32 v63, -2, v63
    v_min_u32 v64, -2, v64
    buffer_store_dwordx4 v[60:63], v28, s[8:11], s37 offen offset:1280 sc1
    buffer_store_dword v64, v29, s[8:11], s37 offen offset:2304 sc1
    v_readfirstlane_b32 s51, v14
    s_movk_i32 s36, 6
    s_barrier
    s_branch k2_wd
k2_plain:
    ;STAMP 9
    s_mov_b32 s51, -1
    s_barrier
    buffer_store_dwordx4 v[76:79], v28, s[32:35], s23 offen
    buffer_store_dword v80, v29, s[32:35], s23 offen offset:1024
k2_wd:
    s_cmp_ge_u32 s2, {NG}
    s_cbranch_scc1 k2_ng
k2_wd1:
    buffer_load_dwordx4 v114, s[40:43], s61 offen lds
    s_addk_i32 m0, 1024
    s_add_u32 s61, s61, s49
    s_sub_u32 s60, s60, 1
    s_cmp_lg_u32 s60, 0
    s_cbranch_scc1 k2_wd1
k2_ng:
    s_cmp_lt_u32 s2, {NG+ND}
    s_cbranch_scc1 k2_nw
    s_cmp_ge_u32 s3, 3
    s_cbranch_scc1 k2_nw
    s_lshr_b32 s37, s2, 3
    s_mul_i32 s37, s37, 74
    s_lshl_b32 s38, s3, 5
    s_add_u32 s37, s37, s38
    s_sub_u32 s37, s37, {74*11}
    s_mul_i32 s37, s37, 1280
    s_and_b32 s38, s2, 7
    s_mul_i32 s38, s38, 5
    s_lshr_b32 s38, s38, 1
    s_lshl_b32 s38, s38, 6
    s_add_u32 s37, s37, s38
    v_lshrrev_b32 v4, 1, v0
    v_mul_u32_u24 v4, 1280, v4
    v_and_b32 v5, 1, v0
    v_lshl_add_u32 v4, v5, 7, v4
    buffer_load_dword v41, v4, s[40:43], s37 offen
k2_nw:
    s_cmp_ge_u32 s36, 6
    s_cbranch_scc1 k2_s2
    v_lshlrev_b32 v4, 6, v0
    s_lshl_b32 s24, s36, 12
    s_add_u32 s24, s24, {WS_KEY - 8192}
    s_lshl_b32 s36, s36, 3
    v_mov_b32 v5, s36
k2_s2p:
    buffer_load_dwordx2 v[8:9], v4, s[8:11], s24 offen offset:8 {SC}
    s_waitcnt vmcnt(0)
    v_max_u32 v16, v8, v9
    v_cmp_eq_u32 vcc, -1, v16
    """)
    spin(a, "k2_s2p")
    a("v_mov_b32 v19, v16\nv_min_u32 v17, v8, v9")
    wave_red(a, [19], "v_max_u32")
    a("s_nop 0\nv_readlane_b32 s20, v19, 63\ns_nop 1\nv_cmp_eq_u32 vcc, s20, v16\ns_nop 1\nv_cndmask_b32 v18, v16, v17, vcc")
    wave_red(a, [18], "v_max_u32")
    a(f"""
    v_mov_b32 v16, s20
    v_readlane_b32 s21, v18, 63
    s_nop 1
    v_mov_b32 v17, s21
    ds_write_b64 v5, v[16:17] offset:{L_TOP - 16}
k2_s2:
    s_waitcnt vmcnt(0) lgkmcnt(0)
    s_barrier
    ds_read_b128 v[8:11], v27 offset:{L_TOP}
    ds_read_b128 v[12:15], v27 offset:{L_TOP + 16}
    s_waitcnt lgkmcnt(0)
    ;STAMP 10
    v_min_u32 v16, v8, v10
    v_min_u32 v17, v12, v14
    v_max3_u32 v9, v9, v11, v16
    v_max3_u32 v13, v13, v15, v17
    v_max_u32 v8, v8, v10
    v_max_u32 v12, v12, v14
    v_min_u32 v16, v8, v12
    v_max3_u32 v17, v9, v13, v16
    v_max_u32 v16, v8, v12
    s_nop 0
    v_readfirstlane_b32 s21, v17
    v_readfirstlane_b32 s20, v16
    s_cmp_ge_u32 s51, s21
    s_cbranch_scc1 k2_sel
    buffer_store_dwordx4 v[76:79], v28, s[32:35], s23 offen
    buffer_store_dword v80, v29, s[32:35], s23 offen offset:1024
k2_sel:
    s_cmp_ge_u32 s2, {NG+ND}
    s_cbranch_scc1 k_end
    """)


def ffn(a):
    AF, BF, PB = 32, 88, L_PB
    a(f"""
    s_and_b32 s22, s20, 0x1ff
    s_and_b32 s23, s21, 0x1ff
    s_mul_i32 s22, s22, {SLOT}
    s_mul_i32 s23, s23, {SLOT}
    v_mov_b32 v16, s22
    v_mov_b32 v17, s23
    v_cmp_gt_u32 vcc, 8, v1
    s_mov_b32 s26, {WS_SLOT}
    v_lshrrev_b32 v6, 2, v1
    v_lshl_add_u32 v6, v2, 3, v6
    v_lshlrev_b32 v6, 6, v6
    v_and_b32 v7, 3, v1
    v_lshl_add_u32 v6, v7, 3, v6
    s_cmp_ge_u32 s2, {NG}
    s_cbranch_scc1 k4
    s_bfe_u32 s16, s3, 0x10001
    s_mul_i32 s16, s16, 640
    v_cndmask_b32 v5, v17, v16, vcc
    v_lshl_add_u32 v5, v2, 4, v5
    s_add_u32 s26, s26, s16
    s_lshr_b32 s19, s3, 1
    s_mul_i32 s19, s19, 20480
    v_xor_b32 v7, s3, v2
    """)
    def common(nm, nks, soff):
        a(f"v_and_b32 v7, 1, v7\nv_lshl_add_u32 v7, v7, 5, v6\ns_add_u32 s19, s19, {L_W}\nv_add_u32 v7, s19, v7")
        a(f"{nm}_p:")
        for j in range(nks): a(f"buffer_load_dwordx4 {vr(AF+4*j,4)}, v5, s[8:11], {soff} offen offset:{(64 if nm == 'k3' else 128)*j} {SC}")
        for j in range(nks):
            a(f"ds_read_b64_tr_b16 {vr(BF+4*j,2)}, v7 offset:{2048*j}\nds_read_b64_tr_b16 {vr(BF+4*j+2,2)}, v7 offset:{2048*j+256}")
        a("s_waitcnt vmcnt(0)")
        n = 4*nks
        a(f"v_max3_u32 v8, v{AF}, v{AF+1}, v{AF+2}\nv_max3_u32 v9, v{AF+3}, v{AF+4}, v{AF+5}")
        for k in range(6, n, 4): a(f"v_max3_u32 v8, v8, v{AF+k}, v{AF+k+1}" + (f"\nv_max3_u32 v9, v9, v{AF+k+2}, v{AF+k+3}" if k+2 < n else ""))
        a("v_max_u32 v8, v8, v9\nv_cmp_eq_u32 vcc, -1, v8\ns_waitcnt lgkmcnt(0)")
        spin(a, nm + "_p")
        a(f";STAMP 11\ns_lshl_b32 s27, s3, 8")
        for j in range(nks):
            a(f"v_mfma_f32_16x16x32_bf16 v[84:87], {vr(AF+4*j,4)}, {vr(BF+4*j,4)}, {'v[84:87]' if j else 0}")
        a(f"""
        v_lshl_add_u32 v7, v0, 2, s27
        v_and_b32 v8, 47, v0
        v_and_b32 v9, 1, v2
        v_lshlrev_b32 v8, 2, v8
        v_lshl_add_u32 v8, v9, 8, v8
        s_nop 2
        ds_write_b32 v7, v84 offset:{PB}
        s_waitcnt lgkmcnt(0)
        s_barrier
        s_cmp_lg_u32 s3, 0
        s_cbranch_scc1 k_end
        """)
    common("k3", 10, "s26")
    for w in range(4): a(f"ds_read_b32 v{32+w}, v8 offset:{PB+512*w}")
    a(f"""
    v_and_b32 v7, 1, v0
    v_cmp_eq_u32 vcc, 0, v7
    v_lshlrev_b32 v16, 1, v0
    s_lshl_b32 s18, s48, 7
    s_add_u32 s18, s18, {WS_ACT}
    s_waitcnt lgkmcnt(0)
    v_add_f32 v24, v32, v33
    v_add_f32 v25, v34, v35
    v_cvt_pk_bf16_f32 v24, v24, v25
    v_lshlrev_b32 v25, 16, v24
    v_and_b32 v24, s25, v24
    v_mul_f32 v26, {fb(-1.4426950408889634)}, v25
    v_exp_f32 v26, v26
    s_nop 0
    v_add_f32 v26, 1.0, v26
    v_rcp_f32 v26, v26
    s_nop 0
    v_mul_f32 v25, v25, v26
    v_cvt_pk_bf16_f32 v25, v25, v25
    v_and_b32 v25, s25, v25
    v_mul_f32 v24, v24, v25
    s_nop 1
    v_mov_b32_dpp v25, v24 quad_perm:[1,1,3,3] {DPPF}
    v_cvt_pk_bf16_f32 v24, v24, v25
    v_min_u32 v24, -2, v24
    s_and_saveexec_b64 s[36:37], vcc
    buffer_store_dword v24, v16, s[8:11], s18 offen {SC}
    s_endpgm
k4:
    buffer_load_dwordx4 v114, s[40:43], s61 offen lds
    s_addk_i32 m0, 1024
    s_add_u32 s61, s61, s49
    s_sub_u32 s60, s60, 1
    s_cmp_lg_u32 s60, 0
    s_cbranch_scc1 k4
    s_mul_i32 s16, s3, 768
    s_add_u32 s16, s16, {WS_ACT}
    v_lshrrev_b32 v5, 3, v1
    v_lshlrev_b32 v5, 6, v5
    v_lshl_add_u32 v5, v2, 4, v5
    s_lshl_b32 s18, s48, 5
    s_mul_i32 s19, s3, 12288
    v_xor_b32 v7, s48, v2
    v_cmp_gt_u32 vcc, 32, v0
    v_mov_b32 v18, s20
    v_mov_b32 v19, s21
    v_cndmask_b32 v16, v17, v16, vcc
    v_cndmask_b32 v18, v19, v18, vcc
    v_and_b32 v17, 14, v1
    v_lshl_add_u32 v17, v17, 1, v16
    v_add_u32 v17, s18, v17
    """)
    a(f"""
    s_cmp_lg_u32 s3, 0
    s_cbranch_scc1 k4_h_ok
k4_h:
    buffer_load_dword v20, v17, s[8:11], s26 offen {SC}
    buffer_load_dword v21, v17, s[8:11], s26 offen offset:1280 {SC}
    buffer_load_dword v22, v16, s[8:11], s26 offen offset:2560 {SC}
    s_waitcnt vmcnt(0)
    v_max3_u32 v8, v20, v21, v22
    v_cmp_eq_u32 vcc, -1, v8
    """)
    spin(a, "k4_h")
    a("s_waitcnt vmcnt(0)")
    common("k4", 6, "s16")
    for w in range(8): a(f"ds_read_b32 v{32+w}, v29 offset:{PB+256*w}")
    a("v_and_b32 v7, 16, v0\nv_cmp_eq_u32 vcc, 0, v7\ns_waitcnt lgkmcnt(0)")
    a("v_add_f32 v32, v32, v33\nv_add_f32 v34, v34, v35\nv_add_f32 v36, v36, v37\nv_add_f32 v38, v38, v39\nv_add_f32 v24, v32, v34\nv_add_f32 v25, v36, v38")
    a(f"""
    v_ashrrev_i32 v19, 31, v18
    v_not_b32 v19, v19
    v_or_b32 v19, 0x80000000, v19
    v_xor_b32 v18, v18, v19
    v_and_b32 v18, s25, v18
    v_mul_f32 v18, {fb(-1.4426950408889634)}, v18
    v_exp_f32 v18, v18
    v_add_f32 v24, v24, v25
    v_add_f32 v18, 1.0, v18
    v_rcp_f32 v18, v18
    v_and_b32 v19, 1, v1
    v_lshlrev_b32 v19, 4, v19
    v_cvt_pk_bf16_f32 v24, v24, v18
    v_lshlrev_b32 v25, 16, v24
    v_and_b32 v24, s25, v24
    v_mul_f32 v24, v24, v25
    v_cvt_pk_bf16_f32 v24, v24, v24
    v_and_b32 v24, s25, v24
    v_lshrrev_b32 v20, v19, v20
    v_lshrrev_b32 v21, v19, v21
    v_lshlrev_b32 v20, 16, v20
    v_lshlrev_b32 v21, 16, v21
    v_and_b32 v22, 0x7ff, v22
    v_mul_u32_u24 v22, 1280, v22
    v_add_f32 v24, v24, v20
    v_cvt_pk_bf16_f32 v24, v24, v24
    v_and_b32 v24, s25, v24
    v_add_f32 v24, v24, v21
    v_cvt_pk_bf16_f32 v24, v24, v24
    v_lshl_add_u32 v22, v1, 1, v22
    s_and_saveexec_b64 s[36:37], vcc
    buffer_store_short v24, v22, s[32:35], s18 offen
    """)
```

```python
import sys, os
from gen2b import k2, ffn, spin
from gen import A, fb, vr, DPPF, NAME, XB, wave_red
WS_G, WS_SLOT, WS_KEY, WS_ACT = 0, 0x300000, 0x280000, 0x284000
WS_SIZE = 0x1000000
SLOT = 3072
L_B, L_A, L_W = 81920, 107520, 121344
LDS = 32768 + 98304
YP = 2576
L_KEY, L_TOP, L_PB, L_W5 = 24576, 24576 + 64, 28672, 32768
SPIN = 1 << 15
SC = "sc0 sc1"
def srd(a, d, nbytes): a(f"s_mov_b32 s{d+2}, {nbytes}\ns_mov_b32 s{d+3}, 0x00020000")

def entry(a):
    a(f"""
    s_cmp_ge_u32 s2, 256
    s_cbranch_scc1 k_end
    s_load_dwordx2 s[4:5], s[0:1], 0
    s_load_dwordx4 s[44:47], s[0:1], 88
    s_load_dwordx8 s[52:59], s[0:1], 56
    s_load_dwordx2 s[28:29], s[0:1], 48
    v_lshrrev_b32 v1, 6, v0
    v_and_b32 v0, 63, v0
    s_and_b32 s12, s2, 7
    s_lshr_b32 s13, s2, 6
    v_readfirstlane_b32 s3, v1
    s_lshl_b32 s13, s13, 3
    s_add_u32 s12, s12, s13
    s_bfe_u32 s13, s2, 0x30003
    s_and_b32 s14, s13, 3
    s_add_u32 s14, s14, 1
    s_lshr_b32 s15, s13, 2
    v_and_b32 v1, 15, v0
    v_lshrrev_b32 v2, 4, v0
    """)
    srd(a, 4, XB); srd(a, 8, WS_SIZE)
    a("s_cmp_lt_u32 s3, 4\ns_cbranch_scc1 k_main")
def ptrs(a):
    a("s_mov_b32 s8, s46\ns_mov_b32 s9, s47\ns_mov_b32 s32, s58\ns_mov_b32 s33, s59")
    srd(a, 44, 256); srd(a, 28, 1280); srd(a, 32, XB)

NPRE = int(os.environ.get('NPRE', '6'))
DG = len(sys.argv) > 2
def k1main(a):
    a(f"""
k_main:
    v_lshrrev_b32 v3, 2, v0
    s_lshl_b32 s16, s3, 4
    v_add_u32 v3, s16, v3
    s_mov_b32 s17, 40960
    v_mul_lo_u32 v3, v3, s17
    v_lshrrev_b32 v4, 5, v0
    v_mul_u32_u24 v4, 3, v4
    v_and_b32 v5, 3, v0
    v_xor_b32 v4, v4, v5
    v_lshl_add_u32 v3, v4, 4, v3
    s_mul_i32 s18, s12, 1280
    s_mul_i32 s19, s3, 20480
    s_mov_b32 m0, s19
    s_add_u32 s20, s18, {64*NPRE}
    s_lshl_b32 s21, s13, 2
    s_add_u32 s21, s21, s3
    s_mul_i32 s21, s21, {2*40960}
    s_add_u32 s21, s21, s18
    v_lshrrev_b32 v6, 5, v0
    v_mul_u32_u24 v6, 40960, v6
    v_and_b32 v7, 31, v0
    v_med3_u32 v7, v7, {NPRE}, 19
    v_lshl_add_u32 v6, v7, 6, v6
    s_waitcnt lgkmcnt(0)
    buffer_load_dword v239, v6, s[4:7], s21 offen
k1_dma:
    buffer_load_dwordx4 v3, s[4:7], s18 offen lds
    s_addk_i32 s18, 64
    s_addk_i32 m0, 1024
    s_cmp_lt_u32 s18, s20
    s_cbranch_scc1 k1_dma
    """)
    ptrs(a)
    CR, CI, CN = 200, 208, 216
    B, X, P, Q, R, S, SQ, ONE, T = 20, 120, 132, 152, 172, 192, 196, 224, 228
    a(f"""
    v_add_u32 v4, s16, v1
    v_cvt_f32_u32 v4, v4
    v_lshlrev_b32 v5, 8, v2
    v_add_u32 v5, s12, v5
    v_cvt_f32_u32 v5, v5
    s_mul_i32 s21, s14, 3
    v_cvt_f32_u32 v6, s21
    v_mul_f32 v5, v4, v5
    v_mul_f32 v6, {fb(0.25)}, v6
    v_mul_f32 v7, {fb(1/64)}, v4
    v_fmac_f32 v6, {fb(1/2048)}, v5
    v_fract_f32 v6, v6
    s_and_b32 s21, s14, 1
    s_lshl_b32 s22, s21, 31
    s_or_b32 s22, s22, 0x3f800000
    s_and_b32 s23, s14, 2
    s_lshl_b32 s23, s23, 30
    s_or_b32 s23, s23, 0x3f800000
    s_cmp_eq_u32 s21, 1
    s_cselect_b32 s24, s23, 0
    s_cselect_b32 s23, 0, s23
    s_xor_b32 s25, s24, 0x80000000
    v_mov_b32 v12, s24
    v_mov_b32 v13, s25
    v_cmp_gt_u32 vcc, 8, v1
    v_lshrrev_b32 v4, 3, v1
    v_mul_u32_u24 v4, 3, v4
    v_cndmask_b32 v12, v12, v13, vcc
    v_xor_b32 v4, v4, v2
    v_lshlrev_b32 v4, 4, v4
    v_lshl_add_u32 v4, v1, 6, v4
    v_add_u32 v4, s19, v4
    v_lshlrev_b32 v19, 4, v0
    v_add_u32 v19, {L_B}, v19
    v_lshlrev_b32 v13, 2, v2
    v_sub_u32 v13, v1, v13
    v_mov_b32 v18, 1.0
    """)
    for i in range(4): a(f"v_mov_b32 v{ONE+i}, 0x3f803f80\nv_cmp_eq_u32 s[{36+2*i}:{37+2*i}], {i}, v13")
    a("s_mov_b32 s50, 0\n;STAMP 1\ns_barrier\n;STAMP 2")
    xb = lambda i: [120, 124, 128, 172, 176][i] if i < 5 else X + 4 * (i % 3)
    for f in range(25):
        a(f"ds_read_b128 {vr(B+4*f,4)}, v19 offset:{1024*f}")
        if f % 5 == 4: a(f"s_waitcnt vmcnt({NPRE-1-f//5})\nds_read_b128 {vr(xb(f//5),4)}, v4 offset:{1024*(f//5)}")
    fill = {i: [] for i in range(20)}
    for j in range(20):
        fill[6 + j // 5].append(f"v_mul_f32 v{P+j}, s22, v{P+j}")
        fill[11 + j // 5].append(f"v_mul_f32 v{Q+j}, s22, v{Q+j}")
    slots = [0, 0, 1, 1, 2, 3, 4, 5]
    for ks in range(2):
        for jp in range(4):
            f = fill[slots[4*ks+jp]]
            if ks and not jp: f += ["v_fmac_f32 v6, 0x41c00000, v7", "v_fract_f32 v6, v6"]
            f += f"""v_cos_f32 v8, v6
            v_sin_f32 v9, v6
            v_add_f32 v6, v6, v7
            v_cos_f32 v10, v6
            v_sin_f32 v11, v6
            v_add_f32 v6, v6, v7
            v_cvt_pk_bf16_f32 v{CR+4*ks+jp}, v8, v10
            v_cvt_pk_bf16_f32 v{CN+4*ks+jp}, v9, v11
            v_cvt_pk_bf16_f32 v{CI+4*ks+jp}, -v9, -v11""".split("\n")
    rot = []
    for b in range(2):
        for i in range(4):
            re, im = P + 4*b + i, P + 8 + 4*b + i
            rot += [f"v_mul_f32 v{R+4*b+i}, s23, v{re}", f"v_mul_f32 v{R+8+4*b+i}, s23, v{im}",
                    f"v_fmac_f32 v{R+4*b+i}, s25, v{im}", f"v_fmac_f32 v{R+8+4*b+i}, s24, v{re}"]
    for i in range(4): rot += [f"v_mul_f32 v{R+16+i}, s23, v{P+16+i}"]
    for i in range(4): rot += [f"v_fmac_f32_dpp v{R+16+i}, v{P+16+i}, v12 row_ror:8 {DPPF}"]
    fill[15] += ['s_nop 0', 's_nop 0']
    for j, t in enumerate(rot): fill[15 + j // 10].append(t)
    for i in range(20):
        q, ks = divmod(i, 5)
        x = xb(i)
        if i + NPRE < 20: a("buffer_load_dwordx4 v3, s[4:7], s18 offen lds\ns_addk_i32 m0, 1024\ns_addk_i32 s18, 64")
        if i + NPRE == 20: a("s_barrier")
        if 3 <= i <= 17: a(f"s_waitcnt vmcnt({min(i+NPRE+1, 20)-i-3})\nds_read_b128 {vr(xb(i+2),4)}, v4 offset:{1024*(i+2)}")
        a(f"s_waitcnt lgkmcnt({[15, 15, 12, 7][i] if i < 4 else min(2, 19-i)})")
        if DG and i in (5, 12): a(f';STAMP {11 if i == 5 else 12}')
        acc = P if q % 2 == 0 else Q
        mf = []
        for b in range(5):
            c = "0" if (q < 2 and ks == 0) else vr(acc+4*b, 4)
            mf.append(f"v_mfma_f32_16x16x32_bf16 {vr(acc+4*b,4)}, {vr(x,4)}, {vr(B+20*ks+4*b,4)}, {c}")
        st = [f"v_mfma_f32_16x16x32_bf16 {vr(SQ,4)}, {vr(x,4)}, {vr(x,4)}, {vr(SQ,4) if i else 0}",
              f"v_mfma_f32_16x16x32_bf16 {vr(S,4)}, {vr(x,4)}, {vr(ONE,4)}, {vr(S,4) if i else 0}"]
        if i < 19:
            mf = mf + st; fl = fill[i]
            per = -(-len(fl) // 7)
            for b in range(7):
                a(mf[b])
                for t in fl[b*per:(b+1)*per]: a(t)
        else:
            a(st[0]); a(st[1]); a(mf[0]); a(mf[1])
            a(f"""
            s_lshl_b32 s27, s3, 5
            s_add_u32 s27, s27, {L_A}
            v_lshl_add_u32 v6, v2, 3, s27
            v_mul_u32_u24 v7, 144, v1
            v_add_u32 v7, v6, v7
            v_and_b32 v8, 7, v1
            v_cndmask_b32 v14, 0, v{SQ}, s[36:37]
            v_cndmask_b32 v14, v14, v{SQ+1}, s[38:39]
            v_cndmask_b32 v14, v14, v{SQ+2}, s[40:41]
            v_cndmask_b32 v14, v14, v{SQ+3}, s[42:43]
            v_mul_u32_u24 v8, 144, v8
            v_lshrrev_b32 v9, 3, v1
            v_mfma_f32_16x16x4_f32 {vr(SQ,4)}, v14, v18, 0
            v_mul_u32_u24 v9, 6912, v9
            v_add3_u32 v6, v6, v8, v9""")
            a(mf[2]); [a(f"v_mul_f32 v{S+k}, {fb(1/640)}, v{S+k}") for k in range(4)]
            a(mf[3]); a(mf[4])
    a(";STAMP 3\ns_nop 3")
    for i in range(4): a(f"v_mul_f32 v{SQ+i}, {fb(1/640)}, v{SQ+i}")
    for i in range(4): a(f"v_fma_f32 v{S+i}, -v{S+i}, v{S+i}, v{SQ+i}")
    for i in range(4): a(f"v_max_f32 v{S+i}, 0, v{S+i}")
    def rnd4():
        a(f"""v_cvt_pk_bf16_f32 v{T}, v{S}, v{S+1}
        v_cvt_pk_bf16_f32 v{T+1}, v{S+2}, v{S+3}
        v_lshlrev_b32 v{S}, 16, v{T}
        v_and_b32 v{S+1}, 0xffff0000, v{T}
        v_lshlrev_b32 v{S+2}, 16, v{T+1}
        v_and_b32 v{S+3}, 0xffff0000, v{T+1}""")
    rnd4()
    for i in range(4): a(f"v_add_f32 v{S+i}, {fb(1e-5)}, v{S+i}")
    rnd4()
    for i in range(4): a(f"v_sqrt_f32 v{S+i}, v{S+i}")
    for i in range(4): a(f"v_add_f32 v{Q+i}, v{Q+i}, v{R+i}")
    rnd4()
    for i in range(4): a(f"v_rcp_f32 v{S+i}, v{S+i}")
    for i in range(4, 20): a(f"v_add_f32 v{Q+i}, v{Q+i}, v{R+i}")
    for b in range(5):
        for i in range(4): a(f"v_mul_f32 v{Q+4*b+i}, v{Q+4*b+i}, v{S+i}")
        a(f"v_cvt_pk_bf16_f32 v{R+4*b}, v{Q+4*b}, v{Q+4*b+1}\nv_cvt_pk_bf16_f32 v{R+4*b+1}, v{Q+4*b+2}, v{Q+4*b+3}")
        if b < 4: a(f"ds_write_b64 v7, {vr(R+4*b,2)} offset:{(b&1)*16*144 + (b>>1)*6912}")
        else: a(f"ds_write_b64 v6, {vr(R+4*b,2)} offset:{32*144}")
    a(f"""
    v_mul_u32_u24 v7, 144, v1
    v_lshl_add_u32 v7, v2, 4, v7
    v_add_u32 v7, {L_A}, v7
    v_lshl_add_u32 v8, v2, 2, s16
    v_mul_lo_u32 v8, v8, s17
    s_mul_i32 s18, s12, 1280
    s_mul_i32 s19, s13, 160
    s_add_u32 s18, s18, s19
    v_lshl_add_u32 v8, v1, 2, v8
    v_add_u32 v8, s18, v8
    v_bfrev_b32 v9, 1
    v_cndmask_b32 v9, v9, v8, vcc
    s_mov_b32 s18, {2*40960}
    s_mov_b32 s19, {3*40960}
    s_waitcnt lgkmcnt(0)
    s_barrier
    ;STAMP 4
    """)
    D = 20
    for mb in range(3):
        for p in range(2):
            for ks in range(2):
                a(f"ds_read_b128 {vr(D+16*mb+8*p+4*ks,4)}, v7 offset:{mb*16*144 + p*6912 + 64*ks}")
    O = 70
    def outs(m):
        dr, di = O + 8*m, O + 8*m + 4
        for i in range(4):
            a(f"v_cvt_pk_bf16_f32 v{100+4*m+i}, v{dr+i}, v{di+i}")
            so = ["0", "s17", "s18", "s19"][i]
            a(f"buffer_store_dword v{100+4*m+i}, v{9 if m == 2 else 8}, s[8:11], {so} offen offset:{64*m} sc1")
    for mb in range(3):
        d = D + 16*mb; dr, di = O + 8*mb, O + 8*mb + 4
        a(f"""s_waitcnt lgkmcnt({10-4*mb})
        v_mfma_f32_16x16x32_bf16 {vr(dr,4)}, {vr(CR,4)}, {vr(d,4)}, 0
        v_mfma_f32_16x16x32_bf16 {vr(di,4)}, {vr(CI,4)}, {vr(d,4)}, 0
        v_mfma_f32_16x16x32_bf16 {vr(dr,4)}, {vr(CR+4,4)}, {vr(d+4,4)}, {vr(dr,4)}
        v_mfma_f32_16x16x32_bf16 {vr(di,4)}, {vr(CI+4,4)}, {vr(d+4,4)}, {vr(di,4)}
        s_waitcnt lgkmcnt({8-4*mb})
        v_mfma_f32_16x16x32_bf16 {vr(dr,4)}, {vr(CN,4)}, {vr(d+8,4)}, {vr(dr,4)}
        v_mfma_f32_16x16x32_bf16 {vr(di,4)}, {vr(CR,4)}, {vr(d+8,4)}, {vr(di,4)}
        v_mfma_f32_16x16x32_bf16 {vr(dr,4)}, {vr(CN+4,4)}, {vr(d+12,4)}, {vr(dr,4)}
        v_mfma_f32_16x16x32_bf16 {vr(di,4)}, {vr(CR+4,4)}, {vr(d+12,4)}, {vr(di,4)}""")
        if mb: outs(mb - 1)
    a("s_nop 7")
    outs(2)
    a(";STAMP 5")

def helper(a):
    a(f"""
k_helper:
    s_getpc_b64 s[20:21]
k_pc:
    s_sub_u32 s20, s20, k_pc-{NAME}_kernel
    s_subb_u32 s21, s21, 0
    s_lshl_b32 s16, s3, 12
    s_sub_u32 s16, s16, 16384
    v_lshl_add_u32 v40, v0, 6, s16
    v_min_u32 v40, k_end-{NAME}_kernel, v40
    global_load_dword v41, v40, s[20:21]
    s_mul_i32 s16, s15, 160
    s_add_u32 s16, s16, s14
    v_and_b32 v3, 3, v1
    v_mul_u32_u24 v3, 40, v3
    v_add_u32 v3, s16, v3
    v_and_b32 v4, 12, v1
    v_add_u32 v4, v3, v4
    v_add_u32 v5, 16, v4
    v_and_b32 v6, 4, v1
    v_add3_u32 v6, v3, v6, 32
    v_cvt_f32_u32 v4, v4
    v_cvt_f32_u32 v5, v5
    v_cvt_f32_u32 v6, v6
    v_lshrrev_b32 v7, 3, v1
    v_cvt_f32_u32 v7, v7
    v_mul_f32 v4, {fb(1/640)}, v4
    v_mul_f32 v5, {fb(1/640)}, v5
    v_mul_f32 v6, {fb(1/640)}, v6
    v_mul_f32 v7, {fb(0.25)}, v7
    v_cos_f32 v24, v4
    v_cos_f32 v25, v5
    v_cos_f32 v26, v6
    s_sub_u32 s18, s3, 4
    s_movk_i32 s19, 31
    v_add_f32 v24, v24, v24
    v_add_f32 v25, v25, v25
    v_add_f32 v26, v26, v26
k1_hloop:
    s_lshl_b32 s16, s18, 5
    v_lshl_add_u32 v8, v2, 3, s16
    v_cvt_f32_u32 v8, v8
    s_mul_i32 s17, s18, 5120
    s_add_u32 s17, s17, {L_B}
    v_lshl_add_u32 v9, v0, 4, s17
    """)
    for j, (st, ph) in enumerate([(0, "0"), (1, "0"), (0, fb(0.25)), (1, fb(0.25)), (2, "v7")]):
        a(f"s_bitcmp1_b32 s19, {j}\ns_cbranch_scc0 k1_hs{j}")
        if ph.startswith("0x"): a(f"v_fmaak_f32 v10, v{4+st}, v8, {ph}")
        else: a(f"v_fma_f32 v10, v{4+st}, v8, {ph}")
        a(f"v_fract_f32 v10, v10\nv_add_f32 v11, v10, v{4+st}\nv_cos_f32 v12, v10\nv_cos_f32 v13, v11\ns_nop 0")
        for k in range(2, 8): a(f"v_fma_f32 v{12+k}, v{24+st}, v{11+k}, -v{10+k}")
        for k in range(4): a(f"v_cvt_pk_bf16_f32 v{20+k}, v{12+2*k}, v{13+2*k}")
        a(f"ds_write_b128 v9, v[20:23] offset:{1024*j}\nk1_hs{j}:")
    a(f"""
    s_cmp_eq_u32 s18, 4
    s_cbranch_scc1 k1_hdone
    s_lshl_b32 s19, 1, s18
    s_cmp_eq_u32 s18, 0
    s_cselect_b32 s19, 17, s19
    s_mov_b32 s18, 4
    s_branch k1_hloop
k1_hdone:
    v_mov_b32 v36, -1
    v_mov_b32 v37, -1
    v_mov_b32 v38, -1
    v_mov_b32 v39, -1
    v_lshlrev_b32 v3, 4, v0
    s_waitcnt lgkmcnt(0)
    ;STAMP 1
    s_barrier
    """)
    ptrs(a)
    a(f"""
    s_lshl_b32 s51, s2, 3
    s_add_u32 s51, s51, s3
    s_cmp_lg_u32 s51, 4
    s_cbranch_scc1 k1_hd2
    s_mov_b32 s20, {WS_KEY}
k_clr0:
    buffer_store_dwordx4 v[36:39], v3, s[8:11], s20 offen sc1
    s_addk_i32 s20, 1024
    s_cmp_lt_u32 s20, {WS_KEY + 16384}
    s_cbranch_scc1 k_clr0
k1_hd2:
    s_mov_b32 s50, 0
    s_branch k2_pre
k_h2:
    s_cmp_lt_u32 s3, 6
    s_cbranch_scc1 k_h45
    s_and_b32 s20, s2, 7
    s_lshr_b32 s21, s2, 3
    v_mul_u32_u24 v40, 86, v0
    v_lshrrev_b32 v40, 8, v40
    v_mul_u32_u24 v42, 3, v40
    v_sub_u32 v42, v0, v42
    v_mul_u32_u24 v40, 3072, v40
    v_lshl_add_u32 v40, v42, 7, v40
    s_mul_i32 s21, s21, {20*3072}
    s_mul_i32 s20, s20, 384
    s_add_u32 s20, s20, s21
    s_cmp_eq_u32 s3, 6
    s_cselect_b32 s4, s52, s54
    s_cselect_b32 s5, s53, s55
    s_mov_b32 s6, 1966080
    s_barrier
    buffer_load_dword v41, v40, s[4:7], s20 offen
    s_branch k_hb2
k_h45:
    s_barrier
    s_mul_i32 s20, s2, {2*SLOT}
    s_add_u32 s20, s20, {WS_SLOT}
    s_cmp_eq_u32 s3, 5
    s_cbranch_scc1 k_clr
    s_cmp_lg_u32 s2, 0
    s_cbranch_scc1 k_hb2
    s_waitcnt vmcnt(0)
    buffer_store_dword v36, v29, s[44:47], 0 offen sc1
    s_mov_b32 s20, {WS_ACT}
k_clr:
    s_add_u32 s21, s20, 4096
    buffer_store_dwordx4 v[36:39], v28, s[8:11], s20 offen sc1
    buffer_store_dwordx4 v[36:39], v28, s[8:11], s20 offen offset:1024 sc1
    buffer_store_dwordx4 v[36:39], v28, s[8:11], s20 offen offset:2048 sc1
    buffer_store_dwordx4 v[36:39], v28, s[8:11], s20 offen offset:3072 sc1
    buffer_store_dwordx4 v[36:39], v28, s[8:11], s21 offen sc1
    buffer_store_dwordx4 v[36:39], v28, s[8:11], s21 offen offset:1024 sc1
k_hb2:
    s_barrier
    s_branch k2_join
    """)

def body(a):
    entry(a); helper(a); k1main(a); k2(a); ffn(a); a("k_end:\ns_endpgm")
def main(out):
    import gen
    hdr = f"; FNet (2-D DFT as 3 MFMA stages) + LN + top-2 routed SwiGLU, one persistent launch; generated by my own script\n; @launch grid=(256,1,1) block=(512,1,1) lds={LDS}\n"
    hdr += '.amdgcn_target "amdgcn-amd-amdhsa--gfx950"\n'
    c, d = gen.kernel(NAME + "_kernel", body, 240)
    open(out, "w").write(hdr + c + '.section .rodata,"a"\n.p2align 6\n' + d)
if __name__ == "__main__":
    main(sys.argv[1] if len(sys.argv) > 1 else f"cdna_kernels/{NAME}.s")
```

```python
from gen import A, fb, vr, DPPF, XB, wave_red
WS_G, WS_SLOT, WS_KEY, WS_ACT = 0, 0x300000, 0x280000, 0x284000
SLOT = 3072
L_W = 32768
YP = 2592
L_KEY, L_TOP, L_PB, L_W5 = 24576, 24576 + 64, 28672, 32768
NG, ND = 48, 40
SPIN = 1 << 15
SC = "sc1"
def spin(a, lab, cnt="s50"):
    a(f"s_cbranch_vccz {lab}_ok\ns_add_u32 {cnt}, {cnt}, 1\ns_cmp_lt_u32 {cnt}, {SPIN}\ns_cbranch_scc1 {lab}\n{lab}_ok:")
def k2(a):
    a(f"""
k2_pre:
    s_lshr_b32 s14, s3, 2
    s_and_b32 s15, s3, 3
    s_sub_u32 s16, 64, s12
    s_cmp_eq_u32 s12, 0
    s_cselect_b32 s16, 32, s16
    s_cmp_eq_u32 s14, 0
    s_cselect_b32 s16, s12, s16
    s_mul_i32 s17, s16, 40960
    v_mul_u32_u24 v3, 1280, v2
    v_lshl_add_u32 v3, v1, 4, v3
    s_lshl_b32 s18, s15, 8
    s_add_u32 s18, s18, s17
    s_cmp_eq_u32 s3, 0
    s_cselect_b32 s19, 1, 0
    s_cmp_eq_u32 s3, 5
    s_cselect_b32 s19, 1, s19
    v_lshrrev_b32 v6, 2, v1
    s_lshl_b32 s20, s14, 2
    s_cmp_eq_u32 s12, 0
    s_cbranch_scc1 k2_u0
    s_lshl_b32 s21, s13, 2
    v_add_u32 v4, s21, v6
    s_mul_i32 s21, s14, 31
    v_xor_b32 v4, s21, v4
    s_xor_b32 s21, s20, 4
    v_add_u32 v5, s21, v2
    s_branch k2_t2done
k2_u0:
    v_lshrrev_b32 v4, 1, v6
    s_lshl_b32 s21, s13, 1
    v_add_u32 v4, s21, v4
    s_sub_u32 s21, 32, s14
    v_sub_u32 v7, s21, v4
    v_and_b32 v6, 1, v6
    v_cmp_eq_u32 vcc, 1, v6
    v_xor_b32 v5, 1, v2
    s_or_b32 s21, s13, s14
    v_cndmask_b32 v4, v4, v7, vcc
    v_cmp_eq_u32 vcc, 32, v4
    s_cmp_eq_u32 s21, 0
    s_cselect_b32 s21, 2, 0
    v_cndmask_b32 v4, v4, 16, vcc
    v_cmp_gt_u32 vcc, s21, v2
    s_nop 1
    v_cndmask_b32 v5, v5, v2, vcc
    v_add_u32 v5, s20, v5
k2_t2done:
    s_lshl_b32 s21, s15, 2
    s_nop 0
    v_readlane_b32 s22, v4, s21
    v_cvt_f32_u32 v6, v4
    v_cvt_f32_u32 v7, v2
    s_lshl_b32 s22, s22, 6
    s_add_u32 s22, s22, s16
    s_mul_i32 s23, s22, 1280
    v_lshlrev_b32 v28, 4, v0
    v_lshlrev_b32 v29, 2, v0
    v_mul_f32 v6, {fb(1/32)}, v6
    buffer_load_dwordx4 v[100:103], v28, s[4:7], s23 offen
    buffer_load_dword v104, v29, s[4:7], s23 offen offset:1024
    buffer_load_dwordx4 v[108:111], v28, s[28:31], 0 offen
    buffer_load_dword v112, v29, s[28:31], 0 offen offset:1024
    s_cmp_ge_u32 s3, 4
    s_cbranch_scc1 k_h2
k2_join:
    s_lshl_b32 s20, s14, 2

    v_mul_f32 v7, v6, v7
    v_mul_f32 v6, 4.0, v6
    v_and_b32 v10, 3, v1
    """)
    for j in range(4): a(f"v_cmp_eq_u32 s[{36+2*(j&1)}:{37+2*(j&1)}], {j}, v10" + (f"\nv_cndmask_b32 v{11+j}, 0, -1, s[{36+2*((j-1)&1)}:{37+2*((j-1)&1)}]" if False else "") + f"\ns_nop 1\nv_cndmask_b32 v{12+j}, 0, -1, s[{36+2*(j&1)}:{37+2*(j&1)}]")
    GD, AC = 32, 128
    for ks in range(8):
        a(f"""v_cos_f32 v10, v7
        v_sin_f32 v11, v7
        v_add_f32 v7, v7, v6
        v_cvt_pk_bf16_f32 v10, v10, v11""")
        for j in range(4): a(f"v_and_b32 v{AC+4*ks+j}, v{12+j}, v10")
    def addrs(cbexpr, vd, vm):
        a(f"""
        v_add_u32 v10, {cbexpr}, v1
        v_mul_u32_u24 v11, 205, v10
        v_lshrrev_b32 v11, 11, v11
        v_mul_u32_u24 v16, 10, v11
        v_sub_u32 v16, v10, v16
        v_lshrrev_b32 v17, 2, v11
        v_mul_u32_u24 v17, 160, v17
        v_and_b32 v11, 3, v11
        v_add3_u32 v11, v11, v17, 1
        v_lshl_add_u32 v11, v16, 2, v11
        v_lshlrev_b32 v11, 2, v11
        v_add_u32 v{vd}, v18, v11
        v_sub_u32 v{vm}, v19, v11
        """)
    a(f"""
    v_add_u32 v18, s20, v2
    v_mul_u32_u24 v18, {YP}, v18
    v_mul_u32_u24 v19, {YP}, v5
    v_add_u32 v19, {4*520}, v19
    s_lshl_b32 s21, s15, 4
    s_mul_i32 s24, s3, {YP}
    v_mov_b32 v26, s24
    v_mov_b32 v27, 0
    """)
    addrs("s21", 20, 21)
    addrs("64", 22, 23)
    a(f"""v_cmp_eq_u32 vcc, 15, v1
    v_add_u32 v24, {4*(640-520)}, v19
    s_nop 0
    v_cndmask_b32 v24, v23, v24, vcc
    s_mov_b32 s25, 0xffff0000
    s_mov_b32 s26, 0x3f803f80
    s_cmp_lt_u32 s3, 4
    s_cselect_b32 s40, s52, s54
    s_cselect_b32 s41, s53, s55
    s_and_b32 s36, s2, 7
    s_lshr_b32 s37, s2, 3
    s_mul_i32 s48, s36, 6
    s_add_u32 s48, s48, s37
    s_lshl_b32 s39, s48, 6
    s_movk_i32 s49, 3072
    s_mul_i32 s38, s15, {160*3072}
    s_mul_i32 s27, s3, 10240
    s_movk_i32 s60, 5
    s_cmp_lt_u32 s2, {NG}
    s_cbranch_scc1 k2_wg
    s_mov_b32 s40, s56
    s_mov_b32 s41, s57
    s_mul_i32 s48, s36, 5
    s_add_u32 s48, s48, s37
    s_sub_u32 s48, s48, {NG//8}
    s_lshr_b32 s39, s48, 1
    s_lshl_b32 s39, s39, 6
    s_movk_i32 s49, 1280
    s_mul_i32 s38, s3, {192*1280}
    s_mul_i32 s27, s3, 12288
    s_movk_i32 s60, 12
k2_wg:
    s_add_u32 s61, s38, s39
    v_lshrrev_b32 v6, 2, v0
    v_mul_lo_u32 v6, v6, s49
    v_lshrrev_b32 v7, 4, v0
    v_and_b32 v7, 2, v7
    v_xor_b32 v7, v7, v0
    v_and_b32 v7, 3, v7
    v_lshl_add_u32 v114, v7, 4, v6
    s_lshl_b32 s49, s49, 4
    s_add_u32 m0, s27, {L_W}
    s_mov_b32 s42, 1966080
    s_mov_b32 s43, 0x00020000
    s_lshl_b32 s37, s2, 6
    s_add_u32 s37, s37, {WS_KEY}
    s_lshl_b32 s36, s3, 13
    s_add_u32 s36, s36, {WS_KEY - 32768}
    s_add_u32 s39, s36, 4096
    v_lshlrev_b32 v30, 6, v0
    ds_write_b32 v26, v27
    s_cmp_ge_u32 s3, 6
    s_cbranch_scc1 k2_nowait
    s_cmp_lg_u32 s3, 4
    s_cbranch_scc1 k2_go_ok
k2_go:
    buffer_load_dword v31, v29, s[44:47], 0 offen {SC}
    s_waitcnt vmcnt(0)
    v_cmp_eq_u32 vcc, 0, v31
    """)
    spin(a, "k2_go")
    a(f"""
    s_waitcnt vmcnt(0)
k2_nowait:
    ;STAMP 6
    s_barrier
    s_cmp_lg_u32 s3, 0
    s_cbranch_scc1 k2_nf
    s_mov_b64 exec, 1
    buffer_store_dword v27, v27, s[8:11], s37 offen {SC}
    s_mov_b64 exec, -1
k2_nf:
    s_barrier
    s_and_b32 s21, s3, 6
    s_cmp_lg_u32 s21, 4
    s_cbranch_scc1 k2_s1_ok
    buffer_load_dword v32, v30, s[8:11], s36 offen {SC}
    buffer_load_dword v33, v30, s[8:11], s39 offen {SC}
k2_s1:
    buffer_load_dword v34, v30, s[8:11], s36 offen {SC}
    buffer_load_dword v35, v30, s[8:11], s39 offen {SC}
    s_waitcnt vmcnt(2)
    v_or_b32 v31, v32, v33
    v_cmp_ne_u32 vcc, 0, v31
    s_cbranch_vccz k2_s1_ok
    buffer_load_dword v32, v30, s[8:11], s36 offen {SC}
    buffer_load_dword v33, v30, s[8:11], s39 offen {SC}
    s_waitcnt vmcnt(2)
    v_or_b32 v31, v34, v35
    v_cmp_ne_u32 vcc, 0, v31
    """)
    spin(a, "k2_s1")
    a("s_barrier\n;STAMP 7")
    def loads(gd):
        for ks in range(8):
            a(f"buffer_load_dwordx4 {vr(gd+4*ks,4)}, v3, s[8:11], s18 offen" + ("\ns_addk_i32 s18, 5120" if ks < 7 else ""))
    def item(gd, acc, vd, vm, vm3, vmbase):
        for ks in range(8):
            a(f"s_waitcnt vmcnt({vmbase-ks})")
            a(f"v_mfma_f32_16x16x32_bf16 {vr(acc,4)}, {vr(AC+4*ks,4)}, {vr(gd+4*ks,4)}, {vr(acc,4) if ks else 0}")
        return [f"ds_write_b32 v{vd}, v{acc+i} offset:{160*i}" for i in range(4)] + \
               [f"ds_write_b32 v{vm3 if i == 3 else vm}, v{acc+i} offset:{160*(3-i)}" for i in range(4)]
    a("s_cmp_eq_u32 s19, 0\ns_cbranch_scc1 k2_one\ns_mov_b32 s21, s18\ns_add_u32 s18, s17, 1024")
    loads(GD + 32)
    a("s_mov_b32 s18, s21")
    loads(GD)
    w2 = item(GD + 32, 164, 22, 23, 24, 15)
    a("s_nop 7")
    for t in w2: a(t)
    a("s_branch k2_two\nk2_one:")
    loads(GD)
    a("k2_two:")
    w1 = item(GD, 160, 20, 21, 21, 7)
    Y, H = 32, 48
    a(f"""
    v_lshl_add_u32 v10, v0, 5, s24
    v_lshl_add_u32 v11, v0, 3, s24
    v_mov_b32 v12, 0
    v_mov_b32 v13, 0
    v_mov_b32 v14, 0
    s_lshl_b32 s37, s3, 2
    v_mov_b32 v15, s37
    v_mov_b32 v16, {fb(1/640)}""")
    for t in w1: a(t)
    unp = lambda d, r: f"v_lshlrev_b32 v{d}, 16, v{r}\nv_and_b32 v{d+1}, s25, v{r}"
    for j in range(5): a(unp(H+2*j, 100+j))
    a(f"""
    s_waitcnt lgkmcnt(0)
    ;STAMP 8
    s_barrier
    ds_read_b128 v[32:35], v10
    ds_read_b128 v[36:39], v10 offset:16
    ds_read_b64 v[40:41], v11 offset:2048
    ;EPI0
    """)
    for j in range(5):
        if j in (0, 2, 4): a(f"s_waitcnt lgkmcnt({2-j//2})")
        a(f"v_pk_add_f32 {vr(Y+2*j,2)}, {vr(Y+2*j,2)}, {vr(H+2*j,2)}")
    for j in range(5): a(f"v_cvt_pk_bf16_f32 v{60+j}, v{Y+2*j}, v{Y+2*j+1}")
    for j in range(5): a(f"v_dot2c_f32_bf16 v12, s26, v{60+j}\nv_dot2c_f32_bf16 v13, v{60+j}, v{60+j}")
    b = A(); wave_red(b, [12, 13]); red = [t for t in b.l if "dpp" in t]
    a(unp(H, 60)); a("s_nop 0")
    un = [x for j in range(1, 5) for x in unp(H+2*j, 60+j).split("\n")]
    for k in range(6):
        a(red[2*k]); a(red[2*k+1]); a(un[k])
    a(f"""
    {un[6]}
    v_readlane_b32 s36, v12, 63
    v_readlane_b32 s37, v13, 63
    {un[7]}
    v_mul_f32 v12, s36, v16
    v_mul_f32 v13, s37, v16
    v_fma_f32 v13, -v12, v12, v13
    v_max_f32 v13, 0, v13
    v_cvt_pk_bf16_f32 v13, v12, v13
    v_lshlrev_b32 v12, 16, v13
    v_and_b32 v13, s25, v13
    v_add_f32 v13, {fb(1e-5)}, v13
    v_cvt_pk_bf16_f32 v13, v13, v13
    v_and_b32 v13, s25, v13
    v_sqrt_f32 v13, v13
    s_nop 0
    v_cvt_pk_bf16_f32 v13, v13, v13
    v_and_b32 v13, s25, v13
    v_rcp_f32 v13, v13
    s_nop 0
    v_mul_f32 v12, v12, v13
    """)
    for j in range(5): a(f"v_pk_fma_f32 {vr(Y+2*j,2)}, {vr(H+2*j,2)}, v[12:13], v[12:13] op_sel:[0,1,0] op_sel_hi:[1,1,0] neg_lo:[0,0,1] neg_hi:[0,0,1]")
    for j in range(5): a(f"v_cvt_pk_bf16_f32 v{68+j}, v{Y+2*j}, v{Y+2*j+1}")
    for j in range(5): a(f"v_dot2c_f32_bf16 v14, v{68+j}, v{108+j}")
    b = A(); wave_red(b, [14]); red = [t for t in b.l if "dpp" in t]
    un = [x for j in range(5) for x in unp(Y+2*j, 68+j).split("\n")] + [f"v_pk_add_f32 {vr(Y+2*j,2)}, {vr(Y+2*j,2)}, {vr(H+2*j,2)}" for j in range(5)]
    a(un[0]); a(un[1]); a(un[2])
    for k in range(6):
        a(red[k]); a(un[3+2*k]); a(un[4+2*k])
    a(f"""
    v_readlane_b32 s36, v14, 63
    s_nop 1
    v_cvt_pk_bf16_f32 v14, s36, s36
    v_ashrrev_i32 v16, 31, v14
    v_or_b32 v16, 0x80000000, v16
    v_xor_b32 v14, v14, v16
    v_and_b32 v14, s25, v14
    v_or_b32 v16, s3, v14
    ds_write_b32 v15, v16 offset:{L_KEY}
    v_and_b32 v15, 28, v29
    """)
    for j in range(5): a(f"v_cvt_pk_bf16_f32 v{76+j}, v{Y+2*j}, v{Y+2*j+1}")
    for j in (68, 69, 70, 71, 72): a(f"v_min_u32 v{j}, -2, v{j}")
    a(f"""
    s_waitcnt lgkmcnt(0)
    s_barrier
    ds_read_b32 v15, v15 offset:{L_KEY}
    v_mov_b32 v17, s22
    s_waitcnt lgkmcnt(0)
    v_cmp_gt_u32 vcc, v15, v16
    s_bcnt1_i32_b32 s36, vcc_lo
    s_lshr_b32 s36, s36, 2
    s_cmp_ge_u32 s36, 2
    s_cbranch_scc1 k2_plain
    s_lshl_b32 s37, s2, 1
    s_add_u32 s37, s36, s37
    v_or_b32 v14, s37, v14
    s_mul_i32 s37, s37, {SLOT}
    s_add_u32 s37, s37, {WS_SLOT}
    s_lshl_b32 s38, s2, 4
    s_add_u32 s36, s36, s38
    s_lshl_b32 s36, s36, 2
    s_add_u32 s36, s36, {WS_KEY + 8}
    buffer_store_dwordx4 v[68:71], v28, s[8:11], s37 offen sc1
    buffer_store_dword v72, v29, s[8:11], s37 offen offset:1024 sc1
    s_mov_b64 exec, 1
    buffer_store_dword v14, v27, s[8:11], s36 offen {SC}
    buffer_store_dword v17, v27, s[8:11], s37 offen offset:2560 sc1
    s_mov_b64 exec, -1
    v_min_u32 v60, -2, v60
    v_min_u32 v61, -2, v61
    v_min_u32 v62, -2, v62
    v_min_u32 v63, -2, v63
    v_min_u32 v64, -2, v64
    buffer_store_dwordx4 v[60:63], v28, s[8:11], s37 offen offset:1280 sc1
    buffer_store_dword v64, v29, s[8:11], s37 offen offset:2304 sc1
    v_readfirstlane_b32 s51, v14
    s_movk_i32 s36, 6
    s_barrier
    s_branch k2_wd
k2_plain:
    ;STAMP 9
    s_mov_b32 s51, -1
    s_barrier
    buffer_store_dwordx4 v[76:79], v28, s[32:35], s23 offen
    buffer_store_dword v80, v29, s[32:35], s23 offen offset:1024
k2_wd:
    s_cmp_ge_u32 s2, {NG}
    s_cbranch_scc1 k2_ng
k2_wd1:
    buffer_load_dwordx4 v114, s[40:43], s61 offen lds
    s_addk_i32 m0, 1024
    s_add_u32 s61, s61, s49
    s_sub_u32 s60, s60, 1
    s_cmp_lg_u32 s60, 0
    s_cbranch_scc1 k2_wd1
k2_ng:
    s_cmp_lt_u32 s2, {NG+ND}
    s_cbranch_scc1 k2_nw
    s_cmp_ge_u32 s3, 3
    s_cbranch_scc1 k2_nw
    s_lshr_b32 s37, s2, 3
    s_mul_i32 s37, s37, 74
    s_lshl_b32 s38, s3, 5
    s_add_u32 s37, s37, s38
    s_sub_u32 s37, s37, {74*11}
    s_mul_i32 s37, s37, 1280
    s_and_b32 s38, s2, 7
    s_mul_i32 s38, s38, 5
    s_lshr_b32 s38, s38, 1
    s_lshl_b32 s38, s38, 6
    s_add_u32 s37, s37, s38
    v_lshrrev_b32 v4, 1, v0
    v_mul_u32_u24 v4, 1280, v4
    v_and_b32 v5, 1, v0
    v_lshl_add_u32 v4, v5, 7, v4
    buffer_load_dword v41, v4, s[40:43], s37 offen
k2_nw:
    s_cmp_ge_u32 s36, 6
    s_cbranch_scc1 k2_s2
    v_lshlrev_b32 v4, 6, v0
    s_lshl_b32 s24, s36, 12
    s_add_u32 s24, s24, {WS_KEY - 8192}
    s_lshl_b32 s36, s36, 3
    v_mov_b32 v5, s36
k2_s2p:
    buffer_load_dwordx2 v[8:9], v4, s[8:11], s24 offen offset:8 {SC}
    s_waitcnt vmcnt(0)
    v_max_u32 v16, v8, v9
    v_cmp_eq_u32 vcc, -1, v16
    """)
    spin(a, "k2_s2p")
    a("v_mov_b32 v19, v16\nv_min_u32 v17, v8, v9")
    wave_red(a, [19], "v_max_u32")
    a("s_nop 0\nv_readlane_b32 s20, v19, 63\ns_nop 1\nv_cmp_eq_u32 vcc, s20, v16\ns_nop 1\nv_cndmask_b32 v18, v16, v17, vcc")
    wave_red(a, [18], "v_max_u32")
    a(f"""
    v_mov_b32 v16, s20
    v_readlane_b32 s21, v18, 63
    s_nop 1
    v_mov_b32 v17, s21
    ds_write_b64 v5, v[16:17] offset:{L_TOP - 16}
k2_s2:
    s_waitcnt vmcnt(0) lgkmcnt(0)
    s_barrier
    ds_read_b128 v[8:11], v27 offset:{L_TOP}
    ds_read_b128 v[12:15], v27 offset:{L_TOP + 16}
    s_waitcnt lgkmcnt(0)
    ;STAMP 10
    v_min_u32 v16, v8, v10
    v_min_u32 v17, v12, v14
    v_max3_u32 v9, v9, v11, v16
    v_max3_u32 v13, v13, v15, v17
    v_max_u32 v8, v8, v10
    v_max_u32 v12, v12, v14
    v_min_u32 v16, v8, v12
    v_max3_u32 v17, v9, v13, v16
    v_max_u32 v16, v8, v12
    s_nop 0
    v_readfirstlane_b32 s21, v17
    v_readfirstlane_b32 s20, v16
    s_cmp_ge_u32 s51, s21
    s_cbranch_scc1 k2_sel
    buffer_store_dwordx4 v[76:79], v28, s[32:35], s23 offen
    buffer_store_dword v80, v29, s[32:35], s23 offen offset:1024
k2_sel:
    s_cmp_ge_u32 s2, {NG+ND}
    s_cbranch_scc1 k_end
    """)

    i0 = a.l.index("    ;EPI0")
    for j, at in reversed(list(enumerate([1, 14, 30, 52, 72]))):
        ins = [f"s_cmp_ge_u32 s2, {NG}", f"s_cbranch_scc1 k2_e{j}", "buffer_load_dwordx4 v114, s[40:43], s61 offen lds", "s_addk_i32 m0, 1024", "s_add_u32 s61, s61, s49", f"k2_e{j}:"]
        a.l[i0+at:i0+at] = [t if t.endswith(":") else "    " + t for t in ins]

def ffn(a):
    AF, BF, PB = 32, 88, L_PB
    a(f"""
    s_and_b32 s22, s20, 0x1ff
    s_and_b32 s23, s21, 0x1ff
    s_mul_i32 s22, s22, {SLOT}
    s_mul_i32 s23, s23, {SLOT}
    v_mov_b32 v16, s22
    v_mov_b32 v17, s23
    v_cmp_gt_u32 vcc, 8, v1
    s_mov_b32 s26, {WS_SLOT}
    v_lshrrev_b32 v6, 2, v1
    v_lshl_add_u32 v6, v2, 3, v6
    v_lshlrev_b32 v6, 6, v6
    v_and_b32 v7, 3, v1
    v_lshl_add_u32 v6, v7, 3, v6
    s_cmp_ge_u32 s2, {NG}
    s_cbranch_scc1 k4
    s_cmp_lt_u32 s3, 4
    s_cselect_b32 s16, s22, s23
    s_cselect_b32 s17, 0, 1344
    s_mul_i32 s19, s15, 320
    s_add_u32 s16, s16, s19
    s_add_u32 s26, s26, s16
    v_min_u32 v5, 39, v0
    v_lshlrev_b32 v5, 3, v5
    s_add_u32 s17, s17, s19
    v_add_u32 v4, s17, v5
    s_bfe_u32 s16, s3, 0x10001
    s_mul_i32 s16, s16, 640
    v_lshrrev_b32 v10, 3, v1
    v_mul_u32_u24 v10, 1344, v10
    s_lshr_b32 s19, s3, 1
    s_mul_i32 s19, s19, 20480
    v_xor_b32 v7, s3, v2
    """)
    def common(nm, nks, soff):
        g = nm == "k3"
        ld = f"buffer_load_dwordx{2 if g else 4} {vr(12, 2 if g else 4)}, v5, s[8:11], {soff} offen {SC}"
        a(ld)
        a(f"v_and_b32 v7, 1, v7\nv_lshl_add_u32 v7, v7, 5, v6\ns_add_u32 s19, s19, {L_W}\nv_add_u32 v7, s19, v7\nv_lshl_add_u32 v10, v2, 4, v10\nv_add_u32 v10, s16, v10")
        for j in range(nks):
            a(f"ds_read_b64_tr_b16 {vr(BF+4*j,2)}, v7 offset:{2048*j}\nds_read_b64_tr_b16 {vr(BF+4*j+2,2)}, v7 offset:{2048*j+256}")
        a(f"s_branch {nm}_q\n{nm}_p:\n{ld}\n{nm}_q:\ns_waitcnt vmcnt(0)")
        a("v_max_u32 v8, v12, v13" if g else "v_max3_u32 v8, v12, v13, v14\nv_max_u32 v8, v8, v15")
        a("v_cmp_eq_u32 vcc, -1, v8")
        spin(a, nm + "_p")
        a(";STAMP 11")
        a("ds_write_b64 v4, v[12:13]\ns_waitcnt lgkmcnt(0)\ns_barrier" if g else "ds_write_b128 v4, v[12:15]\ns_waitcnt lgkmcnt(0)")
        for j in range(nks): a(f"ds_read_b128 {vr(AF+4*j,4)}, v10 offset:{(64 if g else 128)*j}")
        a(f"s_lshl_b32 s27, s3, 8")
        for j in range(nks):
            a(f"s_waitcnt lgkmcnt({nks-1-j})")
            a(f"v_mfma_f32_16x16x32_bf16 v[84:87], {vr(AF+4*j,4)}, {vr(BF+4*j,4)}, {'v[84:87]' if j else 0}")
        a(f"""
        v_lshl_add_u32 v7, v0, 2, s27
        v_and_b32 v8, 47, v0
        v_and_b32 v9, 1, v2
        v_lshlrev_b32 v8, 2, v8
        v_lshl_add_u32 v8, v9, 8, v8
        s_nop 2
        ds_write_b32 v7, v84 offset:{PB}
        s_waitcnt lgkmcnt(0)
        s_barrier
        s_cmp_lg_u32 s3, 0
        s_cbranch_scc1 k_end
        """)
    common("k3", 10, "s26")
    for w in range(4): a(f"ds_read_b32 v{32+w}, v8 offset:{PB+512*w}")
    a(f"""
    v_and_b32 v7, 1, v0
    v_cmp_eq_u32 vcc, 0, v7
    v_lshlrev_b32 v16, 1, v0
    s_lshl_b32 s18, s48, 7
    s_add_u32 s18, s18, {WS_ACT}
    s_waitcnt lgkmcnt(0)
    v_add_f32 v24, v32, v33
    v_add_f32 v25, v34, v35
    v_cvt_pk_bf16_f32 v24, v24, v25
    v_lshlrev_b32 v25, 16, v24
    v_and_b32 v24, s25, v24
    v_mul_f32 v26, {fb(-1.4426950408889634)}, v25
    v_exp_f32 v26, v26
    s_nop 0
    v_add_f32 v26, 1.0, v26
    v_rcp_f32 v26, v26
    s_nop 0
    v_mul_f32 v25, v25, v26
    v_cvt_pk_bf16_f32 v25, v25, v25
    v_and_b32 v25, s25, v25
    v_mul_f32 v24, v24, v25
    s_nop 1
    v_mov_b32_dpp v25, v24 quad_perm:[1,1,3,3] {DPPF}
    v_cvt_pk_bf16_f32 v24, v24, v25
    v_min_u32 v24, -2, v24
    s_and_saveexec_b64 s[36:37], vcc
    buffer_store_dword v24, v16, s[8:11], s18 offen {SC}
    s_endpgm
k4:
    buffer_load_dwordx4 v114, s[40:43], s61 offen lds
    s_addk_i32 m0, 1024
    s_add_u32 s61, s61, s49
    s_sub_u32 s60, s60, 1
    s_cmp_lg_u32 s60, 0
    s_cbranch_scc1 k4
    s_mul_i32 s16, s3, 768
    s_add_u32 s17, s16, {WS_ACT}
    v_min_u32 v5, 47, v0
    v_lshlrev_b32 v5, 4, v5
    v_add_u32 v4, s16, v5
    v_lshrrev_b32 v10, 3, v1
    v_lshlrev_b32 v10, 6, v10
    s_lshl_b32 s18, s48, 5
    s_mul_i32 s19, s3, 12288
    v_xor_b32 v7, s48, v2
    v_cmp_gt_u32 vcc, 32, v0
    v_mov_b32 v18, s20
    v_mov_b32 v19, s21
    v_cndmask_b32 v16, v17, v16, vcc
    v_cndmask_b32 v18, v19, v18, vcc
    v_and_b32 v17, 14, v1
    v_lshl_add_u32 v17, v17, 1, v16
    v_add_u32 v17, s18, v17
    """)
    a(f"""
    s_cmp_lg_u32 s3, 0
    s_cbranch_scc1 k4_h_ok
k4_h:
    buffer_load_dword v20, v17, s[8:11], s26 offen {SC}
    buffer_load_dword v21, v17, s[8:11], s26 offen offset:1280 {SC}
    buffer_load_dword v22, v16, s[8:11], s26 offen offset:2560 {SC}
    s_waitcnt vmcnt(0)
    v_max3_u32 v8, v20, v21, v22
    v_cmp_eq_u32 vcc, -1, v8
    """)
    spin(a, "k4_h")
    a("s_waitcnt vmcnt(0)")
    common("k4", 6, "s17")
    for w in range(8): a(f"ds_read_b32 v{32+w}, v29 offset:{PB+256*w}")
    a("v_and_b32 v7, 16, v0\nv_cmp_eq_u32 vcc, 0, v7\ns_waitcnt lgkmcnt(0)")
    a("v_add_f32 v32, v32, v33\nv_add_f32 v34, v34, v35\nv_add_f32 v36, v36, v37\nv_add_f32 v38, v38, v39\nv_add_f32 v24, v32, v34\nv_add_f32 v25, v36, v38")
    a(f"""
    v_ashrrev_i32 v19, 31, v18
    v_not_b32 v19, v19
    v_or_b32 v19, 0x80000000, v19
    v_xor_b32 v18, v18, v19
    v_and_b32 v18, s25, v18
    v_mul_f32 v18, {fb(-1.4426950408889634)}, v18
    v_exp_f32 v18, v18
    v_add_f32 v24, v24, v25
    v_add_f32 v18, 1.0, v18
    v_rcp_f32 v18, v18
    v_and_b32 v19, 1, v1
    v_lshlrev_b32 v19, 4, v19
    v_cvt_pk_bf16_f32 v24, v24, v18
    v_lshlrev_b32 v25, 16, v24
    v_and_b32 v24, s25, v24
    v_mul_f32 v24, v24, v25
    v_cvt_pk_bf16_f32 v24, v24, v24
    v_and_b32 v24, s25, v24
    v_lshrrev_b32 v20, v19, v20
    v_lshrrev_b32 v21, v19, v21
    v_lshlrev_b32 v20, 16, v20
    v_lshlrev_b32 v21, 16, v21
    v_and_b32 v22, 0x7ff, v22
    v_mul_u32_u24 v22, 1280, v22
    v_add_f32 v24, v24, v20
    v_cvt_pk_bf16_f32 v24, v24, v24
    v_and_b32 v24, s25, v24
    v_add_f32 v24, v24, v21
    v_cvt_pk_bf16_f32 v24, v24, v24
    v_lshl_add_u32 v22, v1, 1, v22
    s_and_saveexec_b64 s[36:37], vcc
    buffer_store_short v24, v22, s[32:35], s18 offen
    """)
```
